```python
import torch

def _softmax(x, axis=-1):
    return torch.softmax(x, dim=axis)
def _gelu(x):
    return torch.nn.functional.gelu(x, approximate="tanh")
def _silu(x):
    return torch.nn.functional.silu(x)
def _sigmoid(x):
    return torch.sigmoid(x)
def _layernorm(x, axis=-1, eps=1e-5):
    m = x.mean(dim=axis, keepdim=True)
    v = x.var(dim=axis, keepdim=True, unbiased=False)
    return (x - m) / torch.sqrt(v + eps)
def _scatter_add(tgt, idx, src, axis=0):
    return tgt.clone().index_add_(axis, idx, src)
def _segment_sum(src, seg, n):
    out = torch.zeros((n,) + src.shape[1:], dtype=src.dtype)
    return out.index_add_(0, seg, src)
def _pad(x, pw):
    flat = tuple(v for pair in reversed(pw) for v in pair)
    return torch.nn.functional.pad(x, flat)

kernel_name = 'concat_heads__mha_block_cached__compressed_kv_cla__decode'

def setup_inputs():

    _w = (lambda a: (lambda t: t.to(torch.bfloat16) if t.is_floating_point() else t)(torch.as_tensor(a)))
    def _A_setup():
        B, Sq, D = 2, 1, 448
        H, Sk, Dh = 16, 4096, 256
        return {
            "x": _w((lambda *s: torch.randn(*s, dtype=torch.bfloat16) * 1.6)(B, Sq, D)),
            "k_cache": _w((lambda *s: torch.randn(*s, dtype=torch.bfloat16) * 1.6)(B, H, Sk, Dh)),
            "v_cache": _w((lambda *s: torch.randn(*s, dtype=torch.bfloat16) * 0.05)(B, H, Sk, Dh)),
            "wq": _w((lambda *s: torch.randn(*s, dtype=torch.bfloat16) * 1.6)(D, H * Dh) * (D ** -0.5)),
            "wo": _w((lambda *s: torch.randn(*s, dtype=torch.bfloat16) * 0.05)(H * Dh, D) * ((H * Dh) ** -0.5)),
        }
    _A_in = _A_setup()

    def _B_setup():
        B, H, Sq, Sk, D, M = 2, 16, 1, 4096, 256, 448
        Dc = 4 * D
        return {
            "x": _w((lambda *s: torch.randn(*s, dtype=torch.bfloat16) * 3.2)(B, Sq, M)),
            "c_kv": _w((lambda *s: torch.randn(*s, dtype=torch.bfloat16) * 0.1)(B, Sk, Dc)),
            "w_q": _w((lambda *s: torch.randn(*s, dtype=torch.bfloat16) * 6.4)(M, H, D) * (M ** -0.5)),
            "w_uk": _w((lambda *s: torch.randn(*s, dtype=torch.bfloat16) * 6.4)(Dc, H, D) * (Dc ** -0.5)),
            "w_uv": _w((lambda *s: torch.randn(*s, dtype=torch.bfloat16) * 0.1)(Dc, H, D) * (Dc ** -0.5)),
            "w_o": _w((lambda *s: torch.randn(*s, dtype=torch.bfloat16) * 0.1)(H, D, M) * ((H * D) ** -0.5)),
        }
    _B_in = _B_setup()

    return {
        "A_x": _A_in["x"],
        "A_k_cache": _A_in["k_cache"],
        "A_v_cache": _A_in["v_cache"],
        "A_wq": _A_in["wq"],
        "A_wo": _A_in["wo"],
        "B_x": _B_in["x"],
        "B_c_kv": _B_in["c_kv"],
        "B_w_q": _B_in["w_q"],
        "B_w_uk": _B_in["w_uk"],
        "B_w_uv": _B_in["w_uv"],
        "B_w_o": _B_in["w_o"],
    }

def reference(A_x, A_k_cache, A_v_cache, A_wq, A_wo, B_x, B_c_kv, B_w_q, B_w_uk, B_w_uv, B_w_o):
    def _A_ref(x, k_cache, v_cache, wq, wo):
        B, Sq, D = x.shape
        H, Dh = 16, 256
        q = (lambda x, *d: x.permute(*d))((x @ wq).reshape(B, Sq, H, Dh), 0, 2, 1, 3)
        scores = torch.einsum("bhqd,bhkd->bhqk", q, k_cache) * (Dh ** -0.5)
        p = _softmax(scores, axis=-1)
        o = torch.einsum("bhqk,bhkd->bhqd", p, v_cache)
        return (lambda x, *d: x.permute(*d))(o, 0, 2, 1, 3).reshape(B, Sq, H * Dh) @ wo

    def _B_ref(x, c_kv, w_q, w_uk, w_uv, w_o):
        B, Sq, M = x.shape[0], x.shape[1], x.shape[2]
        Sk = c_kv.shape[1]
        H, D = w_q.shape[1], w_q.shape[2]
        q = torch.einsum("bqm,mhd->bhqd", x, w_q)
        k = torch.einsum("bkc,chd->bhkd", c_kv, w_uk)
        v = torch.einsum("bkc,chd->bhkd", c_kv, w_uv)
        scores = torch.einsum("bhqd,bhkd->bhqk", q, k) * (D ** -0.5)
        off = Sk - Sq
        qi = torch.arange(Sq)[:, None]
        kj = torch.arange(Sk)[None, :]
        cmask = kj <= (qi + off)
        scores = torch.where(cmask[None, None], scores, -1e9)
        p = _softmax(scores, axis=-1)
        ctx = torch.einsum("bhqk,bhkd->bhqd", p, v)
        return torch.einsum("bhqd,hdm->bqm", ctx, w_o)

    a = _A_ref(A_x, A_k_cache, A_v_cache, A_wq, A_wo)
    b = _B_ref(B_x, B_c_kv, B_w_q, B_w_uk, B_w_uv, B_w_o)
    return torch.concatenate([a, b], axis=-1)
```

```python
import sys

NAME = "concat_heads__mha_block_cached__compressed_kv_cla__decode"
KN = NAME + "_kernel"

WS_NONCE = 0
WS_SC = 0x10000
WS_ST = 0x90000
WS_QH = 0xA0000
WS_QL = 0xB0000
WS_QF = 0xC0000
WS_PF = 0xC1000
WS_YF = 0xC2000
WS_PS = 0xC4000
WS_Y = 0xD0000
WS_PC = 0x200000
WS_SIZE = 0x10000000

L_TILE0 = 0
L_TILE1 = 65536
L_SX = 131072
L_QX = 139264
L_QB = 147456
LDS_BYTES = 148480 + 1024
L_OX = 0
L_YX = 8192
L_CX = 40960
L_CB = 49152
L_FX = 53248

SPIN_MAX = 400000

class G:
    def __init__(s):
        s.lines = []
        s.q = []
        s.uid = 0
    def e(s, t):
        s.lines.append("    " + t)
    def c(s, t):
        s.lines.append("    ; " + t)
    def lab(s, n):
        s.lines.append(n + ":")
    def newlab(s, p="L"):
        s.uid += 1
        return "%s_%d" % (p, s.uid)
    def vm(s, tag, t):
        s.e(t)
        s.q.append(tag)
    def wait(s, tag):
        if tag not in s.q:
            return
        idx = max(i for i, x in enumerate(s.q) if x == tag)
        n = len(s.q) - 1 - idx
        s.e("s_waitcnt vmcnt(%d)" % min(n, 63))
        s.q = s.q[idx + 1:]
    def waitall(s):
        s.e("s_waitcnt vmcnt(0)")
        s.q = []
    def rename(s, a, b):
        s.q = [b + x[len(a):] if x.startswith(a) else x for x in s.q]
    def nop(s, n):
        s.e("s_nop %d" % n)

def v(i, n=1):
    return "v%d" % i if n == 1 else "v[%d:%d]" % (i, i + n - 1)
def sr(i, n=1):
    return "s%d" % i if n == 1 else "s[%d:%d]" % (i, i + n - 1)

S_WAVE, S_TAG, S_H, S_J = 3, 4, 5, 6
S_CU = 7
SRD_X, SRD_WQ, SRD_WO, SRD_K, SRD_V, SRD_WUV, SRD_WS, SRD_OUT = 36, 40, 44, 48, 52, 56, 60, 64
S_PLO, S_PHI, S_L2E = 68, 69, 70
S_MK = 72
S_M2 = 74
S_EX = 76
S_T = [8, 9, 10, 11, 12, 13, 14, 15]
S_KB = [16, 17]; S_KN = [18, 19]; S_KU = [20, 21]
S_VB = [22, 23]; S_VN = [24, 25]; S_SB = [26, 27]
S_CUR, S_NXT, S_SCN, S_T4 = 28, 29, 30, 31
S_SPIN = 32
S_DH = 33
S_O = 80
S_BB, S_KR = 34, 35
S_X0 = 96

V_LANE, V_L16, V_G = 1, 2, 3


def dpp_allreduce16(g, op, regs, tmp=None):
    for st in (8, 4, 2, 1):
        if len(regs) < 3:
            g.nop(1)
        for r in regs:
            g.e("%s_dpp %s, %s, %s row_ror:%d row_mask:0xf bank_mask:0xf" % (op, v(r), v(r), v(r), st))

def cross_rows(g, op, r, t, both=True):
    g.e("v_mov_b32 %s, %s" % (v(t), v(r)))
    g.nop(1)
    g.e("v_permlane16_swap_b32 %s, %s" % (v(t), v(r)))
    g.nop(1)
    g.e("%s %s, %s, %s" % (op, v(r), v(r), v(t)))
    if both:
        g.e("v_mov_b32 %s, %s" % (v(t), v(r)))
        g.nop(1)
        g.e("v_permlane32_swap_b32 %s, %s" % (v(t), v(r)))
        g.nop(1)
        g.e("%s %s, %s, %s" % (op, v(r), v(r), v(t)))

def transpose_reduce16(g, a):
    g.nop(1)
    for k in range(8):
        g.e("v_permlane32_swap_b32 %s, %s" % (v(a + k), v(a + k + 8)))
    g.nop(1)
    for k in range(8):
        g.e("v_add_f32 %s, %s, %s" % (v(a + k), v(a + k), v(a + k + 8)))
    g.nop(1)
    for k in range(4):
        g.e("v_permlane16_swap_b32 %s, %s" % (v(a + k), v(a + k + 4)))
    g.nop(1)
    for k in range(4):
        g.e("v_add_f32 %s, %s, %s" % (v(a + k), v(a + k), v(a + k + 4)))

def spin_head(g):
    g.e("s_mov_b32 %s, 0" % sr(S_SPIN))

def q_stage(g, NB, WREG, pre_wait_hook=None):
    XR = 80
    ACC = 32
    PT = 108
    g.c("---- Q stage ----")
    g.e("s_lshr_b32 %s, %s, 1" % (sr(S_T[0]), sr(S_WAVE)))
    g.e("s_and_b32 %s, %s, 1" % (sr(S_T[1]), sr(S_WAVE)))
    g.e("s_mul_i32 %s, %s, %d" % (sr(S_T[2]), sr(S_T[0]), 112 * 8192))
    g.e("s_lshl_b32 %s, %s, 9" % (sr(S_T[3]), sr(S_H)))
    g.e("s_add_u32 %s, %s, %s" % (sr(S_T[2]), sr(S_T[2]), sr(S_T[3])))
    g.e("s_lshl_b32 %s, %s, 8" % (sr(S_T[3]), sr(S_T[1])))
    g.e("s_add_u32 %s, %s, %s" % (sr(S_T[2]), sr(S_T[2]), sr(S_T[3])))
    g.e("s_mul_i32 %s, %s, 224" % (sr(S_T[4]), sr(S_T[0])))
    g.e("s_add_u32 %s, %s, 896" % (sr(S_T[5]), sr(S_T[4])))
    g.e("s_mov_b32 %s, %d" % (sr(S_T[6]), 28 * 8192))
    g.e("v_mul_lo_u32 v12, %s, %s" % (v(V_G), sr(S_T[6])))
    g.e("v_lshl_add_u32 v12, %s, 4, v12" % v(V_L16))
    g.e("v_mul_u32_u24 v13, 56, %s" % v(V_G))
    for b in range(2):
        sb = sr(S_T[4 + b])
        g.vm("qx", "buffer_load_dwordx4 %s, v13, %s, %s offen" % (v(XR + b * 14, 4), sr(SRD_X, 4), sb))
        g.vm("qx", "buffer_load_dwordx4 %s, v13, %s, %s offen offset:16" % (v(XR + b * 14 + 4, 4), sr(SRD_X, 4), sb))
        g.vm("qx", "buffer_load_dwordx4 %s, v13, %s, %s offen offset:32" % (v(XR + b * 14 + 8, 4), sr(SRD_X, 4), sb))
        g.vm("qx", "buffer_load_dwordx2 %s, v13, %s, %s offen offset:48" % (v(XR + b * 14 + 12, 2), sr(SRD_X, 4), sb))
    def ldw(n):
        g.vm("qw%d" % n, "buffer_load_dwordx4 %s, v12, %s, %s offen" % (v(WREG + (n % NB) * 4, 4), sr(SRD_WQ, 4), sr(S_T[2])))
        g.e("s_add_u32 %s, %s, 8192" % (sr(S_T[2]), sr(S_T[2])))
    for n in range(NB):
        ldw(n)
    if pre_wait_hook:
        pre_wait_hook()
    for i in range(16):
        g.e("v_mov_b32 %s, 0" % v(ACC + i))
    for k in range(14):
        g.wait("qw%d" % (2 * k + 1))
        r0 = WREG + ((2 * k) % NB) * 4
        r1 = WREG + ((2 * k + 1) % NB) * 4
        for j in range(4):
            g.e("v_perm_b32 %s, %s, %s, %s" % (v(PT + 2 * j), v(r1 + j), v(r0 + j), sr(S_PLO)))
            g.e("v_perm_b32 %s, %s, %s, %s" % (v(PT + 2 * j + 1), v(r1 + j), v(r0 + j), sr(S_PHI)))
        if 2 * k + NB < 28:
            ldw(2 * k + NB)
            ldw(2 * k + 1 + NB)
        for b in range(2):
            for e_ in range(8):
                g.e("v_dot2_f32_bf16 %s, %s, %s, %s" % (v(ACC + b * 8 + e_), v(PT + e_), v(XR + b * 14 + k), v(ACC + b * 8 + e_)))
    g.nop(3)
    transpose_reduce16(g, ACC)
    g.e("s_lshl_b32 %s, %s, 11" % (sr(S_T[3]), sr(S_T[0])))
    g.e("s_lshl_b32 %s, %s, 9" % (sr(S_T[6]), sr(S_T[1])))
    g.e("s_add_u32 %s, %s, %s" % (sr(S_T[3]), sr(S_T[3]), sr(S_T[6])))
    g.e("s_add_u32 %s, %s, %d" % (sr(S_T[3]), sr(S_T[3]), L_QX))
    g.e("v_lshrrev_b32 v12, 1, %s" % v(V_G))
    g.e("v_lshlrev_b32 v12, 10, v12")
    g.e("v_and_b32 v13, 1, %s" % v(V_G))
    g.e("v_lshl_add_u32 v12, v13, 4, v12")
    g.e("v_lshl_add_u32 v12, %s, 5, v12" % v(V_L16))
    g.e("v_add_u32 v12, %s, v12" % sr(S_T[3]))
    g.e("ds_write_b128 v12, %s" % v(ACC, 4))
    g.e("s_waitcnt lgkmcnt(0)")
    g.e("s_barrier")
    g.e("v_lshlrev_b32 v12, 2, v0")
    g.e("v_add_u32 v12, %d, v12" % L_QX)
    for rb in range(4):
        g.e("ds_read_b32 %s, v12 offset:%d" % (v(ACC + rb), rb * 2048))
    g.e("s_waitcnt lgkmcnt(0)")
    g.e("v_add_f32 %s, %s, %s" % (v(ACC), v(ACC), v(ACC + 1)))
    g.e("v_add_f32 %s, %s, %s" % (v(ACC + 2), v(ACC + 2), v(ACC + 3)))
    g.e("v_add_f32 %s, %s, %s" % (v(ACC), v(ACC), v(ACC + 2)))
    g.e("v_cvt_pk_bf16_f32 %s, %s, %s" % (v(ACC), v(ACC), v(ACC)))
    g.e("v_lshlrev_b32 v12, 1, v0")
    g.e("v_add_u32 v12, %d, v12" % L_QB)
    g.e("ds_write_b16 v12, %s" % v(ACC))
    g.e("s_waitcnt lgkmcnt(0)")
    g.e("s_barrier")
    g.e("v_lshlrev_b32 v12, 4, %s" % v(V_L16))
    g.e("v_add_u32 v12, %d, v12" % L_QB)
    for b in range(2):
        for hf in range(2):
            g.e("ds_read_b128 %s, v12 offset:%d" % (v(16 + b * 8 + hf * 4, 4), b * 512 + hf * 256))
    g.e("s_waitcnt lgkmcnt(0)")


def out_stage(g):
    WO = 128
    ACC = 32
    g.c("---- OUT stage ----")
    for k in range(8):
        r0 = WO + (2 * k) * 4
        r1 = r0 + 4
        for j in range(4):
            g.e("v_perm_b32 v12, %s, %s, %s" % (v(r1 + j), v(r0 + j), sr(S_PLO)))
            g.e("v_perm_b32 %s, %s, %s, %s" % (v(r1 + j), v(r1 + j), v(r0 + j), sr(S_PHI)))
            g.e("v_mov_b32 %s, v12" % v(r0 + j))
    return


def out_stage2(g):
    WO = 128
    ACC = 32
    g.e("v_lshrrev_b32 v12, 1, %s" % v(V_G))
    g.e("v_lshlrev_b32 v12, 9, v12")
    g.e("v_and_b32 v13, 1, %s" % v(V_G))
    g.e("v_lshl_add_u32 v12, v13, 12, v12")
    g.e("v_lshl_add_u32 v12, %s, 2, v12" % v(V_L16))
    g.e("s_lshl_b32 %s, %s, 6" % (sr(S_T[0]), sr(S_WAVE)))
    g.e("s_add_u32 %s, %s, %d" % (sr(S_T[0]), sr(S_T[0]), L_OX))
    g.e("v_add_u32 v12, %s, v12" % sr(S_T[0]))
    for i in range(4):
        g.e("ds_read_b32 %s, v12 offset:%d" % (v(ACC + i), i * 1024))
    g.e("s_waitcnt lgkmcnt(0)")
    g.e("v_add_f32 %s, %s, %s" % (v(ACC), v(ACC), v(ACC + 1)))
    g.e("v_add_f32 %s, %s, %s" % (v(ACC + 2), v(ACC + 2), v(ACC + 3)))
    g.e("v_add_f32 %s, %s, %s" % (v(ACC), v(ACC), v(ACC + 2)))
    cross_rows(g, "v_add_f32", ACC, ACC + 1, both=False)
    g.e("v_mov_b32 %s, 0" % v(ACC + 1))
    g.nop(1)
    g.e("v_mov_b32_dpp %s, %s row_shl:1 row_mask:0xf bank_mask:0xf" % (v(ACC + 1), v(ACC)))
    g.nop(1)
    g.e("v_cvt_pk_bf16_f32 %s, %s, %s" % (v(ACC + 2), v(ACC), v(ACC + 1)))
    g.nop(1)
    for b in range(2):
        for k in range(8):
            g.e("v_readlane_b32 %s, %s, %d" % (sr(S_O + b * 8 + k), v(ACC + 2), b * 32 + 2 * k))
    Y = 48
    for i in range(16):
        g.e("v_mov_b32 %s, 0" % v(Y + i))
    g.nop(1)
    for k in range(8):
        r0 = WO + (2 * k) * 4
        r1 = r0 + 4
        for b in range(2):
            for j in range(4):
                g.e("v_dot2_f32_bf16 %s, %s, %s, %s" % (v(Y + b * 8 + 2 * j), v(r0 + j), sr(S_O + b * 8 + k), v(Y + b * 8 + 2 * j)))
                g.e("v_dot2_f32_bf16 %s, %s, %s, %s" % (v(Y + b * 8 + 2 * j + 1), v(r1 + j), sr(S_O + b * 8 + k), v(Y + b * 8 + 2 * j + 1)))
    g.nop(3)
    g.e("s_mul_i32 %s, %s, 3584" % (sr(S_T[0]), sr(S_WAVE)))
    g.e("s_add_u32 %s, %s, %d" % (sr(S_T[0]), sr(S_T[0]), L_YX))
    g.e("v_lshlrev_b32 v12, 5, %s" % v(V_LANE))
    g.e("v_add_u32 v12, %s, v12" % sr(S_T[0]))
    g.e("s_mov_b64 %s, exec" % sr(S_EX, 2))
    g.e("s_mov_b32 exec_lo, -1")
    g.e("s_mov_b32 exec_hi, 0x00ffffff")
    for b in range(2):
        for hh in range(2):
            g.e("ds_write_b128 v12, %s offset:%d" % (v(Y + b * 8 + hh * 4, 4), b * 1792 + hh * 16))
    g.e("s_mov_b64 exec, %s" % sr(S_EX, 2))
    g.e("s_waitcnt lgkmcnt(0)")
    g.e("s_barrier")
    skip = g.newlab("OUTSKIP")
    g.e("v_cmp_gt_u32 vcc, 224, v0")
    g.e("s_and_saveexec_b64 %s, vcc" % sr(S_EX, 2))
    g.e("s_cbranch_execz %s" % skip)
    g.e("v_lshlrev_b32 v12, 4, v0")
    g.e("v_add_u32 v13, %d, v12" % L_YX)
    for wv in range(8):
        g.e("ds_read_b128 %s, v13 offset:%d" % (v(64 + wv * 4, 4), wv * 3584))
    g.e("s_waitcnt lgkmcnt(0)")
    for wv in range(1, 8):
        for j in range(4):
            g.e("v_add_f32 %s, %s, %s" % (v(64 + j), v(64 + j), v(64 + wv * 4 + j)))
    g.e("s_mul_i32 %s, %s, 3584" % (sr(S_T[0]), sr(S_CU)))
    g.e("s_add_u32 %s, %s, %d" % (sr(S_T[0]), sr(S_T[0]), WS_Y))
    g.e("buffer_store_dwordx4 %s, v12, %s, %s offen sc1" % (v(64, 4), sr(SRD_WS, 4), sr(S_T[0])))
    g.lab(skip)
    g.e("s_mov_b64 exec, %s" % sr(S_EX, 2))
    g.waitall()
    g.e("s_barrier")
    skip = g.newlab("OUTFLAG")
    g.e("s_cmp_lg_u32 %s, 0" % sr(S_WAVE))
    g.e("s_cbranch_scc1 %s" % skip)
    g.e("s_lshl_b32 %s, %s, 2" % (sr(S_T[0]), sr(S_CU)))
    g.e("s_add_u32 %s, %s, %d" % (sr(S_T[0]), sr(S_T[0]), WS_YF))
    g.e("v_mov_b32 v12, 0")
    g.e("v_mov_b32 v13, %s" % sr(S_TAG))
    g.e("s_mov_b64 exec, 1")
    g.e("buffer_store_dword v13, v12, %s, %s offen sc1" % (sr(SRD_WS, 4), sr(S_T[0])))
    g.e("s_mov_b64 exec, -1")
    g.lab(skip)


def load_wo(g, rowbase_sgpr):
    g.e("s_lshl_b32 %s, %s, 4" % (sr(S_T[0]), sr(S_WAVE)))
    g.e("s_add_u32 %s, %s, %s" % (sr(S_T[0]), sr(S_T[0]), sr(rowbase_sgpr)))
    g.e("s_mul_i32 %s, %s, 896" % (sr(S_T[0]), sr(S_T[0])))
    g.e("v_lshlrev_b32 v12, 4, %s" % v(V_LANE))
    g.e("s_mov_b32 exec_hi, 0x00ffffff")
    for n in range(16):
        if n % 4 == 0 and n > 0:
            g.e("s_add_u32 %s, %s, 3584" % (sr(S_T[0]), sr(S_T[0])))
        g.e("buffer_load_dwordx4 %s, v12, %s, %s offen offset:%d" % (v(128 + n * 4, 4), sr(SRD_WO, 4), sr(S_T[0]), (n % 4) * 896))
    g.e("s_mov_b32 exec_hi, -1")


def gen():
    g = G()
    g.lines.append("; @launch grid=(256,1,1) block=(512,1,1) lds=%d" % LDS_BYTES)
    g.lines.append('.amdgcn_target "amdgcn-amd-amdhsa--gfx950"')
    g.lines.append(".text")
    g.lines.append(".globl %s" % KN)
    g.lines.append(".p2align 8")
    g.lines.append(".type %s,@function" % KN)
    g.lab(KN)
    g.e("s_cmp_ge_u32 s2, 256")
    g.e("s_cbranch_scc1 L_END")
    g.e("s_load_dwordx16 s[8:23], s[0:1], 0")
    g.e("s_load_dwordx8 s[24:31], s[0:1], 64")
    g.e("s_load_dwordx4 s[32:35], s[0:1], 96")
    g.e("v_and_b32 %s, 63, v0" % v(V_LANE))
    g.e("v_lshrrev_b32 v12, 6, v0")
    g.e("v_and_b32 %s, 15, v0" % v(V_L16))
    g.e("v_bfe_u32 %s, v0, 4, 2" % v(V_G))
    g.e("v_readfirstlane_b32 %s, v12" % sr(S_WAVE))
    g.e("s_and_b32 s96, s2, 7")
    g.e("s_lshr_b32 s97, s2, 3")
    g.e("s_mov_b32 %s, 0x05040100" % sr(S_PLO))
    g.e("s_mov_b32 %s, 0x07060302" % sr(S_PHI))
    g.e("s_mov_b32 %s, 0x3fb8aa3b" % sr(S_L2E))
    g.e("s_mov_b32 %s, 0x00010001" % sr(S_MK))
    g.e("s_mov_b32 %s, 0x00010001" % sr(S_MK + 1))
    g.e("s_cmp_lt_u32 s97, 24")
    g.e("s_waitcnt lgkmcnt(0)")
    def srd(d, a, b, na, nb):
        g.e("s_cselect_b32 %s, %s, %s" % (sr(d), sr(a), sr(b)))
        g.e("s_cselect_b32 %s, %s, %s" % (sr(d + 1), sr(a + 1), sr(b + 1)))
        if na == nb:
            g.e("s_mov_b32 %s, %d" % (sr(d + 2), na))
        else:
            g.e("s_mov_b32 s98, %d" % na)
            g.e("s_cselect_b32 %s, s98, %d" % (sr(d + 2), nb))
        g.e("s_mov_b32 %s, 0x00020000" % sr(d + 3))
    srd(SRD_X, 8, 18, 1792, 1792)
    srd(SRD_WQ, 14, 22, 448 * 8192, 448 * 8192)
    srd(SRD_WO, 16, 28, 4096 * 896, 4096 * 896)
    srd(SRD_K, 10, 20, 1 << 26, 1 << 24)
    srd(SRD_V, 12, 24, 1 << 26, 1 << 23)
    srd(SRD_WUV, 26, 26, 1 << 23, 1 << 23)
    srd(SRD_WS, 34, 34, WS_SIZE, WS_SIZE)
    srd(SRD_OUT, 30, 30, 3584, 3584)
    g.e("v_mov_b32 v12, 0")
    g.e("buffer_load_dword v14, v12, %s, 0 offen sc1" % sr(SRD_WS, 4))
    g.e("s_cbranch_scc0 L_ROLE_B")

    g.c("================ ROLE A ================")
    g.e("s_cmp_ge_u32 s97, 12")
    g.e("s_cselect_b32 s98, 1, 0")
    g.e("s_mul_i32 s99, s98, 12")
    g.e("s_sub_u32 %s, s97, s99" % sr(S_J))
    g.e("s_lshl_b32 %s, s96, 1" % sr(S_H))
    g.e("s_add_u32 %s, %s, s98" % (sr(S_H), sr(S_H)))
    g.e("s_mul_i32 %s, %s, 12" % (sr(S_CU), sr(S_H)))
    g.e("s_add_u32 %s, %s, %s" % (sr(S_CU), sr(S_CU), sr(S_J)))
    g.e("s_and_b32 %s, %s, 1" % (sr(S_DH), sr(S_J)))
    g.e("v_lshlrev_b32 v4, 11, %s" % v(V_G))
    g.e("v_lshl_add_u32 v4, %s, 4, v4" % v(V_L16))
    g.e("v_lshlrev_b32 v5, 12, %s" % v(V_G))
    g.e("v_lshl_add_u32 v5, %s, 4, v5" % v(V_L16))
    g.e("v_lshlrev_b32 v6, 5, %s" % v(V_G))
    g.e("v_lshrrev_b32 v7, 2, %s" % v(V_L16))
    g.e("v_lshlrev_b32 v7, 4, v7")
    g.e("v_lshl_add_u32 v7, %s, 2, v7" % v(V_G))
    g.e("v_and_b32 v12, 3, %s" % v(V_L16))
    g.e("v_add_u32 v7, v7, v12")
    g.e("v_lshlrev_b32 v7, 2, v7")
    g.e("v_lshlrev_b32 v11, 4, %s" % v(V_LANE))
    g.e("s_lshl_b32 s98, %s, 3" % sr(S_J))
    g.e("s_add_u32 s98, s98, %s" % sr(S_WAVE))
    g.e("s_lshr_b32 s99, %s, 1" % sr(S_J))
    g.e("s_lshl_b32 s99, s99, 3")
    g.e("s_add_u32 s99, s99, %s" % sr(S_WAVE))
    def urange(wreg, rot, mod, sU, sN):
        g.e("s_add_u32 s100, %s, %d" % (sr(wreg), rot))
        g.e("s_sub_u32 s101, s100, %d" % mod)
        g.e("s_cmp_ge_u32 s100, %d" % mod)
        g.e("s_cselect_b32 s100, s101, s100")
        g.e("s_mul_i32 %s, s100, %d" % (sr(sU), 8 * 43691))
        g.e("s_lshr_b32 %s, %s, 17" % (sr(sU), sr(sU)))
        g.e("s_add_u32 s100, s100, 1")
        g.e("s_mul_i32 s100, s100, %d" % (8 * 43691))
        g.e("s_lshr_b32 s100, s100, 17")
        g.e("s_sub_u32 %s, s100, %s" % (sr(sN), sr(sU)))
    for p in range(2):
        urange(98, 32 * p, 96, S_KU[p], S_KN[p])
        g.e("s_add_u32 s100, %s, %d" % (sr(S_H), 16 * p))
        g.e("s_lshl_b32 s100, s100, 21")
        g.e("s_lshl_b32 s101, %s, 13" % sr(S_KU[p]))
        g.e("s_add_u32 %s, s100, s101" % sr(S_KB[p]))
    for p in range(2):
        urange(99, 16 * (p + 1), 48, S_SB[p], S_VN[p])
        g.e("s_add_u32 s100, %s, %d" % (sr(S_H), 16 * p))
        g.e("s_lshl_b32 s101, s100, 21")
        g.e("s_lshl_b32 %s, %s, 14" % (sr(S_VB[p]), sr(S_SB[p])))
        g.e("s_add_u32 %s, %s, s101" % (sr(S_VB[p]), sr(S_VB[p])))
        g.e("s_lshl_b32 s101, %s, 8" % sr(S_DH))
        g.e("s_add_u32 %s, %s, s101" % (sr(S_VB[p]), sr(S_VB[p])))
        g.e("s_lshl_b32 s100, s100, 14")
        g.e("s_lshl_b32 %s, %s, 7" % (sr(S_SB[p]), sr(S_SB[p])))
        g.e("s_add_u32 %s, %s, s100" % (sr(S_SB[p]), sr(S_SB[p])))
        g.e("s_add_u32 %s, %s, %d" % (sr(S_SB[p]), sr(S_SB[p]), WS_SC))

    R = 48
    def issue(kind, n, base):
        if kind == "K":
            g.vm("nxt%d" % n, "buffer_load_dwordx4 %s, v4, %s, %s offen offset:%d nt" % (v(R + 4 * n, 4), sr(SRD_K, 4), sr(base), n * 256))
        else:
            g.vm("nxt%d" % n, "buffer_load_dwordx4 %s, v5, %s, %s offen offset:%d nt" % (v(R + 4 * n, 4), sr(SRD_V, 4), sr(base), n * 512))
    def issue_scores(tag="nxs"):
        g.vm(tag, "buffer_load_dwordx4 %s, v6, %s, %s offen sc1" % (v(80, 4), sr(SRD_WS, 4), sr(S_SCN)))
        g.vm(tag, "buffer_load_dwordx4 %s, v6, %s, %s offen offset:16 sc1" % (v(84, 4), sr(SRD_WS, 4), sr(S_SCN)))

    def hookA():
        for n in range(8):
            issue("K", n, S_KB[0])
    q_stage(g, 28, 128, hookA)
    g.rename("nxt", "cur")
    g.e("v_readfirstlane_b32 %s, v14" % sr(S_TAG))
    g.e("s_add_u32 %s, %s, 1" % (sr(S_TAG), sr(S_TAG)))
    for i in range(16):
        g.e("v_mov_b32 %s, 0" % v(32 + i))

    def stat_base(b, dst):
        g.e("s_add_u32 %s, %s, %d" % (sr(dst), sr(S_H), 16 * b))
        g.e("s_mul_i32 %s, %s, 1536" % (sr(dst), sr(dst)))
        g.e("s_add_u32 %s, %s, %d" % (sr(dst), sr(dst), WS_ST))

    def issue_stats(b, track=True):
        stat_base(b, S_T[7])
        g.e("v_mov_b32 v120, 0xff800000")
        g.e("v_mov_b32 v121, %s" % sr(S_TAG))
        g.e("v_mov_b32 v122, 0")
        g.e("v_mov_b32 v123, %s" % sr(S_TAG))
        g.vm("st", "buffer_load_dwordx4 %s, v11, %s, %s offen sc1" % (v(116, 4), sr(SRD_WS, 4), sr(S_T[7])))
        g.e("s_mov_b32 exec_hi, 0")
        g.vm("st", "buffer_load_dwordx4 %s, v11, %s, %s offen offset:1024 sc1" % (v(120, 4), sr(SRD_WS, 4), sr(S_T[7])))
        g.e("s_mov_b32 exec_hi, -1")

    def finish_stats(b):
        lp = g.newlab("STLOOP"); ok = g.newlab("STOK")
        spin_head(g)
        g.lab(lp)
        g.e("v_cmp_eq_u32 vcc, %s, v117" % sr(S_TAG))
        g.e("v_cmp_eq_u32 %s, %s, v119" % (sr(S_M2, 2), sr(S_TAG)))
        g.e("s_and_b64 vcc, vcc, %s" % sr(S_M2, 2))
        g.e("v_cmp_eq_u32 %s, %s, v121" % (sr(S_M2, 2), sr(S_TAG)))
        g.e("s_and_b64 vcc, vcc, %s" % sr(S_M2, 2))
        g.e("v_cmp_eq_u32 %s, %s, v123" % (sr(S_M2, 2), sr(S_TAG)))
        g.e("s_and_b64 vcc, vcc, %s" % sr(S_M2, 2))
        g.e("s_cmp_eq_u64 vcc, -1")
        g.e("s_cbranch_scc1 %s" % ok)
        g.e("s_add_u32 %s, %s, 1" % (sr(S_SPIN), sr(S_SPIN)))
        g.e("s_cmp_gt_u32 %s, %d" % (sr(S_SPIN), SPIN_MAX))
        g.e("s_cbranch_scc1 %s" % ok)
        g.e("s_sleep 2")
        g.e("buffer_load_dwordx4 %s, v11, %s, %s offen sc1" % (v(116, 4), sr(SRD_WS, 4), sr(S_T[7])))
        g.e("s_mov_b32 exec_hi, 0")
        g.e("buffer_load_dwordx4 %s, v11, %s, %s offen offset:1024 sc1" % (v(120, 4), sr(SRD_WS, 4), sr(S_T[7])))
        g.e("s_mov_b32 exec_hi, -1")
        g.e("s_waitcnt vmcnt(0)")
        g.e("s_branch %s" % lp)
        g.lab(ok)
        g.e("v_max_f32 v12, v116, v120")
        dpp_allreduce16(g, "v_max_f32", [12])
        cross_rows(g, "v_max_f32", 12, 13)
        g.e("v_sub_f32 v13, v116, v12")
        g.e("v_sub_f32 v14, v120, v12")
        g.e("v_mul_f32 v13, %s, v13" % sr(S_L2E))
        g.e("v_mul_f32 v14, %s, v14" % sr(S_L2E))
        g.e("v_exp_f32 v13, v13")
        g.e("v_exp_f32 v14, v14")
        g.nop(0)
        g.e("v_mul_f32 v13, v13, v118")
        g.e("v_fmac_f32 v13, v14, v122")
        dpp_allreduce16(g, "v_add_f32", [13])
        cross_rows(g, "v_add_f32", 13, 14)
        g.e("v_rcp_f32 v10, v13")
        g.e("v_mul_f32 v9, %s, v12" % sr(S_L2E))
        g.e("v_sub_f32 v9, 0, v9")

    def k_body(b, nxt, first=False, last=False):
        g.c("K body b=%d nxt=%s first=%s last=%s" % (b, nxt, first, last))
        if first:
            g.e("v_mov_b32 v8, 0xff800000")
            g.e("s_mov_b32 %s, 0" % sr(S_T4))
            g.e("s_mov_b32 %s, %s" % (sr(S_CUR), sr(S_KB[b])))
        if last:
            if nxt == "K":
                g.e("s_mov_b32 %s, %s" % (sr(S_NXT), sr(S_KB[b + 1])))
            else:
                g.e("s_mov_b32 %s, %s" % (sr(S_NXT), sr(S_VB[0])))
                issue_stats(0)
        else:
            g.e("s_add_u32 %s, %s, 8192" % (sr(S_NXT), sr(S_CUR)))
        Q = 16 + b * 8
        for i in range(4):
            g.wait("cur%d" % (2 * i + 1))
            ra, rb_ = R + 8 * i, R + 8 * i + 4
            g.e("v_dot2_f32_bf16 %s, %s, %s, 0" % (v(108 + i), v(ra), v(Q)))
            g.e("v_dot2_f32_bf16 %s, %s, %s, 0" % (v(112 + i), v(rb_), v(Q + 4)))
            for j in range(1, 4):
                g.e("v_dot2_f32_bf16 %s, %s, %s, %s" % (v(108 + i), v(ra + j), v(Q + j), v(108 + i)))
                g.e("v_dot2_f32_bf16 %s, %s, %s, %s" % (v(112 + i), v(rb_ + j), v(Q + 4 + j), v(112 + i)))
            issue(nxt, 2 * i, S_NXT)
            issue(nxt, 2 * i + 1, S_NXT)
        g.nop(2)
        for i in range(4):
            g.e("v_add_f32 %s, %s, %s" % (v(108 + i), v(108 + i), v(112 + i)))
        dpp_allreduce16(g, "v_add_f32", [108, 109, 110, 111])
        for i in range(4):
            g.e("s_lshl_b64 %s, %s, %s" % (sr(S_M2, 2), sr(S_MK, 2), sr(S_T4)))
            g.e("s_add_u32 %s, %s, 1" % (sr(S_T4), sr(S_T4)))
            g.e("v_cndmask_b32 v8, v8, %s, %s" % (v(108 + i), sr(S_M2, 2)))
        g.e("s_mov_b32 %s, %s" % (sr(S_CUR), sr(S_NXT)))
        if last:
            g.e("v_cvt_pk_bf16_f32 v8, v8, v8")
            g.e("v_lshlrev_b32 v8, 16, v8")
            g.e("v_mul_f32 v8, 0x3d800000, v8")
            g.e("s_add_u32 %s, %s, %d" % (sr(S_T[0]), sr(S_H), 16 * b))
            g.e("s_lshl_b32 %s, %s, 14" % (sr(S_T[0]), sr(S_T[0])))
            g.e("s_lshl_b32 %s, %s, 6" % (sr(S_T[1]), sr(S_KU[b])))
            g.e("s_add_u32 %s, %s, %s" % (sr(S_T[0]), sr(S_T[0]), sr(S_T[1])))
            g.e("s_add_u32 %s, %s, %d" % (sr(S_T[0]), sr(S_T[0]), WS_SC))
            g.e("s_cmp_eq_u32 %s, 3" % sr(S_KN[b]))
            g.e("s_mov_b32 %s, 0x00ff00ff" % sr(S_T[1]))
            g.e("s_cselect_b32 %s, 0x0fff0fff, %s" % (sr(S_T[1]), sr(S_T[1])))
            g.e("s_mov_b32 exec_lo, %s" % sr(S_T[1]))
            g.e("s_mov_b32 exec_hi, %s" % sr(S_T[1]))
            g.vm("scst", "buffer_store_dword v8, v7, %s, %s offen sc1" % (sr(SRD_WS, 4), sr(S_T[0])))
            g.e("s_mov_b64 exec, -1")
            g.e("v_mov_b32 v124, v8")
            dpp_allreduce16(g, "v_max_f32", [124])
            cross_rows(g, "v_max_f32", 124, 12)
            g.e("v_sub_f32 v126, v8, v124")
            g.e("v_mul_f32 v126, %s, v126" % sr(S_L2E))
            g.e("v_exp_f32 v126, v126")
            g.nop(0)
            dpp_allreduce16(g, "v_add_f32", [126])
            cross_rows(g, "v_add_f32", 126, 12)
            g.e("v_mov_b32 v125, %s" % sr(S_TAG))
            g.e("v_mov_b32 v127, %s" % sr(S_TAG))
            if nxt == "V":
                g.wait("st")
                finish_stats(0)
                g.e("s_mov_b32 %s, %s" % (sr(S_SCN), sr(S_SB[0])))
                issue_scores("nxs")
        g.rename("nxt", "cur")
        g.rename("nxs", "cus")

    def publish_record(b):
        g.wait("scst")
        stat_base(b, S_T[0])
        g.e("s_lshl_b32 %s, %s, 3" % (sr(S_T[1]), sr(S_J)))
        g.e("s_add_u32 %s, %s, %s" % (sr(S_T[1]), sr(S_T[1]), sr(S_WAVE)))
        g.e("s_lshl_b32 %s, %s, 4" % (sr(S_T[1]), sr(S_T[1])))
        g.e("s_add_u32 %s, %s, %s" % (sr(S_T[0]), sr(S_T[0]), sr(S_T[1])))
        g.e("v_mov_b32 v12, 0")
        g.e("s_mov_b64 exec, 1")
        g.e("buffer_store_dwordx4 %s, v12, %s, %s offen sc1" % (v(124, 4), sr(SRD_WS, 4), sr(S_T[0])))
        g.e("s_mov_b64 exec, -1")

    def v_body(b, nxt, first=False, last=False):
        g.c("V body b=%d nxt=%s first=%s last=%s" % (b, nxt, first, last))
        if first:
            g.e("s_mov_b32 %s, %s" % (sr(S_CUR), sr(S_VB[b])))
        if last:
            if nxt == "V":
                g.e("s_mov_b32 %s, %s" % (sr(S_NXT), sr(S_VB[b + 1])))
        else:
            g.e("s_add_u32 %s, %s, 16384" % (sr(S_NXT), sr(S_CUR)))
            g.e("s_add_u32 %s, %s, 128" % (sr(S_SCN), sr(S_SCN)))
        g.wait("cus")
        for i in range(8):
            g.e("v_fma_f32 %s, %s, %s, v9" % (v(80 + i), v(80 + i), sr(S_L2E)))
        for i in range(8):
            g.e("v_exp_f32 %s, %s" % (v(80 + i), v(80 + i)))
        for i in range(8):
            g.e("v_mul_f32 %s, %s, v10" % (v(80 + i), v(80 + i)))
        for k in range(4):
            g.e("v_cvt_pk_bf16_f32 %s, %s, %s" % (v(96 + k), v(80 + 2 * k), v(81 + 2 * k)))
        if not last:
            issue_scores("nxs")
        elif nxt == "V":
            issue_stats(b + 1)
        A = 32 + b * 8
        for k in range(4):
            g.wait("cur%d" % (2 * k + 1))
            r0, r1 = R + 8 * k, R + 8 * k + 4
            for j in range(4):
                g.e("v_perm_b32 %s, %s, %s, %s" % (v(100 + 2 * j), v(r1 + j), v(r0 + j), sr(S_PLO)))
                g.e("v_perm_b32 %s, %s, %s, %s" % (v(101 + 2 * j), v(r1 + j), v(r0 + j), sr(S_PHI)))
            if nxt:
                issue("V", 2 * k, S_NXT)
                issue("V", 2 * k + 1, S_NXT)
            for e_ in range(8):
                g.e("v_dot2_f32_bf16 %s, %s, %s, %s" % (v(A + e_), v(100 + e_), v(96 + k), v(A + e_)))
        g.e("s_mov_b32 %s, %s" % (sr(S_CUR), sr(S_NXT)))
        if last and nxt == "V":
            g.wait("st")
            finish_stats(b + 1)
            g.e("s_mov_b32 %s, %s" % (sr(S_SCN), sr(S_SB[b + 1])))
            issue_scores("nxs")
        g.rename("nxt", "cur")
        g.rename("nxs", "cus")

    def phase(kind, b, nxt_kind, after_first=None):
        body = k_body if kind == "K" else v_body
        nreg = S_KN[b] if kind == "K" else S_VN[b]
        body(b, kind, first=True)
        if after_first:
            after_first()
        skip = g.newlab("MID")
        g.e("s_cmp_lg_u32 %s, 3" % sr(nreg))
        g.e("s_cbranch_scc1 %s" % skip)
        q0 = list(g.q)
        body(b, kind)
        assert g.q == q0, (g.q, q0)
        g.lab(skip)
        body(b, nxt_kind, last=True)

    phase("K", 0, "K")
    phase("K", 1, "V", after_first=lambda: publish_record(0))
    phase("V", 0, "V", after_first=lambda: publish_record(1))
    def wo_hook():
        g.e("s_lshl_b32 %s, %s, 8" % (sr(S_T[1]), sr(S_H)))
        g.e("s_lshl_b32 %s, %s, 7" % (sr(S_T[2]), sr(S_DH)))
        g.e("s_add_u32 %s, %s, %s" % (sr(S_T[1]), sr(S_T[1]), sr(S_T[2])))
        load_wo(g, S_T[1])
    phase("V", 1, None, after_first=wo_hook)
    g.waitall()
    out_stage(g)
    g.nop(3)
    transpose_reduce16(g, 32)
    g.e("s_branch L_OUT")

    g.lab("L_ROLE_B")
    g.q = []
    g.c("================ ROLE B ================")
    g.e("s_sub_u32 s98, s97, 24")
    g.e("s_lshr_b32 s99, s98, 2")
    g.e("s_lshl_b32 %s, s96, 1" % sr(S_H))
    g.e("s_add_u32 %s, %s, s99" % (sr(S_H), sr(S_H)))
    g.e("s_and_b32 %s, s98, 3" % sr(S_J))
    g.e("s_lshl_b32 s99, s96, 3")
    g.e("s_add_u32 s99, s99, s98")
    g.e("s_add_u32 %s, s99, 192" % sr(S_CU))
    g.e("s_lshr_b32 %s, s99, 5" % sr(S_BB))
    g.e("s_and_b32 %s, s99, 31" % sr(S_KR))
    g.e("s_and_b32 %s, %s, 1" % (sr(S_DH), sr(S_J)))

    UK = 184
    def hookB():
        g.e("v_lshlrev_b32 v4, 15, %s" % v(V_G))
        g.e("v_lshl_add_u32 v4, %s, 4, v4" % v(V_L16))
        g.e("s_lshl_b32 s98, %s, 8" % sr(S_J))
        g.e("s_lshl_b32 s99, %s, 5" % sr(S_WAVE))
        g.e("s_add_u32 s98, s98, s99")
        g.e("s_lshl_b32 s98, s98, 13")
        g.e("s_lshl_b32 s99, %s, 9" % sr(S_H))
        g.e("s_add_u32 s98, s98, s99")
        for u in range(2):
            for i in range(4):
                for hf in range(2):
                    n = u * 8 + i * 2 + hf
                    g.vm("uk%d" % n, "buffer_load_dwordx4 %s, v4, %s, s98 offen offset:%d nt" % (v(UK + 4 * n, 4), sr(SRD_V, 4), hf * 256))
                g.e("s_add_u32 s98, s98, 8192")
            g.e("s_add_u32 s98, s98, %d" % (12 * 8192))
    q_stage(g, 14, 128, hookB)
    g.e("v_readfirstlane_b32 %s, v14" % sr(S_TAG))
    g.e("s_add_u32 %s, %s, 1" % (sr(S_TAG), sr(S_TAG)))

    for i in range(4):
        g.e("s_lshl_b32 s98, %s, 2" % sr(S_WAVE))
        g.e("s_add_u32 s98, s98, %d" % i)
        g.e("s_and_b32 s98, s98, 15")
        g.e("s_and_b32 s99, s98, 7")
        g.e("s_lshl_b32 s99, s99, 1")
        g.e("s_lshr_b32 s98, s98, 3")
        g.e("s_or_b32 s98, s98, s99")
        g.e("v_xor_b32 %s, s98, %s" % (v(8 + i), v(V_LANE)))
        g.e("v_lshlrev_b32 %s, 4, %s" % (v(8 + i), v(8 + i)))
    S_CKV = S_KB[0]
    g.e("s_lshl_b32 s98, %s, 12" % sr(S_BB))
    g.e("s_lshl_b32 s99, %s, 7" % sr(S_KR))
    g.e("s_add_u32 s98, s98, s99")
    g.e("s_lshl_b32 s99, %s, 2" % sr(S_WAVE))
    g.e("s_add_u32 s98, s98, s99")
    g.e("s_lshl_b32 %s, s98, 11" % sr(S_CKV))
    S_LW = S_KB[1]
    g.e("s_lshl_b32 %s, %s, 13" % (sr(S_LW), sr(S_WAVE)))
    def dma_tile(t):
        buf = L_TILE0 if t % 2 == 0 else L_TILE1
        for i in range(4):
            for hf in range(2):
                g.e("s_add_u32 s98, %s, %d" % (sr(S_LW), buf + i * 2048 + hf * 1024))
                g.e("s_mov_b32 m0, s98")
                g.e("s_add_u32 s99, %s, %d" % (sr(S_CKV), t * 65536 + i * 2048 + hf * 1024))
                g.vm("dma%d" % t, "buffer_load_dwordx4 %s, %s, s99 offen nt lds" % (v(8 + i), sr(SRD_K, 4)))
    dma_tile(0)
    dma_tile(1)

    g.c("---- QABS ----")
    g.e("v_mov_b32 v12, 0")
    g.e("v_mov_b32 v13, 0")
    for u in range(2):
        for i in range(4):
            g.wait("uk%d" % (u * 8 + i * 2 + 1))
            ra = UK + 4 * (u * 8 + i * 2)
            for b in range(2):
                d = 32 + b * 4 + i
                Q = 16 + b * 8
                g.e("v_dot2_f32_bf16 %s, %s, %s, 0" % (v(d), v(ra), v(Q)))
                for j in range(1, 8):
                    g.e("v_dot2_f32_bf16 %s, %s, %s, %s" % (v(d), v(ra + j), v(Q + j), v(d)))
        g.nop(2)
        dpp_allreduce16(g, "v_add_f32", list(range(32, 40)))
        for i in range(4):
            g.e("s_lshl_b64 %s, %s, %d" % (sr(S_M2, 2), sr(S_MK, 2), 4 * u + i))
            g.e("v_cndmask_b32 v12, v12, %s, %s" % (v(32 + i), sr(S_M2, 2)))
            g.e("v_cndmask_b32 v13, v13, %s, %s" % (v(36 + i), sr(S_M2, 2)))
    g.e("v_lshrrev_b32 v14, 2, %s" % v(V_L16))
    g.e("v_lshlrev_b32 v14, 4, v14")
    g.e("v_lshl_add_u32 v14, %s, 2, v14" % v(V_G))
    g.e("v_and_b32 v15, 3, %s" % v(V_L16))
    g.e("v_add_u32 v14, v14, v15")
    g.e("v_lshlrev_b32 v14, 1, v14")
    g.e("s_lshl_b32 s98, %s, 11" % sr(S_H))
    g.e("s_lshl_b32 s99, %s, 9" % sr(S_J))
    g.e("s_add_u32 s98, s98, s99")
    g.e("s_lshl_b32 s99, %s, 6" % sr(S_WAVE))
    g.e("s_add_u32 s98, s98, s99")
    for b in range(2):
        x = 12 + b
        g.e("v_cvt_pk_bf16_f32 v32, %s, %s" % (v(x), v(x)))
        g.e("v_lshlrev_b32 v33, 16, v32")
        g.e("v_sub_f32 v33, %s, v33" % v(x))
        g.e("v_cvt_pk_bf16_f32 v33, v33, v33")
        g.e("s_add_u32 s99, s98, %d" % (WS_QH + b * 32768))
        g.e("s_add_u32 s100, s98, %d" % (WS_QL + b * 32768))
        g.e("s_mov_b32 exec_lo, 0x00ff00ff")
        g.e("s_mov_b32 exec_hi, 0x00ff00ff")
        g.e("buffer_store_short v32, v14, %s, s99 offen sc1" % sr(SRD_WS, 4))
        g.e("buffer_store_short v33, v14, %s, s100 offen sc1" % sr(SRD_WS, 4))
        g.e("s_mov_b64 exec, -1")
        g.nop(1)
    g.waitall()
    g.e("s_barrier")
    def flag_store(base_const, idx_sgpr, sub):
        skip = g.newlab("FLAG")
        g.e("s_cmp_lg_u32 %s, 0" % sr(S_WAVE))
        g.e("s_cbranch_scc1 %s" % skip)
        g.e("s_sub_u32 s98, %s, %d" % (sr(idx_sgpr), sub))
        g.e("s_lshl_b32 s98, s98, 2")
        g.e("s_add_u32 s98, s98, %d" % base_const)
        g.e("v_mov_b32 v12, 0")
        g.e("v_mov_b32 v13, %s" % sr(S_TAG))
        g.e("s_mov_b64 exec, 1")
        g.e("buffer_store_dword v13, v12, %s, s98 offen sc1" % sr(SRD_WS, 4))
        g.e("s_mov_b64 exec, -1")
        g.lab(skip)
    flag_store(WS_QF, S_CU, 192)

    UV = 192
    g.e("v_lshlrev_b32 v4, 17, %s" % v(V_G))
    g.e("v_lshl_add_u32 v4, %s, 4, v4" % v(V_L16))
    g.e("s_lshr_b32 s98, %s, 1" % sr(S_J))
    g.e("s_lshl_b32 s98, s98, 9")
    g.e("s_lshl_b32 s99, %s, 6" % sr(S_WAVE))
    g.e("s_add_u32 s98, s98, s99")
    g.e("s_lshl_b32 s98, s98, 13")
    g.e("s_lshl_b32 s99, %s, 9" % sr(S_H))
    g.e("s_add_u32 s98, s98, s99")
    g.e("s_lshl_b32 s99, %s, 8" % sr(S_DH))
    g.e("s_add_u32 s98, s98, s99")
    for n in range(16):
        g.vm("uv", "buffer_load_dwordx4 %s, v4, %s, s98 offen nt" % (v(UV + 4 * n, 4), sr(SRD_WUV, 4)))
        g.e("s_add_u32 s98, s98, 8192")

    def poll64(base_const):
        lp = g.newlab("POLL"); ok = g.newlab("POLLOK")
        g.e("v_lshlrev_b32 v12, 2, %s" % v(V_LANE))
        g.e("s_mov_b32 s98, %d" % base_const)
        spin_head(g)
        g.lab(lp)
        g.e("buffer_load_dword v13, v12, %s, s98 offen sc1" % sr(SRD_WS, 4))
        g.e("s_waitcnt vmcnt(0)")
        g.e("v_cmp_eq_u32 vcc, %s, v13" % sr(S_TAG))
        g.e("s_cmp_eq_u64 vcc, -1")
        g.e("s_cbranch_scc1 %s" % ok)
        g.e("s_add_u32 %s, %s, 1" % (sr(S_SPIN), sr(S_SPIN)))
        g.e("s_cmp_gt_u32 %s, %d" % (sr(S_SPIN), SPIN_MAX))
        g.e("s_cbranch_scc1 %s" % ok)
        g.e("s_sleep 2")
        g.e("s_branch %s" % lp)
        g.lab(ok)
        g.q = []
    poll64(WS_QF)

    QF = 128
    g.c("---- ATT B ----")
    g.e("v_lshlrev_b32 v12, 11, %s" % v(V_L16))
    g.e("v_lshl_add_u32 v12, %s, 5, v12" % v(V_G))
    g.e("s_and_b32 s98, %s, 3" % sr(S_WAVE))
    g.e("s_lshl_b32 s98, s98, 9")
    g.e("s_lshl_b32 s99, %s, 15" % sr(S_BB))
    g.e("s_add_u32 s98, s98, s99")
    g.e("s_add_u32 s99, s98, %d" % WS_QL)
    g.e("s_add_u32 s98, s98, %d" % WS_QH)
    for ks in range(8):
        off = ((ks & 1) + 8 * (ks >> 1)) * 16
        g.vm("qf", "buffer_load_dwordx4 %s, v12, %s, s98 offen offset:%d sc1" % (v(QF + 8 * ks, 4), sr(SRD_WS, 4), off))
        g.vm("qf", "buffer_load_dwordx4 %s, v12, %s, s99 offen offset:%d sc1" % (v(QF + 8 * ks + 4, 4), sr(SRD_WS, 4), off))
    g.e("v_and_b32 v12, 7, %s" % v(V_L16))
    g.e("v_lshlrev_b32 v12, 1, v12")
    g.e("v_lshrrev_b32 v13, 3, %s" % v(V_L16))
    g.e("v_or_b32 v12, v12, v13")
    g.e("v_lshlrev_b32 v13, 1, %s" % v(V_G))
    g.e("v_xor_b32 v12, v12, v13")
    g.e("s_lshr_b32 s98, %s, 2" % sr(S_WAVE))
    g.e("s_lshl_b32 s98, s98, 15")
    g.e("s_and_b32 s99, %s, 3" % sr(S_WAVE))
    g.e("s_lshl_b32 s99, s99, 9")
    g.e("s_add_u32 s98, s98, s99")
    g.e("v_lshlrev_b32 v13, 11, %s" % v(V_L16))
    g.e("v_add_u32 v13, s98, v13")
    for x, X in enumerate((0, 1, 8, 9)):
        g.e("v_xor_b32 v14, %d, v12" % X)
        g.e("v_lshl_add_u32 %s, v14, 4, v13" % v(4 + x))
    g.e("v_lshrrev_b32 v12, 2, %s" % v(V_L16))
    g.e("v_lshl_add_u32 v12, %s, 2, v12" % v(V_G))
    g.e("v_and_b32 v13, 7, v12")
    g.e("v_lshlrev_b32 v13, 1, v13")
    g.e("v_lshrrev_b32 v14, 3, v12")
    g.e("v_or_b32 v13, v13, v14")
    g.e("v_bfe_u32 v14, %s, 1, 1" % v(V_L16))
    g.e("v_xor_b32 v13, v13, v14")
    g.e("v_lshlrev_b32 v12, 11, v12")
    g.e("v_and_b32 v14, 1, %s" % v(V_L16))
    g.e("v_lshl_add_u32 v12, v14, 3, v12")
    g.e("s_lshl_b32 s98, %s, 8" % sr(S_WAVE))
    g.e("v_add_u32 v12, s98, v12")
    for ct in range(8):
        g.e("v_xor_b32 v14, %d, v13" % (2 * ct))
        g.e("v_lshl_add_u32 %s, v14, 4, v12" % v(16 + ct))
    g.e("v_lshlrev_b32 v29, 4, %s" % v(V_LANE))
    g.e("v_add_u32 v29, %d, v29" % L_SX)
    g.e("s_lshl_b32 s98, %s, 10" % sr(S_WAVE))
    g.e("v_add_u32 v28, s98, v29")
    ACC = 32
    for i in range(32):
        g.e("v_mov_b32 %s, 0" % v(ACC + i))
    g.e("v_mov_b32 v124, 0xff800000")
    g.e("v_mov_b32 v125, 0")
    g.e("s_mov_b32 %s, 0x3db8aa3b" % sr(S_T[0]))
    g.wait("qf")
    for t in range(4):
        boff = 0 if t % 2 == 0 else 65536
        g.c("tile %d" % t)
        if t >= 2:
            g.wait("dma%d" % t)
        g.e("s_waitcnt lgkmcnt(0)")
        g.e("s_barrier")
        if t >= 1 and t + 1 < 4:
            dma_tile(t + 1)
        if t >= 1:
            op = "v_add_u32" if t % 2 == 1 else "v_subrev_u32"
            for r_ in list(range(4, 8)) + list(range(16, 24)):
                g.e("%s %s, 0x10000, %s" % (op, v(r_), v(r_)))
        for i in range(8):
            g.e("v_mov_b32 %s, 0" % v(80 + i))
        for ks in range(8):
            g.e("ds_read_b128 %s, %s offset:%d" % (v(88 + 4 * ks, 4), v(4 + (ks & 3)), (ks >> 2) * 256))
        for ks in range(8):
            g.e("s_waitcnt lgkmcnt(%d)" % (7 - ks))
            g.e("v_mfma_f32_16x16x32_bf16 %s, %s, %s, %s" % (v(80, 4), v(88 + 4 * ks, 4), v(QF + 8 * ks, 4), v(80, 4)))
            g.e("v_mfma_f32_16x16x32_bf16 %s, %s, %s, %s" % (v(84, 4), v(88 + 4 * ks, 4), v(QF + 8 * ks + 4, 4), v(84, 4)))
        g.nop(7)
        g.nop(1)
        for i in range(4):
            g.e("v_add_f32 %s, %s, %s" % (v(80 + i), v(80 + i), v(84 + i)))
        g.e("ds_write_b128 v28, %s" % v(80, 4))
        g.e("s_waitcnt lgkmcnt(0)")
        g.e("s_barrier")
        for x in range(8):
            g.e("ds_read_b128 %s, v29 offset:%d" % (v(88 + 4 * x, 4), x * 1024))
        g.e("s_waitcnt lgkmcnt(0)")
        for st in range(2):
            for i in range(4):
                a = 88 + 16 * st + i
                g.e("v_add_f32 %s, %s, %s" % (v(a), v(a), v(a + 4)))
                g.e("v_add_f32 %s, %s, %s" % (v(a + 8), v(a + 8), v(a + 12)))
                g.e("v_add_f32 %s, %s, %s" % (v(a), v(a), v(a + 8)))
                g.e("v_mul_f32 %s, %s, %s" % (v(80 + 4 * st + i), sr(S_T[0]), v(a)))
        g.e("v_max3_f32 v12, v80, v81, v82")
        g.e("v_max3_f32 v12, v12, v83, v84")
        g.e("v_max3_f32 v12, v12, v85, v86")
        g.e("v_max3_f32 v12, v12, v87, v124")
        cross_rows(g, "v_max_f32", 12, 13)
        g.e("v_sub_f32 v126, v124, v12")
        g.e("v_exp_f32 v126, v126")
        g.e("v_mov_b32 v124, v12")
        for i in range(8):
            g.e("v_sub_f32 %s, %s, v12" % (v(80 + i), v(80 + i)))
        for i in range(8):
            g.e("v_exp_f32 %s, %s" % (v(80 + i), v(80 + i)))
        g.e("v_mul_f32 v125, v125, v126")
        for i in range(8):
            g.e("v_add_f32 v125, v125, %s" % v(80 + i))
        for k in range(4):
            g.e("v_cvt_pk_bf16_f32 %s, %s, %s" % (v(120 + k), v(80 + 2 * k), v(81 + 2 * k)))
        for ct in range(8):
            g.e("ds_read_b64_tr_b16 %s, %s" % (v(88 + 4 * ct, 2), v(16 + ct)))
            g.e("ds_read_b64_tr_b16 %s, %s offset:32768" % (v(90 + 4 * ct, 2), v(16 + ct)))
        for i in range(32):
            g.e("v_mul_f32 %s, %s, v126" % (v(ACC + i), v(ACC + i)))
        for ct in range(8):
            g.e("s_waitcnt lgkmcnt(%d)" % (14 - 2 * ct))
            g.e("v_mfma_f32_16x16x32_bf16 %s, %s, %s, %s" % (v(ACC + 4 * ct, 4), v(88 + 4 * ct, 4), v(120, 4), v(ACC + 4 * ct, 4)))
    g.nop(7)
    g.nop(1)
    g.e("v_lshlrev_b32 v12, 12, %s" % v(V_L16))
    g.e("v_lshl_add_u32 v12, %s, 4, v12" % v(V_G))
    g.e("s_sub_u32 s98, %s, 192" % sr(S_CU))
    g.e("s_lshl_b32 s98, s98, 16")
    g.e("s_lshl_b32 s99, %s, 9" % sr(S_WAVE))
    g.e("s_add_u32 s98, s98, s99")
    g.e("s_add_u32 s98, s98, %d" % WS_PC)
    for ct in range(8):
        g.e("buffer_store_dwordx4 %s, v12, %s, s98 offen offset:%d sc1" % (v(ACC + 4 * ct, 4), sr(SRD_WS, 4), ct * 64))
    cross_rows(g, "v_add_f32", 125, 13)
    skip = g.newlab("PST")
    g.e("s_cmp_lg_u32 %s, 0" % sr(S_WAVE))
    g.e("s_cbranch_scc1 %s" % skip)
    g.e("v_lshlrev_b32 v12, 9, %s" % v(V_L16))
    g.e("s_sub_u32 s98, %s, 192" % sr(S_CU))
    g.e("s_lshl_b32 s98, s98, 3")
    g.e("s_add_u32 s98, s98, %d" % WS_PS)
    g.e("s_mov_b64 exec, 0xffff")
    g.e("buffer_store_dwordx2 %s, v12, %s, s98 offen sc1" % (v(124, 2), sr(SRD_WS, 4)))
    g.e("s_mov_b64 exec, -1")
    g.lab(skip)
    g.waitall()
    g.e("s_barrier")
    flag_store(WS_PF, S_CU, 192)
    g.e("s_lshl_b32 %s, %s, 8" % (sr(S_T[1]), sr(S_H)))
    g.e("s_lshl_b32 %s, %s, 7" % (sr(S_T[2]), sr(S_DH)))
    g.e("s_add_u32 %s, %s, %s" % (sr(S_T[1]), sr(S_T[1]), sr(S_T[2])))
    load_wo(g, S_T[1])

    g.c("---- CTX ----")
    poll64(WS_PF)
    g.e("v_lshlrev_b32 v12, 3, %s" % v(V_LANE))
    g.e("s_lshl_b32 s98, %s, 9" % sr(S_H))
    g.e("s_add_u32 s98, s98, %d" % WS_PS)
    g.e("buffer_load_dwordx2 v[14:15], v12, %s, s98 offen sc1" % sr(SRD_WS, 4))
    g.e("v_lshlrev_b32 v13, 4, %s" % v(V_LANE))
    g.e("s_lshr_b32 s98, %s, 1" % sr(S_WAVE))
    g.e("s_lshl_b32 s98, s98, 20")
    g.e("s_lshl_b32 s99, %s, 12" % sr(S_H))
    g.e("s_add_u32 s98, s98, s99")
    g.e("s_lshr_b32 s99, %s, 1" % sr(S_J))
    g.e("s_lshl_b32 s99, s99, 11")
    g.e("s_add_u32 s98, s98, s99")
    g.e("s_and_b32 s99, %s, 1" % sr(S_WAVE))
    g.e("s_lshl_b32 s99, s99, 10")
    g.e("s_add_u32 s98, s98, s99")
    g.e("s_add_u32 s98, s98, %d" % WS_PC)
    for i in range(16):
        g.e("buffer_load_dwordx4 %s, v13, %s, s98 offen sc1" % (v(64 + 4 * i, 4), sr(SRD_WS, 4)))
        g.e("s_add_u32 s98, s98, 65536")
    g.e("s_waitcnt vmcnt(16)")
    g.e("v_mov_b32 v12, v14")
    dpp_allreduce16(g, "v_max_f32", [12])
    cross_rows(g, "v_max_f32", 12, 13, both=False)
    g.e("v_sub_f32 v12, v14, v12")
    g.e("v_exp_f32 v12, v12")
    g.nop(0)
    g.e("v_mul_f32 v13, v12, v15")
    dpp_allreduce16(g, "v_add_f32", [13])
    cross_rows(g, "v_add_f32", 13, 14, both=False)
    g.e("v_rcp_f32 v13, v13")
    g.nop(0)
    g.e("v_mul_f32 v12, v12, v13")
    g.e("s_lshr_b32 s98, %s, 1" % sr(S_WAVE))
    g.e("s_lshl_b32 s98, s98, 4")
    g.nop(1)
    for i in range(16):
        g.e("v_readlane_b32 %s, v12, s98" % sr(S_O + i))
        g.e("s_add_u32 s98, s98, 1")
    g.e("s_waitcnt vmcnt(0)")
    for j in range(4):
        g.e("v_mul_f32 %s, %s, %s" % (v(32 + j), sr(S_O), v(64 + j)))
    for i in range(1, 16):
        for j in range(4):
            g.e("v_fmac_f32 %s, %s, %s" % (v(32 + j), sr(S_O + i), v(64 + 4 * i + j)))
    g.e("s_lshr_b32 s98, %s, 1" % sr(S_WAVE))
    g.e("s_and_b32 s98, s98, 1")
    g.e("s_lshl_b32 s98, s98, 12")
    g.e("s_lshr_b32 s99, %s, 2" % sr(S_WAVE))
    g.e("s_lshl_b32 s99, s99, 11")
    g.e("s_add_u32 s98, s98, s99")
    g.e("s_and_b32 s99, %s, 1" % sr(S_WAVE))
    g.e("s_lshl_b32 s99, s99, 10")
    g.e("s_add_u32 s98, s98, s99")
    g.e("s_add_u32 s98, s98, %d" % L_CX)
    g.e("v_lshlrev_b32 v13, 4, %s" % v(V_LANE))
    g.e("v_add_u32 v13, s98, v13")
    g.e("ds_write_b128 v13, %s" % v(32, 4))
    g.e("s_waitcnt lgkmcnt(0)")
    g.e("s_barrier")
    g.e("v_lshlrev_b32 v12, 3, v0")
    g.e("v_add_u32 v12, %d, v12" % L_CX)
    g.e("ds_read_b64 v[32:33], v12")
    g.e("ds_read_b64 v[34:35], v12 offset:4096")
    g.e("s_waitcnt lgkmcnt(0)")
    g.e("v_add_f32 v32, v32, v34")
    g.e("v_add_f32 v33, v33, v35")
    g.e("v_cvt_pk_bf16_f32 v32, v32, v33")
    g.e("v_lshlrev_b32 v12, 2, v0")
    g.e("v_add_u32 v12, %d, v12" % L_CB)
    g.e("ds_write_b32 v12, v32")
    g.e("s_waitcnt lgkmcnt(0)")
    g.e("s_barrier")
    g.e("v_lshlrev_b32 v12, 5, %s" % v(V_G))
    g.e("s_lshl_b32 s98, %s, 7" % sr(S_WAVE))
    g.e("s_add_u32 s98, s98, %d" % L_CB)
    g.e("v_add_u32 v12, s98, v12")
    for b in range(2):
        g.e("ds_read_b128 %s, v12 offset:%d" % (v(64 + 8 * b, 4), b * 1024))
        g.e("ds_read_b128 %s, v12 offset:%d" % (v(68 + 8 * b, 4), b * 1024 + 16))
    for i in range(16):
        g.e("v_mov_b32 %s, 0" % v(32 + i))
    g.e("s_waitcnt lgkmcnt(0)")
    for k in range(8):
        r0, r1 = UV + 8 * k, UV + 8 * k + 4
        for j in range(4):
            g.e("v_perm_b32 %s, %s, %s, %s" % (v(100 + 2 * j), v(r1 + j), v(r0 + j), sr(S_PLO)))
            g.e("v_perm_b32 %s, %s, %s, %s" % (v(101 + 2 * j), v(r1 + j), v(r0 + j), sr(S_PHI)))
        for b in range(2):
            for e_ in range(8):
                g.e("v_dot2_f32_bf16 %s, %s, %s, %s" % (v(32 + 8 * b + e_), v(100 + e_), v(64 + 8 * b + k), v(32 + 8 * b + e_)))
    out_stage(g)
    g.nop(3)
    transpose_reduce16(g, 32)

    g.lab("L_OUT")
    g.q = []
    g.e("v_lshrrev_b32 v12, 1, %s" % v(V_G))
    g.e("v_lshlrev_b32 v12, 9, v12")
    g.e("v_and_b32 v13, 1, %s" % v(V_G))
    g.e("v_lshl_add_u32 v12, v13, 4, v12")
    g.e("v_lshl_add_u32 v12, %s, 5, v12" % v(V_L16))
    g.e("s_lshl_b32 %s, %s, 10" % (sr(S_T[0]), sr(S_WAVE)))
    g.e("s_add_u32 %s, %s, %d" % (sr(S_T[0]), sr(S_T[0]), L_OX))
    g.e("v_add_u32 v12, %s, v12" % sr(S_T[0]))
    g.e("ds_write_b128 v12, %s" % v(32, 4))
    g.e("s_waitcnt lgkmcnt(0)")
    g.e("s_barrier")
    out_stage2(g)
    g.e("s_cmp_lt_u32 %s, 192" % sr(S_CU))
    g.e("s_cbranch_scc1 L_END")
    g.e("s_cmp_ge_u32 %s, %d" % (sr(S_CU), 192 + 56))
    g.e("s_cbranch_scc1 L_END")

    g.c("---- FINAL ----")
    lp = g.newlab("FPOLL"); ok = g.newlab("FPOLLOK")
    g.e("v_lshlrev_b32 v12, 4, %s" % v(V_LANE))
    g.e("s_mov_b32 s98, %d" % WS_YF)
    spin_head(g)
    g.lab(lp)
    g.e("buffer_load_dwordx4 v[16:19], v12, %s, s98 offen sc1" % sr(SRD_WS, 4))
    g.e("s_waitcnt vmcnt(0)")
    g.e("v_cmp_eq_u32 vcc, %s, v16" % sr(S_TAG))
    for i in range(1, 4):
        g.e("v_cmp_eq_u32 %s, %s, %s" % (sr(S_M2, 2), sr(S_TAG), v(16 + i)))
        g.e("s_and_b64 vcc, vcc, %s" % sr(S_M2, 2))
    g.e("s_cmp_eq_u64 vcc, -1")
    g.e("s_cbranch_scc1 %s" % ok)
    g.e("s_add_u32 %s, %s, 1" % (sr(S_SPIN), sr(S_SPIN)))
    g.e("s_cmp_gt_u32 %s, %d" % (sr(S_SPIN), SPIN_MAX))
    g.e("s_cbranch_scc1 %s" % ok)
    g.e("s_sleep 1")
    g.e("s_branch %s" % lp)
    g.lab(ok)
    g.e("s_sub_u32 s98, %s, 192" % sr(S_CU))
    g.e("s_cmp_ge_u32 s98, 28")
    g.e("s_cselect_b32 s99, 1, 0")
    g.e("s_mul_i32 s100, s99, 28")
    g.e("s_sub_u32 s98, s98, s100")
    g.e("s_mul_i32 s100, s99, 1792")
    g.e("s_lshl_b32 s101, s98, 6")
    g.e("s_add_u32 s100, s100, s101")
    g.e("s_add_u32 s100, s100, %d" % WS_Y)
    g.e("v_lshrrev_b32 v12, 1, v0")
    g.e("s_movk_i32 s101, 3584")
    g.e("v_mul_lo_u32 v12, v12, s101")
    g.e("v_and_b32 v13, 1, v0")
    g.e("v_lshl_add_u32 v12, v13, 5, v12")
    g.e("buffer_load_dwordx4 v[32:35], v12, %s, s100 offen sc1" % sr(SRD_WS, 4))
    g.e("buffer_load_dwordx4 v[36:39], v12, %s, s100 offen offset:16 sc1" % sr(SRD_WS, 4))
    g.e("s_waitcnt vmcnt(0)")
    for st in (8, 4, 2):
        for r_ in range(32, 40):
            g.e("v_add_f32_dpp %s, %s, %s row_ror:%d row_mask:0xf bank_mask:0xf" % (v(r_), v(r_), v(r_), st))
    for r_ in range(32, 40):
        cross_rows(g, "v_add_f32", r_, 13)
    g.e("v_lshlrev_b32 v12, 5, %s" % v(V_LANE))
    g.e("s_lshl_b32 s101, %s, 6" % sr(S_WAVE))
    g.e("s_add_u32 s101, s101, %d" % L_FX)
    g.e("v_add_u32 v12, s101, v12")
    g.e("s_mov_b64 exec, 3")
    g.e("ds_write_b128 v12, v[32:35]")
    g.e("ds_write_b128 v12, v[36:39] offset:16")
    g.e("s_mov_b64 exec, -1")
    g.e("s_waitcnt lgkmcnt(0)")
    g.e("s_barrier")
    g.e("s_cmp_lg_u32 %s, 0" % sr(S_WAVE))
    g.e("s_cbranch_scc1 L_END")
    g.e("v_lshlrev_b32 v12, 2, %s" % v(V_L16))
    g.e("v_add_u32 v12, %d, v12" % L_FX)
    for wv in range(8):
        g.e("ds_read_b32 %s, v12 offset:%d" % (v(32 + wv), wv * 64))
    g.e("s_waitcnt lgkmcnt(0)")
    for wv in range(1, 6):
        g.e("v_add_f32 v32, v32, %s" % v(32 + wv))
    g.e("v_add_f32 v38, v38, v39")
    g.e("v_cmp_eq_u32 vcc, 1, %s" % v(V_G))
    g.nop(1)
    g.e("v_cndmask_b32 v32, v32, v38, vcc")
    g.e("v_cvt_pk_bf16_f32 v32, v32, v32")
    g.e("s_movk_i32 s101, 896")
    g.e("v_mul_lo_u32 v12, %s, s101" % v(V_G))
    g.e("v_lshl_add_u32 v12, %s, 1, v12" % v(V_L16))
    g.e("s_mul_i32 s100, s99, 1792")
    g.e("s_lshl_b32 s101, s98, 5")
    g.e("s_add_u32 s100, s100, s101")
    g.e("s_mov_b32 exec_lo, -1")
    g.e("s_mov_b32 exec_hi, 0")
    g.e("buffer_store_short v32, v12, %s, s100 offen" % sr(SRD_OUT, 4))
    g.e("s_mov_b64 exec, -1")
    g.e("s_cmp_lg_u32 %s, 192" % sr(S_CU))
    g.e("s_cbranch_scc1 L_END")
    g.e("v_mov_b32 v12, 0")
    g.e("v_mov_b32 v13, %s" % sr(S_TAG))
    g.e("s_mov_b64 exec, 1")
    g.e("buffer_store_dword v13, v12, %s, 0 offen sc1" % sr(SRD_WS, 4))
    g.lab("L_END")
    g.e("s_endpgm")
    g.lines += [
        '.section .rodata,"a"',
        ".p2align 6",
        ".amdhsa_kernel %s" % KN,
        "  .amdhsa_next_free_vgpr 256",
        "  .amdhsa_next_free_sgpr 102",
        "  .amdhsa_accum_offset 256",
        "  .amdhsa_group_segment_fixed_size 0",
        "  .amdhsa_kernarg_size 112",
        "  .amdhsa_user_sgpr_count 2",
        "  .amdhsa_user_sgpr_kernarg_segment_ptr 1",
        "  .amdhsa_system_sgpr_workgroup_id_x 1",
        ".end_amdhsa_kernel",
    ]
    return "\n".join(g.lines) + "\n"

if __name__ == "__main__":
    out = sys.argv[1] if len(sys.argv) > 1 else "cdna_kernels/%s.s" % NAME
    open(out, "w").write(gen())
    print("wrote", out)
```

```python
import sys

NAME = "concat_heads__mha_block_cached__compressed_kv_cla__decode"
KN = NAME + "_kernel"

def opt(name, default):
    for a in sys.argv:
        if a.startswith("--%s=" % name):
            return int(a.split("=")[1])
    return default

WS_NONCE = 0
WS_AP = 0x600000
WS_QH = 0xA0000
WS_QL = 0xB0000
WS_QF = 0xC0000
WS_PF = 0xC1000
WS_YF = 0xC2000
WS_AF = 0xC3000
WS_PS = 0xC4000
WS_Y = 0xD0000
WS_QP = 0x10000
WS_QPF = 0xC5000
WS_PC = 0x200000
WS_SIZE = 0x10000000
WS_STAMP = 0x800000

L_TILE0 = 0
L_TILE1 = 65536
L_SX = 131072
L_QX = 139264
L_QB = 147456
L_CNT = 149504
LDS_BYTES = 149504 + 1024
L_AO = 0
L_AM = 8192
L_OX = 0
L_OB = 8192
L_OA = 8704
L_CX = 16384
L_CB = 12288
L_FX = 28672
L_YX = 32768

SPIN_MAX = 400000
STAMPS = "--stamps" in sys.argv
D = opt("D", 4)
PRE = opt("PRE", 4)

class G:
    def __init__(s):
        s.lines = []
        s.q = []
        s.uid = 0
    def e(s, t):
        s.lines.append("    " + t)
    def c(s, t):
        s.lines.append("    ; " + t)
    def lab(s, n):
        s.lines.append(n + ":")
    def newlab(s, p="L"):
        s.uid += 1
        return "%s_%d" % (p, s.uid)
    def vm(s, tag, t):
        s.e(t)
        s.q.append(tag)
    def wait(s, tag):
        if tag not in s.q:
            return
        idx = max(i for i, x in enumerate(s.q) if x == tag)
        n = len(s.q) - 1 - idx
        s.e("s_waitcnt vmcnt(%d)" % min(n, 63))
        s.q = s.q[idx + 1:]
    def waitall(s):
        s.e("s_waitcnt vmcnt(0)")
        s.q = []
    def nop(s, n):
        s.e("s_nop %d" % n)

def v(i, n=1):
    return "v%d" % i if n == 1 else "v[%d:%d]" % (i, i + n - 1)
def sr(i, n=1):
    return "s%d" % i if n == 1 else "s[%d:%d]" % (i, i + n - 1)

S_WAVE, S_TAG, S_H, S_J, S_CU = 3, 4, 5, 6, 7
S_T = [8, 9, 10, 11, 12, 13, 14, 15]
S_ROLE = 16
S_CUR, S_NXT, S_UEND, S_SLAB, S_FIRST, S_VALID, S_NU = 17, 18, 19, 20, 21, 22, 23
S_BB, S_KR, S_DH, S_CKV, S_LW, S_SC = 24, 25, 26, 27, 28, 29
S_MAT, S_JMAT, S_YI = 30, 31, 32
S_QN, S_QU, S_QV = 33, 34, 35
SRD_X, SRD_WQ, SRD_WO, SRD_K, SRD_V, SRD_WUV, SRD_WS, SRD_OUT, SRD_WOA = 36, 40, 44, 48, 52, 56, 60, 64, 68
S_PLO, S_PHI, S_L2E, S_SPIN = 72, 73, 74, 75
S_MK, S_M2, S_EX = 76, 78, 80
S_O = 82
V_LANE, V_L16, V_G = 1, 2, 3
RING = 192


def dpp_allreduce16(g, op, regs):
    for st in (8, 4, 2, 1):
        if len(regs) < 3:
            g.nop(1)
        for r in regs:
            g.e("%s_dpp %s, %s, %s row_ror:%d row_mask:0xf bank_mask:0xf" % (op, v(r), v(r), v(r), st))

def cross_rows(g, op, r, t, both=True):
    g.e("v_mov_b32 %s, %s" % (v(t), v(r)))
    g.nop(1)
    g.e("v_permlane16_swap_b32 %s, %s" % (v(t), v(r)))
    g.nop(1)
    g.e("%s %s, %s, %s" % (op, v(r), v(r), v(t)))
    if both:
        g.e("v_mov_b32 %s, %s" % (v(t), v(r)))
        g.nop(1)
        g.e("v_permlane32_swap_b32 %s, %s" % (v(t), v(r)))
        g.nop(1)
        g.e("%s %s, %s, %s" % (op, v(r), v(r), v(t)))

def transpose_reduce16(g, a):
    g.nop(1)
    for k in range(8):
        g.e("v_permlane32_swap_b32 %s, %s" % (v(a + k), v(a + k + 8)))
    g.nop(1)
    for k in range(8):
        g.e("v_add_f32 %s, %s, %s" % (v(a + k), v(a + k), v(a + k + 8)))
    g.nop(1)
    for k in range(4):
        g.e("v_permlane16_swap_b32 %s, %s" % (v(a + k), v(a + k + 4)))
    g.nop(1)
    for k in range(4):
        g.e("v_add_f32 %s, %s, %s" % (v(a + k), v(a + k), v(a + k + 4)))

def stamp(g, idx, vt):
    if not STAMPS:
        return
    g.e("s_memrealtime s[100:101]")
    g.e("s_lshl_b32 s98, %s, 3" % sr(S_CU))
    g.e("s_add_u32 s98, s98, %s" % sr(S_WAVE))
    g.e("s_lshl_b32 s98, s98, 7")
    g.e("s_add_u32 s98, s98, %d" % (WS_STAMP + idx * 4))
    g.e("s_waitcnt lgkmcnt(0)")
    g.e("v_mov_b32 %s, s100" % v(vt))
    g.e("s_mov_b64 exec, 1")
    g.e("buffer_store_dword %s, off, %s, s98" % (v(vt), sr(SRD_WS, 4)))
    g.e("s_mov_b64 exec, -1")

def q_job(g, gather):
    ACC, PT, XR, W = 32, 48, 56, 128
    g.c("---- Q job ----")
    g.e("s_mul_i32 %s, %s, 224" % (sr(S_T[4]), sr(S_T[0])))
    g.e("s_add_u32 %s, %s, 896" % (sr(S_T[5]), sr(S_T[4])))
    g.e("s_mul_i32 %s, %s, %d" % (sr(S_T[2]), sr(S_T[0]), 112 * 8192))
    g.e("s_lshl_b32 %s, %s, 9" % (sr(S_T[3]), sr(S_H)))
    g.e("s_add_u32 %s, %s, %s" % (sr(S_T[2]), sr(S_T[2]), sr(S_T[3])))
    g.e("s_lshl_b32 %s, %s, 8" % (sr(S_T[3]), sr(S_T[1])))
    g.e("s_add_u32 %s, %s, %s" % (sr(S_T[2]), sr(S_T[2]), sr(S_T[3])))
    g.e("s_mov_b32 %s, %d" % (sr(S_T[6]), 28 * 8192))
    g.e("v_mul_lo_u32 v12, %s, %s" % (v(V_G), sr(S_T[6])))
    g.e("v_lshl_add_u32 v12, %s, 4, v12" % v(V_L16))
    g.e("v_mul_u32_u24 v13, 56, %s" % v(V_G))
    for b in range(2):
        sb = sr(S_T[4 + b])
        g.e("buffer_load_dwordx4 %s, v13, %s, %s offen" % (v(XR + b * 14, 4), sr(SRD_X, 4), sb))
        g.e("buffer_load_dwordx4 %s, v13, %s, %s offen offset:16" % (v(XR + b * 14 + 4, 4), sr(SRD_X, 4), sb))
        g.e("buffer_load_dwordx4 %s, v13, %s, %s offen offset:32" % (v(XR + b * 14 + 8, 4), sr(SRD_X, 4), sb))
        g.e("buffer_load_dwordx2 %s, v13, %s, %s offen offset:48" % (v(XR + b * 14 + 12, 2), sr(SRD_X, 4), sb))
    for n in range(28):
        g.e("buffer_load_dwordx4 %s, v12, %s, %s offen nt" % (v(W + 4 * n, 4), sr(SRD_WQ, 4), sr(S_T[2])))
        g.e("s_add_u32 %s, %s, 8192" % (sr(S_T[2]), sr(S_T[2])))
    g.e("s_barrier")
    for i in range(16):
        g.e("v_mov_b32 %s, 0" % v(ACC + i))
    for k in range(14):
        g.e("s_waitcnt vmcnt(%d)" % (26 - 2 * k))
        r0 = W + 8 * k
        r1 = r0 + 4
        for j in range(4):
            g.e("v_perm_b32 %s, %s, %s, %s" % (v(PT + 2 * j), v(r1 + j), v(r0 + j), sr(S_PLO)))
            g.e("v_perm_b32 %s, %s, %s, %s" % (v(PT + 2 * j + 1), v(r1 + j), v(r0 + j), sr(S_PHI)))
        for b in range(2):
            for e_ in range(8):
                g.e("v_dot2_f32_bf16 %s, %s, %s, %s" % (v(ACC + b * 8 + e_), v(PT + e_), v(XR + b * 14 + k), v(ACC + b * 8 + e_)))
    stamp(g, 12, 15)
    g.e("v_readfirstlane_b32 %s, v127" % sr(S_TAG))
    g.e("s_add_u32 %s, %s, 1" % (sr(S_TAG), sr(S_TAG)))
    g.nop(1)
    transpose_reduce16(g, ACC)
    done = g.newlab("QDONE")
    g.e("v_lshrrev_b32 v12, 1, %s" % v(V_G))
    g.e("v_lshlrev_b32 v12, 11, v12")
    g.e("v_and_b32 v13, 1, %s" % v(V_G))
    g.e("v_lshl_add_u32 v12, v13, 5, v12")
    g.e("v_lshl_add_u32 v12, %s, 6, v12" % v(V_L16))
    g.e("s_lshl_b32 s98, %s, 1" % sr(S_H))
    g.e("s_add_u32 s98, s98, %s" % sr(S_JMAT))
    g.e("s_lshl_b32 s99, s98, 5")
    g.e("s_lshl_b32 s98, s98, 2")
    g.e("s_add_u32 s98, s98, %s" % sr(S_T[0]))
    g.e("s_lshl_b32 s98, s98, 12")
    g.e("s_lshl_b32 s100, %s, 10" % sr(S_T[1]))
    g.e("s_add_u32 s98, s98, s100")
    g.e("s_add_u32 s98, s98, %d" % WS_QP)
    g.e("v_mov_b32 v40, v32")
    g.e("v_mov_b32 v41, %s" % sr(S_TAG))
    g.e("v_mov_b32 v42, v33")
    g.e("v_mov_b32 v43, %s" % sr(S_TAG))
    g.e("v_mov_b32 v44, v34")
    g.e("v_mov_b32 v45, %s" % sr(S_TAG))
    g.e("v_mov_b32 v46, v35")
    g.e("v_mov_b32 v47, %s" % sr(S_TAG))
    g.e("buffer_store_dwordx4 v[40:43], v12, %s, s98 offen sc1" % sr(SRD_WS, 4))
    g.e("buffer_store_dwordx4 v[44:47], v12, %s, s98 offen offset:16 sc1" % sr(SRD_WS, 4))
    g.e("s_lshl_b32 s100, %s, 1" % sr(S_T[0]))
    g.e("s_add_u32 s100, s100, %s" % sr(S_T[1]))
    g.e("s_lshl_b32 s100, s100, 2")
    g.e("s_add_u32 s99, s99, s100")
    g.e("s_add_u32 s99, s99, %d" % WS_QPF)
    g.e("s_mov_b64 exec, 1")
    g.e("buffer_store_dword v41, off, %s, s99 sc1" % sr(SRD_WS, 4))
    g.e("s_mov_b64 exec, -1")
    stamp(g, 13, 15)
    if gather:
        g.e("s_lshl_b32 s99, %s, 6" % sr(S_H))
        g.e("s_add_u32 s99, s99, %d" % WS_QPF)
        lp = g.newlab("QPOLL"); ok = g.newlab("QPOK")
        g.e("v_lshlrev_b32 v12, 2, %s" % v(V_LANE))
        g.e("s_mov_b64 exec, 0xffff")
        g.e("s_mov_b32 %s, 0" % sr(S_SPIN))
        g.lab(lp)
        g.e("buffer_load_dword v13, v12, %s, s99 offen sc1" % sr(SRD_WS, 4))
        g.e("s_waitcnt vmcnt(0)")
        g.e("v_cmp_eq_u32 vcc, %s, v13" % sr(S_TAG))
        g.e("s_cmp_eq_u64 vcc, exec")
        g.e("s_cbranch_scc1 %s" % ok)
        g.e("s_add_u32 %s, %s, 1" % (sr(S_SPIN), sr(S_SPIN)))
        g.e("s_cmp_gt_u32 %s, %d" % (sr(S_SPIN), SPIN_MAX))
        g.e("s_cbranch_scc1 %s" % ok)
        g.e("s_sleep 1")
        g.e("s_branch %s" % lp)
        g.lab(ok)
        g.e("s_mov_b64 exec, -1")
        stamp(g, 14, 15)
        lp = g.newlab("QG"); ok = g.newlab("QGOK")
        g.e("v_lshlrev_b32 v12, 4, %s" % v(V_LANE))
        g.lab(lp)
        g.e("s_lshl_b32 s98, %s, 15" % sr(S_H))
        g.e("s_add_u32 s98, s98, %d" % WS_QP)
        g.e("s_lshl_b32 s99, %s, 11" % sr(S_BB))
        g.e("s_add_u32 s99, s99, s98")
        for rq in range(4):
            for p in range(2):
                g.e("buffer_load_dwordx4 %s, v12, %s, s99 offen offset:%d sc1" % (v(32 + rq * 8 + p * 4, 4), sr(SRD_WS, 4), p * 1024))
            g.e("s_add_u32 s99, s99, 4096")
        g.e("s_add_u32 s99, s98, 16384")
        for rq in range(4):
            for z in (1, 2):
                for p in range(2):
                    g.e("buffer_load_dwordx4 %s, v12, %s, s99 offen offset:%d sc1" % (v(32 + z * 32 + rq * 8 + p * 4, 4), sr(SRD_WS, 4), (z - 1) * 2048 + p * 1024))
            g.e("s_add_u32 s99, s99, 4096")
        g.e("s_waitcnt vmcnt(0)")
        g.e("v_xor_b32 v13, %s, v33" % sr(S_TAG))
        for r_ in range(35, 128, 2):
            g.e("v_xor_b32 v14, %s, %s" % (sr(S_TAG), v(r_)))
            g.e("v_or_b32 v13, v13, v14")
        g.e("v_cmp_eq_u32 vcc, 0, v13")
        g.e("s_cmp_eq_u64 vcc, exec")
        g.e("s_cbranch_scc1 %s" % ok)
        g.e("s_add_u32 %s, %s, 1" % (sr(S_SPIN), sr(S_SPIN)))
        g.e("s_cmp_gt_u32 %s, %d" % (sr(S_SPIN), SPIN_MAX))
        g.e("s_cbranch_scc0 %s" % lp)
        g.lab(ok)
        g.e("v_lshlrev_b32 v12, 2, %s" % v(V_LANE))
        g.e("v_add_u32 v13, %d, v12" % L_QB)
        g.e("s_lshl_b32 s99, %s, 9" % sr(S_BB))
        g.e("v_add_u32 v12, s99, v13")
        for z in range(3):
            for p in range(2):
                a = 32 + z * 32 + p * 4
                for o_ in (0, 2):
                    g.e("v_add_f32 %s, %s, %s" % (v(a + o_), v(a + o_), v(a + 8 + o_)))
                    g.e("v_add_f32 %s, %s, %s" % (v(a + 16 + o_), v(a + 16 + o_), v(a + 24 + o_)))
                    g.e("v_add_f32 %s, %s, %s" % (v(a + o_), v(a + o_), v(a + 16 + o_)))
                g.e("v_cvt_pk_bf16_f32 %s, %s, %s" % (v(a + 1), v(a), v(a + 2)))
                if z == 0:
                    g.e("ds_write_b32 v12, %s offset:%d" % (v(a + 1), p * 256))
                else:
                    g.e("ds_write_b32 v13, %s offset:%d" % (v(a + 1), 1024 + (z - 1) * 512 + p * 256))
        g.e("s_waitcnt lgkmcnt(0)")
    g.lab(done)

def load_rows896(g, srd, rowbase_sgpr, nrows, wreg):
    g.e("s_mul_i32 %s, %s, %d" % (sr(S_T[0]), sr(S_WAVE), nrows))
    g.e("s_add_u32 %s, %s, %s" % (sr(S_T[0]), sr(S_T[0]), sr(rowbase_sgpr)))
    g.e("s_mul_i32 %s, %s, 896" % (sr(S_T[0]), sr(S_T[0])))
    g.e("v_lshlrev_b32 v12, 4, %s" % v(V_LANE))
    g.e("s_mov_b32 exec_hi, 0x00ffffff")
    for n in range(nrows):
        if n % 4 == 0 and n > 0:
            g.e("s_add_u32 %s, %s, 3584" % (sr(S_T[0]), sr(S_T[0])))
        g.e("buffer_load_dwordx4 %s, v12, %s, %s offen offset:%d" % (v(wreg + n * 4, 4), sr(srd, 4), sr(S_T[0]), (n % 4) * 896))
    g.e("s_mov_b32 exec_hi, -1")

def preperm(g, wreg, nrows):
    for k in range(nrows // 2):
        r0 = wreg + (2 * k) * 4
        r1 = r0 + 4
        for j in range(4):
            g.e("v_perm_b32 v12, %s, %s, %s" % (v(r1 + j), v(r0 + j), sr(S_PLO)))
            g.e("v_perm_b32 %s, %s, %s, %s" % (v(r1 + j), v(r1 + j), v(r0 + j), sr(S_PHI)))
            g.e("v_mov_b32 %s, v12" % v(r0 + j))

def out_gemv(g, wreg, nrows, lds_base, bstride, Y, OP):
    g.e("s_mul_i32 %s, %s, %d" % (sr(S_T[0]), sr(S_WAVE), nrows * 2))
    g.e("s_add_u32 %s, %s, %d" % (sr(S_T[0]), sr(S_T[0]), lds_base))
    g.e("v_mov_b32 v12, %s" % sr(S_T[0]))
    npk = nrows // 2
    for b in range(2):
        for x in range(npk // 4):
            g.e("ds_read_b128 %s, v12 offset:%d" % (v(OP + b * npk + 4 * x, 4), b * bstride + 16 * x))
    for i in range(16):
        g.e("v_mov_b32 %s, 0" % v(Y + i))
    g.e("s_waitcnt lgkmcnt(0)")
    for k in range(npk):
        r0 = wreg + (2 * k) * 4
        r1 = r0 + 4
        for b in range(2):
            for j in range(4):
                g.e("v_dot2_f32_bf16 %s, %s, %s, %s" % (v(Y + b * 8 + 2 * j), v(r0 + j), v(OP + b * npk + k), v(Y + b * 8 + 2 * j)))
                g.e("v_dot2_f32_bf16 %s, %s, %s, %s" % (v(Y + b * 8 + 2 * j + 1), v(r1 + j), v(OP + b * npk + k), v(Y + b * 8 + 2 * j + 1)))

def flag_store(g, base_const, idx_sgpr, sub):
    skip = g.newlab("FLAG")
    g.e("s_cmp_lg_u32 %s, 0" % sr(S_WAVE))
    g.e("s_cbranch_scc1 %s" % skip)
    g.e("s_sub_u32 s98, %s, %d" % (sr(idx_sgpr), sub))
    g.e("s_lshl_b32 s98, s98, 2")
    g.e("s_add_u32 s98, s98, %d" % base_const)
    g.e("v_mov_b32 v13, %s" % sr(S_TAG))
    g.e("s_mov_b64 exec, 1")
    g.e("buffer_store_dword v13, off, %s, s98 sc1" % sr(SRD_WS, 4))
    g.e("s_mov_b64 exec, -1")
    g.lab(skip)

def poll_flags(g, base_sgpr_or_const, nflags, pw=0):
    lp = g.newlab("POLL"); ok = g.newlab("POLLOK")
    g.e("s_cmp_lg_u32 %s, %d" % (sr(S_WAVE), pw))
    g.e("s_cbranch_scc1 %s" % ok)
    wide = nflags > 64
    g.e("v_lshlrev_b32 v12, %d, %s" % (4 if wide else 2, v(V_LANE)))
    if wide:
        nflags //= 4
    if isinstance(base_sgpr_or_const, int):
        g.e("s_mov_b32 s98, %d" % base_sgpr_or_const)
    else:
        g.e("s_mov_b32 s98, %s" % base_sgpr_or_const)
    if nflags < 64:
        m = (1 << nflags) - 1
        g.e("s_mov_b32 exec_lo, 0x%x" % (m & 0xffffffff))
        g.e("s_mov_b32 exec_hi, 0x%x" % (m >> 32))
    g.e("s_mov_b32 %s, 0" % sr(S_SPIN))
    g.lab(lp)
    if wide:
        g.e("buffer_load_dwordx4 v[88:91], v12, %s, s98 offen sc1" % sr(SRD_WS, 4))
        g.e("s_waitcnt vmcnt(0)")
        g.e("v_cmp_eq_u32 vcc, %s, v88" % sr(S_TAG))
        for i in range(1, 4):
            g.e("v_cmp_eq_u32 %s, %s, %s" % (sr(S_M2, 2), sr(S_TAG), v(88 + i)))
            g.e("s_and_b64 vcc, vcc, %s" % sr(S_M2, 2))
    else:
        g.e("buffer_load_dword v13, v12, %s, s98 offen sc1" % sr(SRD_WS, 4))
        g.e("s_waitcnt vmcnt(0)")
        g.e("v_cmp_eq_u32 vcc, %s, v13" % sr(S_TAG))
    g.e("s_cmp_eq_u64 vcc, exec")
    g.e("s_cbranch_scc1 %s" % ok)
    g.e("s_add_u32 %s, %s, 1" % (sr(S_SPIN), sr(S_SPIN)))
    g.e("s_cmp_gt_u32 %s, %d" % (sr(S_SPIN), SPIN_MAX))
    g.e("s_cbranch_scc1 %s" % ok)
    g.e("s_sleep 4")
    g.e("s_branch %s" % lp)
    g.lab(ok)
    g.e("s_mov_b64 exec, -1")
    g.e("s_barrier")


def gen():
    g = G()
    g.lines.append("; @launch grid=(256,1,1) block=(512,1,1) lds=%d" % LDS_BYTES)
    g.lines.append('.amdgcn_target "amdgcn-amd-amdhsa--gfx950"')
    g.lines.append(".text")
    g.lines.append(".globl %s" % KN)
    g.lines.append(".p2align 8")
    g.lines.append(".type %s,@function" % KN)
    g.lab(KN)
    g.e("s_cmp_ge_u32 s2, 256")
    g.e("s_cbranch_scc1 L_END")
    g.e("s_load_dwordx16 s[8:23], s[0:1], 0")
    g.e("s_load_dwordx8 s[24:31], s[0:1], 64")
    g.e("s_load_dwordx4 s[32:35], s[0:1], 96")
    g.e("v_and_b32 %s, 63, v0" % v(V_LANE))
    g.e("v_lshrrev_b32 v12, 6, v0")
    g.e("v_and_b32 %s, 15, v0" % v(V_L16))
    g.e("v_bfe_u32 %s, v0, 4, 2" % v(V_G))
    g.e("v_readfirstlane_b32 %s, v12" % sr(S_WAVE))
    g.e("v_mov_b32 v4, 0")
    g.e("v_mov_b32 v5, 0")
    g.e("s_and_b32 s96, s2, 7")
    g.e("s_lshr_b32 s97, s2, 3")
    g.e("s_mov_b32 %s, 0x05040100" % sr(S_PLO))
    g.e("s_mov_b32 %s, 0x07060302" % sr(S_PHI))
    g.e("s_mov_b32 %s, 0x3fb8aa3b" % sr(S_L2E))
    g.e("s_mov_b32 %s, 0x00010001" % sr(S_MK))
    g.e("s_mov_b32 %s, 0x00010001" % sr(S_MK + 1))
    g.e("s_cmp_ge_u32 s97, 12")
    g.e("s_cselect_b32 s98, 12, 0")
    g.e("s_sub_u32 s98, s97, s98")
    g.e("s_cmp_ge_u32 s98, 8")
    g.e("s_cselect_b32 s99, 1, 0")
    g.e("s_cmp_eq_u32 s99, 0")
    g.e("s_waitcnt lgkmcnt(0)")
    def srd(d, a, b, na, nb):
        g.e("s_cselect_b32 %s, %s, %s" % (sr(d), sr(a), sr(b)))
        g.e("s_cselect_b32 %s, %s, %s" % (sr(d + 1), sr(a + 1), sr(b + 1)))
        if na == nb:
            g.e("s_mov_b32 %s, %d" % (sr(d + 2), na))
        else:
            g.e("s_mov_b32 s98, %d" % na)
            g.e("s_cselect_b32 %s, s98, %d" % (sr(d + 2), nb))
        g.e("s_mov_b32 %s, 0x00020000" % sr(d + 3))
    srd(SRD_X, 8, 18, 1792, 1792)
    srd(SRD_WQ, 14, 22, 448 * 8192, 448 * 8192)
    g.e("s_cmp_lt_u32 s97, 24")
    srd(SRD_WO, 24, 28, 1 << 23, 4096 * 896)
    srd(SRD_K, 10, 20, 1 << 26, 1 << 24)
    srd(SRD_V, 12, 26, 1 << 26, 1 << 23)
    srd(SRD_WS, 34, 34, WS_SIZE, WS_SIZE)
    srd(SRD_OUT, 30, 30, 3584, 3584)
    srd(SRD_WOA, 16, 16, 4096 * 896, 4096 * 896)
    g.e("s_cselect_b32 %s, 1, 0" % sr(S_ROLE))
    g.e("s_cselect_b32 %s, 0, 1" % sr(S_MAT))
    g.e("s_mov_b32 %s, s99" % sr(S_JMAT))
    g.e("buffer_load_dword v127, off, %s, 0 sc1" % sr(SRD_WS, 4))
    g.e("s_cbranch_scc0 L_ROLE_B0")

    g.c("==== ROLE A setup ====")
    if "--noA" in sys.argv:
        g.e("s_branch L_END")
    g.e("s_cmp_ge_u32 s97, 12")
    g.e("s_cselect_b32 s98, 1, 0")
    g.e("s_mul_i32 s99, s98, 12")
    g.e("s_sub_u32 %s, s97, s99" % sr(S_J))
    g.e("s_lshl_b32 %s, s96, 1" % sr(S_H))
    g.e("s_add_u32 %s, %s, s98" % (sr(S_H), sr(S_H)))
    g.e("s_mul_i32 %s, %s, 12" % (sr(S_CU), sr(S_H)))
    g.e("s_add_u32 %s, %s, %s" % (sr(S_CU), sr(S_CU), sr(S_J)))
    g.e("s_cmp_ge_u32 %s, 6" % sr(S_J))
    g.e("s_cselect_b32 %s, 1, 0" % sr(S_BB))
    g.e("s_mul_i32 s99, %s, 6" % sr(S_BB))
    g.e("s_sub_u32 s98, %s, s99" % sr(S_J))
    g.e("s_mul_i32 s99, s98, %d" % (256 * 43691))
    g.e("s_lshr_b32 s99, s99, 17")
    g.e("s_add_u32 s98, s98, 1")
    g.e("s_mul_i32 s98, s98, %d" % (256 * 43691))
    g.e("s_lshr_b32 %s, s98, 17" % sr(S_UEND))
    g.e("s_lshl_b32 s98, %s, 4" % sr(S_BB))
    g.e("s_add_u32 s98, s98, %s" % sr(S_H))
    g.e("s_lshl_b32 %s, s98, 21" % sr(S_SLAB))
    g.e("s_add_u32 s100, s99, %s" % sr(S_WAVE))
    g.e("s_lshl_b32 s100, s100, 12")
    g.e("s_add_u32 %s, %s, s100" % (sr(S_CUR), sr(S_SLAB)))
    g.e("s_add_u32 %s, %s, 32768" % (sr(S_NXT), sr(S_CUR)))
    g.e("v_lshlrev_b32 v4, 10, %s" % v(V_G))
    g.e("v_lshl_add_u32 v4, %s, 4, v4" % v(V_L16))
    g.e("s_add_u32 s99, s99, 16")
    g.e("v_mov_b32 v5, %d" % L_CNT)
    g.e("v_mov_b32 v6, s99")
    g.e("v_mov_b32 v7, 0")
    g.e("ds_write_b64 v5, v[6:7]")
    stamp(g, 0, 15)
    g.e("s_and_b32 %s, %s, 3" % (sr(S_T[0]), sr(S_J)))
    g.e("s_cmp_ge_u32 %s, 4" % sr(S_J))
    g.e("s_cselect_b32 %s, 1, 0" % sr(S_T[1]))
    g.e("s_cmp_ge_u32 %s, 8" % sr(S_J))
    g.e("s_cselect_b32 %s, 0, %s" % (sr(S_T[1]), sr(S_T[1])))
    skip = g.newlab("NOQ"); skip2 = g.newlab("NOQ")
    g.e("s_cmp_ge_u32 %s, 1" % sr(S_WAVE))
    g.e("s_cbranch_scc1 %s" % skip)
    q_job(g, True)
    g.e("s_branch %s" % skip2)
    g.lab(skip)
    g.e("s_barrier")
    g.lab(skip2)
    VOFF = [0, 512, 256, 768]
    def a_issue(slot, base):
        p = slot & 7
        if p < 4:
            g.e("buffer_load_dwordx4 %s, v4, %s, %s offen offset:%d nt" % (v(RING + 4 * slot, 4), sr(SRD_K, 4), sr(base), p * 256))
        else:
            g.e("buffer_load_dwordx4 %s, v4, %s, %s offen offset:%d nt" % (v(RING + 4 * slot, 4), sr(SRD_V, 4), sr(base), VOFF[p - 4]))
    g.e("s_mul_i32 s98, %s, %d" % (sr(S_J), 16 * 43691))
    g.e("s_lshr_b32 s98, s98, 17")
    g.e("s_add_u32 s99, %s, 1" % sr(S_J))
    g.e("s_mul_i32 s99, s99, %d" % (16 * 43691))
    g.e("s_lshr_b32 s99, s99, 17")
    g.e("s_sub_u32 %s, s99, s98" % sr(S_QN))
    g.e("s_add_u32 s98, s98, %s" % sr(S_WAVE))
    g.e("s_sub_u32 %s, s98, 2" % sr(S_QU))
    g.e("s_cmp_lt_u32 %s, 2" % sr(S_WAVE))
    g.e("s_cselect_b32 %s, 0, 1" % sr(S_QV))
    g.e("s_cmp_ge_u32 %s, s99" % sr(S_QU))
    g.e("s_cselect_b32 %s, 0, %s" % (sr(S_QV), sr(S_QV)))
    skip = g.newlab("NOUK")
    g.e("s_cmp_eq_u32 %s, 0" % sr(S_QV))
    g.e("s_cbranch_scc1 %s" % skip)
    g.e("v_lshlrev_b32 v12, 15, %s" % v(V_G))
    g.e("v_lshl_add_u32 v12, %s, 4, v12" % v(V_L16))
    g.e("s_lshl_b32 s98, %s, 17" % sr(S_QU))
    g.e("s_lshl_b32 s99, %s, 9" % sr(S_H))
    g.e("s_add_u32 s98, s98, s99")
    for i in range(4):
        for hf in range(2):
            g.e("buffer_load_dwordx4 %s, v12, %s, s98 offen offset:%d nt" % (v(128 + 4 * (2 * i + hf), 4), sr(SRD_WO, 4), hf * 256))
        g.e("s_add_u32 s98, s98, 8192")
    g.lab(skip)
    skip = g.newlab("NOWO")
    g.e("s_cmp_ge_u32 %s, 4" % sr(S_J))
    g.e("s_cbranch_scc1 %s" % skip)
    g.e("s_lshl_b32 %s, %s, 8" % (sr(S_T[1]), sr(S_H)))
    g.e("s_lshl_b32 %s, %s, 6" % (sr(S_T[2]), sr(S_J)))
    g.e("s_add_u32 %s, %s, %s" % (sr(S_T[1]), sr(S_T[1]), sr(S_T[2])))
    load_rows896(g, SRD_WOA, S_T[1], 8, 160)
    g.lab(skip)
    for p in range(PRE):
        a_issue(p, S_CUR if p < 8 else S_NXT)
    g.e("s_waitcnt lgkmcnt(0)")
    g.e("s_barrier")
    g.e("v_lshlrev_b32 v12, 4, %s" % v(V_L16))
    g.e("s_lshl_b32 s98, %s, 9" % sr(S_BB))
    g.e("s_add_u32 s98, s98, %d" % L_QB)
    g.e("v_add_u32 v13, s98, v12")
    g.e("ds_read_b128 v[16:19], v13")
    g.e("ds_read_b128 v[20:23], v13 offset:256")
    g.e("s_waitcnt vmcnt(%d)" % PRE)
    sk = g.newlab("TAGOK")
    g.e("s_cmp_lt_u32 %s, 1" % sr(S_WAVE))
    g.e("s_cbranch_scc1 %s" % sk)
    g.e("v_readfirstlane_b32 %s, v127" % sr(S_TAG))
    g.e("s_add_u32 %s, %s, 1" % (sr(S_TAG), sr(S_TAG)))
    g.lab(sk)
    stamp(g, 1, 15)
    skipq = g.newlab("NOQABS")
    g.e("s_cmp_eq_u32 %s, 0" % sr(S_QV))
    g.e("s_cbranch_scc1 %s" % skipq)
    g.c("---- QABS on A CUs ----")
    g.e("v_add_u32 v13, %d, v12" % (L_QB + 1024))
    for b in range(2):
        for hf in range(2):
            g.e("ds_read_b128 %s, v13 offset:%d" % (v(64 + b * 8 + hf * 4, 4), b * 512 + hf * 256))
    g.e("s_waitcnt lgkmcnt(0)")
    for i in range(4):
        ra = 128 + 8 * i
        for b in range(2):
            d = 32 + b * 4 + i
            Q = 64 + b * 8
            g.e("v_dot2_f32_bf16 %s, %s, %s, 0" % (v(d), v(ra), v(Q)))
            for j in range(1, 8):
                g.e("v_dot2_f32_bf16 %s, %s, %s, %s" % (v(d), v(ra + j), v(Q + j), v(d)))
    g.nop(2)
    dpp_allreduce16(g, "v_add_f32", list(range(32, 40)))
    for i in range(1, 4):
        g.e("s_lshl_b64 %s, %s, %d" % (sr(S_M2, 2), sr(S_MK, 2), i))
        g.e("v_cndmask_b32 v32, v32, %s, %s" % (v(32 + i), sr(S_M2, 2)))
        g.e("v_cndmask_b32 v36, v36, %s, %s" % (v(36 + i), sr(S_M2, 2)))
    g.e("v_lshl_add_u32 v14, %s, 2, %s" % (v(V_G), v(V_L16)))
    g.e("s_lshl_b32 s99, %s, 4" % sr(S_QU))
    g.e("s_and_b32 s98, s99, 255")
    g.e("v_add_u32 v14, s98, v14")
    g.e("v_and_b32 v40, 7, v14")
    g.e("v_lshlrev_b32 v40, 1, v40")
    g.e("v_bfe_u32 v41, v14, 3, 1")
    g.e("v_lshrrev_b32 v42, 6, v14")
    g.e("v_lshl_add_u32 v41, v42, 1, v41")
    g.e("v_lshl_add_u32 v40, v41, 11, v40")
    g.e("v_bfe_u32 v41, v14, 4, 2")
    g.e("v_lshl_add_u32 v14, v41, 8, v40")
    g.e("s_lshr_b32 s98, s99, 8")
    g.e("s_lshl_b32 s98, s98, 14")
    g.e("s_lshl_b32 s99, %s, 4" % sr(S_H))
    g.e("s_add_u32 s98, s98, s99")
    for b in range(2):
        x = 32 + 4 * b
        g.e("v_cvt_pk_bf16_f32 %s, %s, %s" % (v(40 + 2 * b), v(x), v(x)))
        g.e("v_lshlrev_b32 %s, 16, %s" % (v(41 + 2 * b), v(40 + 2 * b)))
        g.e("v_sub_f32 %s, %s, %s" % (v(41 + 2 * b), v(x), v(41 + 2 * b)))
        g.e("v_cvt_pk_bf16_f32 %s, %s, %s" % (v(41 + 2 * b), v(41 + 2 * b), v(41 + 2 * b)))
        g.e("s_add_u32 s99, s98, %d" % (WS_QH + b * 65536))
        g.e("s_add_u32 s100, s98, %d" % (WS_QH + b * 65536 + 1024))
        g.e("s_mov_b32 exec_lo, 0x000f000f")
        g.e("s_mov_b32 exec_hi, 0x000f000f")
        g.e("buffer_store_short %s, v14, %s, s99 offen sc1" % (v(40 + 2 * b), sr(SRD_WS, 4)))
        g.e("buffer_store_short %s, v14, %s, s100 offen sc1" % (v(41 + 2 * b), sr(SRD_WS, 4)))
        g.e("s_mov_b64 exec, -1")
    g.e("v_mov_b32 v7, 1")
    g.e("s_waitcnt vmcnt(0)")
    g.e("s_mov_b64 exec, 1")
    g.e("ds_add_rtn_u32 v6, v5, v7 offset:4")
    g.e("s_waitcnt lgkmcnt(0)")
    g.e("v_readfirstlane_b32 s98, v6")
    g.e("s_add_u32 s98, s98, 1")
    g.e("s_cmp_lg_u32 s98, %s" % sr(S_QN))
    sk2 = g.newlab("QAF")
    g.e("s_cbranch_scc1 %s" % sk2)
    g.e("s_lshl_b32 s98, %s, 2" % sr(S_CU))
    g.e("s_add_u32 s98, s98, %d" % WS_QF)
    g.e("v_mov_b32 v13, %s" % sr(S_TAG))
    g.e("buffer_store_dword v13, off, %s, s98 sc1" % sr(SRD_WS, 4))
    g.lab(sk2)
    g.e("s_mov_b64 exec, -1")
    stamp(g, 5, 15)
    g.lab(skipq)
    g.e("s_waitcnt lgkmcnt(0)")
    g.e("s_branch L_A_MAIN")

    g.lab("L_ROLE_B0")
    g.q = []
    g.c("==== ROLE B setup ====")
    g.e("s_sub_u32 s98, s97, 24")
    g.e("s_lshr_b32 s99, s98, 2")
    g.e("s_lshl_b32 %s, s96, 1" % sr(S_H))
    g.e("s_add_u32 %s, %s, s99" % (sr(S_H), sr(S_H)))
    g.e("s_and_b32 %s, s98, 3" % sr(S_J))
    g.e("s_lshl_b32 s99, s96, 3")
    g.e("s_add_u32 s99, s99, s98")
    g.e("s_add_u32 %s, s99, 192" % sr(S_CU))
    g.e("s_lshr_b32 %s, s99, 5" % sr(S_BB))
    g.e("s_and_b32 %s, s99, 31" % sr(S_KR))
    g.e("s_and_b32 %s, %s, 1" % (sr(S_DH), sr(S_J)))
    stamp(g, 0, 15)
    g.e("s_mov_b32 %s, %s" % (sr(S_T[0]), sr(S_J)))
    g.e("s_mov_b32 %s, 1" % sr(S_T[1]))
    skip = g.newlab("NOQB"); skip2 = g.newlab("NOQB")
    g.e("s_cmp_ge_u32 %s, 1" % sr(S_WAVE))
    g.e("s_cbranch_scc1 %s" % skip)
    q_job(g, False)
    g.e("s_branch %s" % skip2)
    g.lab(skip)
    g.e("s_barrier")
    g.lab(skip2)
    g.e("s_branch L_ROLE_B")

    g.lab("L_A_MAIN")
    g.c("================ ROLE A main ================")
    for i in range(16):
        g.e("v_mov_b32 %s, 0" % v(32 + i))
    g.e("v_mov_b32 v8, 0xff800000")
    g.e("v_mov_b32 v9, 0")
    g.e("v_mov_b32 v7, 1")
    g.e("s_mov_b32 %s, %d" % (sr(S_FIRST), (PRE - D) // 2))
    g.e("s_mov_b32 %s, 1" % sr(S_VALID))
    g.e("s_mov_b32 %s, 0x3db8aa3b" % sr(S_SC))
    Q = 16
    def unit_body(s0):
        o0 = 8 - s0
        g.e("s_mov_b64 exec, 1")
        g.e("ds_add_rtn_u32 v6, v5, v7")
        g.e("s_mov_b64 exec, -1")
        sk = g.newlab("BULK")
        g.e("s_or_b32 s98, %s, %s" % (sr(S_VALID), sr(S_FIRST)))
        g.e("s_cmp_lg_u32 s98, 0")
        g.e("s_cbranch_scc1 %s" % sk)
        for p in range(D, 8):
            a_issue(s0 + p, S_CUR)
        g.e("s_mov_b32 %s, 8" % sr(S_FIRST))
        g.lab(sk)
        def step_wait(c):
            g.e("s_waitcnt vmcnt(%d)" % (D - 2))
            if 2 * c + D - 1 >= 8:
                sk = g.newlab("W")
                g.e("s_cmp_lg_u32 %s, 0" % sr(S_VALID))
                g.e("s_cbranch_scc1 %s" % sk)
                g.e("s_waitcnt vmcnt(%d)" % min(D - 2, 6 - 2 * c))
                g.lab(sk)
        def step_issue(c):
            p = 2 * c + D
            sk = g.newlab("I"); sk2 = g.newlab("I")
            g.e("s_cmp_eq_u32 %s, 0" % sr(S_FIRST))
            g.e("s_cbranch_scc1 %s" % sk2)
            g.e("s_sub_u32 %s, %s, 1" % (sr(S_FIRST), sr(S_FIRST)))
            g.e("s_branch %s" % sk)
            g.lab(sk2)
            if p < 8:
                a_issue(s0 + p, S_CUR); a_issue(s0 + p + 1, S_CUR)
            else:
                g.e("s_cmp_eq_u32 %s, 0" % sr(S_VALID))
                g.e("s_cbranch_scc1 %s" % sk)
                a_issue(o0 + p - 8, S_NXT); a_issue(o0 + p - 7, S_NXT)
            g.lab(sk)
        for c in range(2):
            step_wait(c)
            ra, rb_ = RING + 4 * s0 + 8 * c, RING + 4 * s0 + 8 * c + 4
            g.e("v_dot2_f32_bf16 %s, %s, %s, 0" % (v(108 + c), v(ra), v(Q)))
            g.e("v_dot2_f32_bf16 %s, %s, %s, 0" % (v(112 + c), v(rb_), v(Q + 4)))
            for j in range(1, 4):
                g.e("v_dot2_f32_bf16 %s, %s, %s, %s" % (v(108 + c), v(ra + j), v(Q + j), v(108 + c)))
                g.e("v_dot2_f32_bf16 %s, %s, %s, %s" % (v(112 + c), v(rb_ + j), v(Q + 4 + j), v(112 + c)))
            step_issue(c)
        g.nop(2)
        g.e("v_add_f32 v108, v108, v112")
        g.e("v_add_f32 v109, v109, v113")
        dpp_allreduce16(g, "v_add_f32", [108, 109])
        g.e("v_cvt_pk_bf16_f32 v112, v108, v109")
        g.e("v_lshlrev_b32 v108, 16, v112")
        g.e("v_and_b32 v109, 0xffff0000, v112")
        g.e("v_mul_f32 v108, %s, v108" % sr(S_SC))
        g.e("v_mul_f32 v109, %s, v109" % sr(S_SC))
        g.e("v_max3_f32 v10, v108, v109, v8")
        g.e("v_cmp_gt_f32 vcc, v10, v8")
        g.e("v_sub_f32 v108, v108, v10")
        g.e("v_sub_f32 v109, v109, v10")
        g.e("v_exp_f32 v108, v108")
        g.e("v_exp_f32 v109, v109")
        sk = g.newlab("NORS")
        g.e("s_cbranch_vccz %s" % sk)
        g.e("v_sub_f32 v11, v8, v10")
        g.e("v_exp_f32 v11, v11")
        g.e("v_mov_b32 v8, v10")
        g.e("v_mul_f32 v9, v9, v11")
        for i in range(16):
            g.e("v_mul_f32 %s, %s, v11" % (v(32 + i), v(32 + i)))
        g.lab(sk)
        g.e("v_cvt_pk_bf16_f32 v96, v108, v109")
        g.e("v_add_f32 v9, v9, v108")
        g.e("v_add_f32 v9, v9, v109")
        for c in range(2, 4):
            step_wait(c)
            r0, r1 = RING + 4 * s0 + 8 * c, RING + 4 * s0 + 8 * c + 4
            hf = c - 2
            for j in range(4):
                g.e("v_perm_b32 %s, %s, %s, %s" % (v(100 + 2 * j), v(r1 + j), v(r0 + j), sr(S_PLO)))
                g.e("v_perm_b32 %s, %s, %s, %s" % (v(101 + 2 * j), v(r1 + j), v(r0 + j), sr(S_PHI)))
            step_issue(c)
            for e_ in range(8):
                g.e("v_dot2_f32_bf16 %s, %s, v96, %s" % (v(32 + 8 * hf + e_), v(100 + e_), v(32 + 8 * hf + e_)))
        g.e("s_cmp_eq_u32 %s, 0" % sr(S_VALID))
        g.e("s_cbranch_scc1 A_DONE")
        g.e("s_waitcnt lgkmcnt(0)")
        g.e("v_readfirstlane_b32 %s, v6" % sr(S_NU))
        g.e("s_mov_b32 %s, %s" % (sr(S_CUR), sr(S_NXT)))
        g.e("s_cmp_lt_u32 %s, %s" % (sr(S_NU), sr(S_UEND)))
        g.e("s_cselect_b32 %s, 1, 0" % sr(S_VALID))
        g.e("s_lshl_b32 %s, %s, 12" % (sr(S_NXT), sr(S_NU)))
        g.e("s_add_u32 %s, %s, %s" % (sr(S_NXT), sr(S_NXT), sr(S_SLAB)))
    g.lab("A_LOOP")
    unit_body(0)
    unit_body(8)
    g.e("s_branch A_LOOP")
    g.lab("A_DONE")
    g.e("s_waitcnt lgkmcnt(0)")
    stamp(g, 2, 15)
    g.e("v_mov_b32 v10, v8")
    cross_rows(g, "v_max_f32", 10, 12)
    g.e("v_sub_f32 v11, v8, v10")
    g.e("v_exp_f32 v11, v11")
    g.nop(0)
    g.e("v_mul_f32 v9, v9, v11")
    for i in range(16):
        g.e("v_mul_f32 %s, %s, v11" % (v(32 + i), v(32 + i)))
    g.e("v_mov_b32 v11, v9")
    cross_rows(g, "v_add_f32", 11, 12)
    transpose_reduce16(g, 32)
    g.e("v_lshrrev_b32 v12, 1, %s" % v(V_G))
    g.e("v_lshlrev_b32 v12, 9, v12")
    g.e("v_and_b32 v13, 1, %s" % v(V_G))
    g.e("v_lshl_add_u32 v12, v13, 4, v12")
    g.e("v_lshl_add_u32 v12, %s, 5, v12" % v(V_L16))
    g.e("s_lshl_b32 s98, %s, 10" % sr(S_WAVE))
    g.e("v_add_u32 v12, s98, v12")
    g.e("ds_write_b128 v12, %s offset:%d" % (v(32, 4), L_AO))
    g.e("s_lshl_b32 s98, %s, 3" % sr(S_WAVE))
    g.e("v_mov_b32 v12, s98")
    g.e("s_mov_b64 exec, 1")
    g.e("ds_write_b64 v12, v[10:11] offset:%d" % L_AM)
    g.e("s_mov_b64 exec, -1")
    g.e("s_waitcnt lgkmcnt(0)")
    g.e("s_barrier")
    skip = g.newlab("ACOMB")
    g.e("s_cmp_ge_u32 %s, 4" % sr(S_WAVE))
    g.e("s_cbranch_scc1 %s" % skip)
    g.e("v_lshlrev_b32 v12, 2, v0")
    g.e("v_mov_b32 v13, 0")
    for w in range(8):
        g.e("ds_read_b32 %s, v12 offset:%d" % (v(32 + w), L_AO + w * 1024))
    for x in range(4):
        g.e("ds_read_b128 %s, v13 offset:%d" % (v(48 + 4 * x, 4), L_AM + 16 * x))
    g.e("s_waitcnt lgkmcnt(0)")
    g.e("v_max3_f32 v10, v48, v50, v52")
    g.e("v_max3_f32 v10, v10, v54, v56")
    g.e("v_max3_f32 v10, v10, v58, v60")
    g.e("v_max_f32 v10, v10, v62")
    for w in range(8):
        g.e("v_sub_f32 %s, %s, v10" % (v(48 + 2 * w), v(48 + 2 * w)))
    for w in range(8):
        g.e("v_exp_f32 %s, %s" % (v(48 + 2 * w), v(48 + 2 * w)))
    g.nop(0)
    g.e("v_mul_f32 v14, v32, v48")
    g.e("v_mul_f32 v11, v49, v48")
    for w in range(1, 8):
        g.e("v_fmac_f32 v14, %s, %s" % (v(32 + w), v(48 + 2 * w)))
        g.e("v_fmac_f32 v11, %s, %s" % (v(49 + 2 * w), v(48 + 2 * w)))
    g.e("s_lshl_b32 s98, %s, 12" % sr(S_CU))
    g.e("s_add_u32 s98, s98, %d" % WS_AP)
    g.e("v_mov_b32 v15, %s" % sr(S_TAG))
    g.e("v_lshlrev_b32 v12, 3, v0")
    g.e("buffer_store_dwordx2 v[14:15], v12, %s, s98 offen sc1" % sr(SRD_WS, 4))
    g.e("s_cmp_lg_u32 %s, 0" % sr(S_WAVE))
    g.e("s_cbranch_scc1 %s" % skip)
    g.e("v_mov_b32 v32, v10")
    g.e("v_mov_b32 v33, %s" % sr(S_TAG))
    g.e("v_mov_b32 v34, v11")
    g.e("v_mov_b32 v35, %s" % sr(S_TAG))
    g.e("s_mov_b64 exec, 1")
    g.e("buffer_store_dwordx4 v[32:35], off, %s, s98 offset:2048 sc1" % sr(SRD_WS, 4))
    g.e("s_mov_b64 exec, -1")
    g.lab(skip)
    g.e("s_barrier")
    flag_store(g, WS_AF, S_CU, 0)
    stamp(g, 3, 15)
    g.e("s_cmp_ge_u32 %s, 8" % sr(S_J))
    g.e("s_cbranch_scc1 L_END")
    g.e("s_cmp_ge_u32 %s, 4" % sr(S_J))
    g.e("s_cbranch_scc1 L_FINAL")
    g.c("---- A combine (CUs j<4): rows h*256+64j ----")
    preperm(g, 160, 8)
    g.e("s_mul_i32 s99, %s, 48" % sr(S_H))
    g.e("s_add_u32 s99, s99, %d" % WS_AF)
    poll_flags(g, "s99", 12)
    stamp(g, 4, 15)
    skip = g.newlab("ACB")
    g.e("s_cmp_ge_u32 %s, 2" % sr(S_WAVE))
    g.e("s_cbranch_scc1 %s" % skip)
    lp = g.newlab("ACL"); ok = g.newlab("ACOK")
    g.e("s_mov_b32 %s, 0" % sr(S_SPIN))
    g.e("s_lshl_b32 s99, %s, 9" % sr(S_J))
    g.e("v_lshlrev_b32 v12, 3, %s" % v(V_LANE))
    g.e("v_add_u32 v12, s99, v12")
    g.lab(lp)
    g.e("s_mul_i32 s98, %s, 12" % sr(S_H))
    g.e("s_mul_i32 s99, %s, 6" % sr(S_WAVE))
    g.e("s_add_u32 s98, s98, s99")
    g.e("s_lshl_b32 s98, s98, 12")
    g.e("s_add_u32 s98, s98, %d" % WS_AP)
    for s_ in range(6):
        g.e("buffer_load_dwordx2 %s, v12, %s, s98 offen sc1" % (v(32 + 2 * s_, 2), sr(SRD_WS, 4)))
        g.e("buffer_load_dwordx4 %s, off, %s, s98 offset:2048 sc1" % (v(80 + 4 * s_, 4), sr(SRD_WS, 4)))
        g.e("s_add_u32 s98, s98, 4096")
    g.e("s_waitcnt vmcnt(0)")
    g.e("v_xor_b32 v13, %s, v33" % sr(S_TAG))
    for r_ in list(range(35, 44, 2)) + list(range(81, 104, 2)):
        g.e("v_xor_b32 v14, %s, %s" % (sr(S_TAG), v(r_)))
        g.e("v_or_b32 v13, v13, v14")
    g.e("v_cmp_eq_u32 vcc, 0, v13")
    g.e("s_cmp_eq_u64 vcc, exec")
    g.e("s_cbranch_scc1 %s" % ok)
    g.e("s_add_u32 %s, %s, 1" % (sr(S_SPIN), sr(S_SPIN)))
    g.e("s_cmp_gt_u32 %s, %d" % (sr(S_SPIN), SPIN_MAX))
    g.e("s_cbranch_scc0 %s" % lp)
    g.lab(ok)
    g.e("v_max3_f32 v10, v80, v84, v88")
    g.e("v_max3_f32 v10, v10, v92, v96")
    g.e("v_max_f32 v10, v10, v100")
    for s_ in range(6):
        g.e("v_sub_f32 %s, %s, v10" % (v(80 + 4 * s_), v(80 + 4 * s_)))
    for s_ in range(6):
        g.e("v_exp_f32 %s, %s" % (v(80 + 4 * s_), v(80 + 4 * s_)))
    g.nop(0)
    g.e("v_mul_f32 v14, v32, v80")
    g.e("v_mul_f32 v11, v82, v80")
    for s_ in range(1, 6):
        g.e("v_fmac_f32 v14, %s, %s" % (v(32 + 2 * s_), v(80 + 4 * s_)))
        g.e("v_fmac_f32 v11, %s, %s" % (v(82 + 4 * s_), v(80 + 4 * s_)))
    g.e("v_rcp_f32 v11, v11")
    g.nop(0)
    g.e("v_mul_f32 v14, v14, v11")
    g.e("v_cvt_pk_bf16_f32 v14, v14, v14")
    g.e("v_lshlrev_b32 v12, 1, v0")
    g.e("ds_write_b16 v12, v14 offset:%d" % L_OA)
    g.lab(skip)
    g.e("s_waitcnt lgkmcnt(0)")
    g.e("s_barrier")
    out_gemv(g, 160, 8, L_OA, 128, 48, 32)
    g.e("s_lshl_b32 %s, %s, 2" % (sr(S_YI), sr(S_H)))
    g.e("s_add_u32 %s, %s, %s" % (sr(S_YI), sr(S_YI), sr(S_J)))
    g.e("s_branch L_YPUB")

    g.lab("L_ROLE_B")
    g.c("================ ROLE B main ================")
    if "--noB" in sys.argv:
        g.e("s_branch L_END")
    for i in range(4):
        g.e("s_lshl_b32 s98, %s, 2" % sr(S_WAVE))
        g.e("s_add_u32 s98, s98, %d" % i)
        g.e("s_and_b32 s98, s98, 15")
        g.e("s_and_b32 s99, s98, 7")
        g.e("s_lshl_b32 s99, s99, 1")
        g.e("s_lshr_b32 s98, s98, 3")
        g.e("s_or_b32 s98, s98, s99")
        g.e("v_xor_b32 %s, s98, %s" % (v(8 + i), v(V_LANE)))
        g.e("v_lshlrev_b32 %s, 4, %s" % (v(8 + i), v(8 + i)))
    g.e("s_lshl_b32 s98, %s, 12" % sr(S_BB))
    g.e("s_lshl_b32 s99, %s, 7" % sr(S_KR))
    g.e("s_add_u32 s98, s98, s99")
    g.e("s_lshl_b32 s99, %s, 2" % sr(S_WAVE))
    g.e("s_add_u32 s98, s98, s99")
    g.e("s_lshl_b32 %s, s98, 11" % sr(S_CKV))
    g.e("s_lshl_b32 %s, %s, 13" % (sr(S_LW), sr(S_WAVE)))
    def dma_tile(t):
        buf = L_TILE0 if t % 2 == 0 else L_TILE1
        for i in range(4):
            for hf in range(2):
                g.e("s_add_u32 s98, %s, %d" % (sr(S_LW), buf + i * 2048 + hf * 1024))
                g.e("s_mov_b32 m0, s98")
                g.e("s_add_u32 s99, %s, %d" % (sr(S_CKV), t * 65536 + i * 2048 + hf * 1024))
                g.vm("dma%d" % t, "buffer_load_dwordx4 %s, %s, s99 offen nt lds" % (v(8 + i), sr(SRD_K, 4)))
    dma_tile(0)
    dma_tile(1)
    for t in (2, 3):
        for i in range(4):
            for hf in range(2):
                g.e("s_add_u32 s99, %s, %d" % (sr(S_CKV), t * 65536 + i * 2048 + hf * 1024))
                g.vm("rt%d" % t, "buffer_load_dwordx4 %s, %s, %s, s99 offen nt" % (v(192 + 32 * (t - 2) + 4 * (2 * i + hf), 4), v(8 + i), sr(SRD_K, 4)))
    g.e("v_lshlrev_b32 v31, 4, %s" % v(V_LANE))
    g.e("v_add_u32 v31, %s, v31" % sr(S_LW))
    UV = 192
    uvn = [0]
    def uv_setup():
        g.e("v_lshlrev_b32 v30, 17, %s" % v(V_G))
        g.e("v_lshl_add_u32 v30, %s, 4, v30" % v(V_L16))
        g.e("s_lshr_b32 s98, %s, 1" % sr(S_J))
        g.e("s_lshl_b32 s98, s98, 9")
        g.e("s_lshl_b32 s99, %s, 6" % sr(S_WAVE))
        g.e("s_add_u32 s98, s98, s99")
        g.e("s_lshl_b32 s98, s98, 13")
        g.e("s_lshl_b32 s99, %s, 9" % sr(S_H))
        g.e("s_add_u32 s98, s98, s99")
        g.e("s_lshl_b32 s99, %s, 8" % sr(S_DH))
        g.e("s_add_u32 %s, s98, s99" % sr(S_QU))
    def uv_some(k):
        for _ in range(k):
            n = uvn[0]
            if n >= 16:
                return
            g.e("buffer_load_dwordx4 %s, v30, %s, %s offen nt" % (v(UV + 4 * n, 4), sr(SRD_V, 4), sr(S_QU)))
            g.e("s_add_u32 %s, %s, 8192" % (sr(S_QU), sr(S_QU)))
            uvn[0] += 1
    uv_setup()
    g.e("v_and_b32 v12, 7, %s" % v(V_L16))
    g.e("v_lshlrev_b32 v12, 1, v12")
    g.e("v_lshrrev_b32 v13, 3, %s" % v(V_L16))
    g.e("v_or_b32 v12, v12, v13")
    g.e("v_lshlrev_b32 v13, 1, %s" % v(V_G))
    g.e("v_xor_b32 v12, v12, v13")
    g.e("s_lshr_b32 s98, %s, 2" % sr(S_WAVE))
    g.e("s_lshl_b32 s98, s98, 15")
    g.e("s_and_b32 s99, %s, 3" % sr(S_WAVE))
    g.e("s_lshl_b32 s99, s99, 9")
    g.e("s_add_u32 s98, s98, s99")
    g.e("v_lshlrev_b32 v13, 11, %s" % v(V_L16))
    g.e("v_add_u32 v13, s98, v13")
    for x, X in enumerate((0, 1, 8, 9)):
        g.e("v_xor_b32 v14, %d, v12" % X)
        g.e("v_lshl_add_u32 %s, v14, 4, v13" % v(4 + x))
    g.e("v_lshrrev_b32 v12, 2, %s" % v(V_L16))
    g.e("v_lshl_add_u32 v12, %s, 2, v12" % v(V_G))
    g.e("v_and_b32 v13, 7, v12")
    g.e("v_lshlrev_b32 v13, 1, v13")
    g.e("v_lshrrev_b32 v14, 3, v12")
    g.e("v_or_b32 v13, v13, v14")
    g.e("v_bfe_u32 v14, %s, 1, 1" % v(V_L16))
    g.e("v_xor_b32 v13, v13, v14")
    g.e("v_lshlrev_b32 v12, 11, v12")
    g.e("v_and_b32 v14, 1, %s" % v(V_L16))
    g.e("v_lshl_add_u32 v12, v14, 3, v12")
    g.e("s_lshl_b32 s98, %s, 8" % sr(S_WAVE))
    g.e("v_add_u32 v12, s98, v12")
    for ct in range(8):
        g.e("v_xor_b32 v14, %d, v13" % (2 * ct))
        g.e("v_lshl_add_u32 %s, v14, 4, v12" % v(16 + ct))
    g.e("v_lshlrev_b32 v29, 4, %s" % v(V_LANE))
    g.e("v_add_u32 v29, %d, v29" % L_SX)
    g.e("s_lshl_b32 s98, %s, 10" % sr(S_WAVE))
    g.e("v_add_u32 v28, s98, v29")
    ACC = 32
    for i in range(32):
        g.e("v_mov_b32 %s, 0" % v(ACC + i))
    g.e("v_mov_b32 v124, 0xff800000")
    g.e("v_mov_b32 v125, 0")
    g.e("s_mov_b32 %s, 0x3db8aa3b" % sr(S_SC))
    g.e("s_waitcnt vmcnt(32)")
    g.e("v_readfirstlane_b32 %s, v127" % sr(S_TAG))
    g.e("s_add_u32 %s, %s, 1" % (sr(S_TAG), sr(S_TAG)))
    stamp(g, 2, 15)
    if "--ckvtest" in sys.argv:
        g.e("s_waitcnt vmcnt(16)")
        stamp(g, 3, 15)
        g.e("s_waitcnt vmcnt(0)")
        stamp(g, 4, 15)
        g.e("s_branch L_END")
    poll_flags(g, WS_QF, 192, pw=4)
    stamp(g, 3, 15)

    QF = 128
    g.c("---- ATT B ----")
    g.e("v_lshlrev_b32 v12, 4, %s" % v(V_LANE))
    g.e("s_and_b32 s98, %s, 3" % sr(S_WAVE))
    g.e("s_lshl_b32 s98, s98, 14")
    g.e("s_lshl_b32 s99, %s, 16" % sr(S_BB))
    g.e("s_add_u32 s98, s98, s99")
    g.e("s_add_u32 s98, s98, %d" % WS_QH)
    for ks in range(8):
        g.vm("qf", "buffer_load_dwordx4 %s, v12, %s, s98 offen offset:%d sc1" % (v(QF + 8 * ks, 4), sr(SRD_WS, 4), (ks & 1) * 2048))
        g.vm("qf", "buffer_load_dwordx4 %s, v12, %s, s98 offen offset:%d sc1" % (v(QF + 8 * ks + 4, 4), sr(SRD_WS, 4), (ks & 1) * 2048 + 1024))
        if ks & 1:
            g.e("s_add_u32 s98, s98, 4096")
    g.wait("qf")
    stamp(g, 16, 15)
    for t in range(4):
        g.c("tile %d" % t)
        if t: stamp(g, 16 + 3 * t, 15)
        g.e("s_waitcnt lgkmcnt(0)")
        g.e("s_barrier")
        if t >= 1 and t + 1 < 4:
            if t == 2:
                g.e("v_add_u32 v31, 0x10000, v31")
            for x in range(8):
                g.e("ds_write_b128 v31, %s offset:%d" % (v(192 + 32 * (t - 1) + 4 * x, 4), x * 1024))
        if t >= 1:
            op = "v_add_u32" if t % 2 == 1 else "v_subrev_u32"
            for r_ in list(range(4, 8)) + list(range(16, 24)):
                g.e("%s %s, 0x10000, %s" % (op, v(r_), v(r_)))
        if t >= 2: uv_some(2)
        for i in range(8):
            g.e("v_mov_b32 %s, 0" % v(80 + i))
        for ks in range(8):
            g.e("ds_read_b128 %s, %s offset:%d" % (v(88 + 4 * ks, 4), v(4 + (ks & 3)), (ks >> 2) * 256))
        for ks in range(8):
            g.e("s_waitcnt lgkmcnt(%d)" % (7 - ks))
            g.e("v_mfma_f32_16x16x32_bf16 %s, %s, %s, %s" % (v(80, 4), v(88 + 4 * ks, 4), v(QF + 8 * ks, 4), v(80, 4)))
            g.e("v_mfma_f32_16x16x32_bf16 %s, %s, %s, %s" % (v(84, 4), v(88 + 4 * ks, 4), v(QF + 8 * ks + 4, 4), v(84, 4)))
        g.nop(7)
        g.nop(1)
        for i in range(4):
            g.e("v_add_f32 %s, %s, %s" % (v(80 + i), v(80 + i), v(84 + i)))
        g.e("ds_write_b128 v28, %s" % v(80, 4))
        if t >= 2: uv_some(2)
        g.e("s_waitcnt lgkmcnt(0)")
        stamp(g, 17 + 3 * t, 15)
        g.e("s_barrier")
        stamp(g, 18 + 3 * t, 15)
        for x in range(8):
            g.e("ds_read_b128 %s, v29 offset:%d" % (v(88 + 4 * x, 4), x * 1024))
        g.e("s_waitcnt lgkmcnt(0)")
        for st in range(2):
            for i in range(4):
                a = 88 + 16 * st + i
                g.e("v_add_f32 %s, %s, %s" % (v(a), v(a), v(a + 4)))
                g.e("v_add_f32 %s, %s, %s" % (v(a + 8), v(a + 8), v(a + 12)))
                g.e("v_add_f32 %s, %s, %s" % (v(a), v(a), v(a + 8)))
                g.e("v_mul_f32 %s, %s, %s" % (v(80 + 4 * st + i), sr(S_SC), v(a)))
        if t >= 2: uv_some(2)
        g.e("v_max3_f32 v12, v80, v81, v82")
        g.e("v_max3_f32 v12, v12, v83, v84")
        g.e("v_max3_f32 v12, v12, v85, v86")
        g.e("v_max3_f32 v12, v12, v87, v124")
        cross_rows(g, "v_max_f32", 12, 13)
        g.e("v_sub_f32 v126, v124, v12")
        g.e("v_exp_f32 v126, v126")
        g.e("v_mov_b32 v124, v12")
        for i in range(8):
            g.e("v_sub_f32 %s, %s, v12" % (v(80 + i), v(80 + i)))
        for i in range(8):
            g.e("v_exp_f32 %s, %s" % (v(80 + i), v(80 + i)))
        g.e("v_mul_f32 v125, v125, v126")
        for i in range(8):
            g.e("v_add_f32 v125, v125, %s" % v(80 + i))
        for k in range(4):
            g.e("v_cvt_pk_bf16_f32 %s, %s, %s" % (v(120 + k), v(80 + 2 * k), v(81 + 2 * k)))
        for ct in range(8):
            g.e("ds_read_b64_tr_b16 %s, %s" % (v(88 + 4 * ct, 2), v(16 + ct)))
            g.e("ds_read_b64_tr_b16 %s, %s offset:32768" % (v(90 + 4 * ct, 2), v(16 + ct)))
        if t >= 2: uv_some(2)
        for i in range(32):
            g.e("v_mul_f32 %s, %s, v126" % (v(ACC + i), v(ACC + i)))
        for ct in range(8):
            g.e("s_waitcnt lgkmcnt(%d)" % (14 - 2 * ct))
            g.e("v_mfma_f32_16x16x32_bf16 %s, %s, %s, %s" % (v(ACC + 4 * ct, 4), v(88 + 4 * ct, 4), v(120, 4), v(ACC + 4 * ct, 4)))
    g.nop(7)
    g.nop(1)
    stamp(g, 4, 15)
    g.e("s_mul_i32 s98, %s, 4352" % sr(S_WAVE))
    g.e("s_movk_i32 s99, 272")
    g.e("v_mul_lo_u32 v12, %s, s99" % v(V_L16))
    g.e("v_lshl_add_u32 v12, %s, 3, v12" % v(V_G))
    g.e("v_add_u32 v12, s98, v12")
    for ct in range(8):
        g.e("v_cvt_pk_bf16_f32 %s, %s, %s" % (v(88 + 2 * ct), v(ACC + 4 * ct), v(ACC + 4 * ct + 1)))
        g.e("v_cvt_pk_bf16_f32 %s, %s, %s" % (v(89 + 2 * ct), v(ACC + 4 * ct + 2), v(ACC + 4 * ct + 3)))
        g.e("ds_write_b64 v12, %s offset:%d" % (v(88 + 2 * ct, 2), ct * 32))
    g.e("v_mul_lo_u32 v12, %s, s99" % v(V_G))
    g.e("v_lshl_add_u32 v12, %s, 4, v12" % v(V_L16))
    g.e("v_add_u32 v12, s98, v12")
    g.e("s_waitcnt lgkmcnt(0)")
    for x in range(4):
        g.e("ds_read_b128 %s, v12 offset:%d" % (v(88 + 4 * x, 4), x * 4 * 272))
    g.e("v_lshlrev_b32 v12, 11, %s" % v(V_G))
    g.e("v_lshl_add_u32 v12, %s, 4, v12" % v(V_L16))
    g.e("s_sub_u32 s98, %s, 192" % sr(S_CU))
    g.e("s_lshl_b32 s98, s98, 15")
    g.e("s_lshl_b32 s99, %s, 8" % sr(S_WAVE))
    g.e("s_add_u32 s98, s98, s99")
    g.e("s_add_u32 s98, s98, %d" % WS_PC)
    for x in range(4):
        g.e("s_waitcnt lgkmcnt(%d)" % (3 - x))
        g.e("buffer_store_dwordx4 %s, v12, %s, s98 offen sc1" % (v(88 + 4 * x, 4), sr(SRD_WS, 4)))
        g.e("s_add_u32 s98, s98, 8192")
    cross_rows(g, "v_add_f32", 125, 13)
    skip = g.newlab("PST")
    g.e("s_cmp_lg_u32 %s, 0" % sr(S_WAVE))
    g.e("s_cbranch_scc1 %s" % skip)
    g.e("v_lshlrev_b32 v12, 9, %s" % v(V_L16))
    g.e("s_sub_u32 s98, %s, 192" % sr(S_CU))
    g.e("s_lshl_b32 s98, s98, 3")
    g.e("s_add_u32 s98, s98, %d" % WS_PS)
    g.e("s_mov_b64 exec, 0xffff")
    g.e("buffer_store_dwordx2 %s, v12, %s, s98 offen sc1" % (v(124, 2), sr(SRD_WS, 4)))
    g.e("s_mov_b64 exec, -1")
    g.lab(skip)
    g.waitall()
    g.e("s_barrier")
    flag_store(g, WS_PF, S_CU, 192)
    stamp(g, 5, 15)
    def wo_b():
        g.e("s_lshl_b32 %s, %s, 8" % (sr(S_T[1]), sr(S_H)))
        g.e("s_lshl_b32 %s, %s, 7" % (sr(S_T[2]), sr(S_DH)))
        g.e("s_add_u32 %s, %s, %s" % (sr(S_T[1]), sr(S_T[1]), sr(S_T[2])))
        load_rows896(g, SRD_WO, S_T[1], 16, 128)
    skip = g.newlab("WOB")
    g.e("s_cmp_eq_u32 %s, 0" % sr(S_WAVE))
    g.e("s_cbranch_scc1 %s" % skip)
    wo_b()
    g.lab(skip)
    g.c("---- CTX ----")
    poll_flags(g, WS_PF, 64)
    stamp(g, 6, 15)
    g.q = []
    g.e("v_lshlrev_b32 v12, 3, %s" % v(V_LANE))
    g.e("s_lshl_b32 s98, %s, 9" % sr(S_H))
    g.e("s_add_u32 s98, s98, %d" % WS_PS)
    g.e("buffer_load_dwordx2 v[14:15], v12, %s, s98 offen sc1" % sr(SRD_WS, 4))
    g.e("v_lshlrev_b32 v13, 4, %s" % v(V_LANE))
    g.e("s_lshl_b32 s98, %s, 18" % sr(S_WAVE))
    g.e("s_lshl_b32 s99, %s, 11" % sr(S_H))
    g.e("s_add_u32 s98, s98, s99")
    g.e("s_lshr_b32 s99, %s, 1" % sr(S_J))
    g.e("s_lshl_b32 s99, s99, 10")
    g.e("s_add_u32 s98, s98, s99")
    g.e("s_add_u32 s98, s98, %d" % WS_PC)
    for i in range(8):
        g.e("buffer_load_dwordx4 %s, v13, %s, s98 offen sc1" % (v(64 + 4 * i, 4), sr(SRD_WS, 4)))
        g.e("s_add_u32 s98, s98, 32768")
    g.e("s_waitcnt vmcnt(8)")
    g.e("v_mov_b32 v12, v14")
    dpp_allreduce16(g, "v_max_f32", [12])
    cross_rows(g, "v_max_f32", 12, 13, both=False)
    g.e("v_sub_f32 v12, v14, v12")
    g.e("v_exp_f32 v12, v12")
    g.nop(0)
    g.e("v_mul_f32 v13, v12, v15")
    dpp_allreduce16(g, "v_add_f32", [13])
    cross_rows(g, "v_add_f32", 13, 14, both=False)
    g.e("v_rcp_f32 v13, v13")
    g.nop(0)
    g.e("v_mul_f32 v12, v12, v13")
    g.e("s_lshl_b32 s98, %s, 3" % sr(S_WAVE))
    g.nop(1)
    for i in range(8):
        g.e("v_readlane_b32 %s, v12, s98" % sr(S_O + i))
        g.e("s_add_u32 s98, s98, 1")
    for j in range(8):
        g.e("v_mov_b32 %s, 0" % v(32 + j))
    for i in range(8):
        g.e("s_waitcnt vmcnt(%d)" % (7 - i))
        for j in range(4):
            g.e("v_lshlrev_b32 v12, 16, %s" % v(64 + 4 * i + j))
            g.e("v_and_b32 v13, 0xffff0000, %s" % v(64 + 4 * i + j))
            g.e("v_fmac_f32 %s, %s, v12" % (v(32 + 2 * j), sr(S_O + i)))
            g.e("v_fmac_f32 %s, %s, v13" % (v(33 + 2 * j), sr(S_O + i)))
    skip = g.newlab("WOB0")
    g.e("s_cmp_lg_u32 %s, 0" % sr(S_WAVE))
    g.e("s_cbranch_scc1 %s" % skip)
    wo_b()
    g.lab(skip)
    g.e("s_and_b32 s98, %s, 3" % sr(S_WAVE))
    g.e("s_lshl_b32 s98, s98, 12")
    g.e("s_lshr_b32 s99, %s, 2" % sr(S_WAVE))
    g.e("s_lshl_b32 s99, s99, 11")
    g.e("s_add_u32 s98, s98, s99")
    g.e("s_add_u32 s98, s98, %d" % L_CX)
    g.e("v_lshlrev_b32 v13, 5, %s" % v(V_LANE))
    g.e("v_add_u32 v13, s98, v13")
    g.e("ds_write_b128 v13, %s" % v(32, 4))
    g.e("ds_write_b128 v13, %s offset:16" % v(36, 4))
    g.e("s_waitcnt lgkmcnt(0)")
    g.e("s_barrier")
    g.e("v_lshlrev_b32 v12, 3, v0")
    g.e("v_add_u32 v12, %d, v12" % L_CX)
    for x in range(4):
        g.e("ds_read_b64 %s, v12 offset:%d" % (v(32 + 2 * x, 2), x * 4096))
    g.e("s_waitcnt lgkmcnt(0)")
    g.e("v_add_f32 v32, v32, v34")
    g.e("v_add_f32 v33, v33, v35")
    g.e("v_add_f32 v36, v36, v38")
    g.e("v_add_f32 v37, v37, v39")
    g.e("v_add_f32 v32, v32, v36")
    g.e("v_add_f32 v33, v33, v37")
    g.e("v_cvt_pk_bf16_f32 v32, v32, v33")
    g.e("v_lshlrev_b32 v12, 2, v0")
    g.e("v_add_u32 v12, %d, v12" % L_CB)
    g.e("ds_write_b32 v12, v32")
    g.e("s_waitcnt lgkmcnt(0)")
    g.e("s_barrier")
    g.e("v_lshlrev_b32 v12, 5, %s" % v(V_G))
    g.e("s_lshl_b32 s98, %s, 7" % sr(S_WAVE))
    g.e("s_add_u32 s98, s98, %d" % L_CB)
    g.e("v_add_u32 v12, s98, v12")
    for b in range(2):
        g.e("ds_read_b128 %s, v12 offset:%d" % (v(64 + 8 * b, 4), b * 1024))
        g.e("ds_read_b128 %s, v12 offset:%d" % (v(68 + 8 * b, 4), b * 1024 + 16))
    for i in range(16):
        g.e("v_mov_b32 %s, 0" % v(32 + i))
    g.e("s_waitcnt lgkmcnt(0)")
    for k in range(8):
        r0, r1 = UV + 8 * k, UV + 8 * k + 4
        for j in range(4):
            g.e("v_perm_b32 %s, %s, %s, %s" % (v(100 + 2 * j), v(r1 + j), v(r0 + j), sr(S_PLO)))
            g.e("v_perm_b32 %s, %s, %s, %s" % (v(101 + 2 * j), v(r1 + j), v(r0 + j), sr(S_PHI)))
        for b in range(2):
            for e_ in range(8):
                g.e("v_dot2_f32_bf16 %s, %s, %s, %s" % (v(32 + 8 * b + e_), v(100 + e_), v(64 + 8 * b + k), v(32 + 8 * b + e_)))
    g.nop(3)
    transpose_reduce16(g, 32)
    g.e("v_lshrrev_b32 v12, 1, %s" % v(V_G))
    g.e("v_lshlrev_b32 v12, 9, v12")
    g.e("v_and_b32 v13, 1, %s" % v(V_G))
    g.e("v_lshl_add_u32 v12, v13, 4, v12")
    g.e("v_lshl_add_u32 v12, %s, 5, v12" % v(V_L16))
    g.e("s_lshl_b32 s98, %s, 10" % sr(S_WAVE))
    g.e("v_add_u32 v12, s98, v12")
    g.e("ds_write_b128 v12, %s offset:%d" % (v(32, 4), L_OX))
    g.e("s_waitcnt lgkmcnt(0)")
    g.e("s_barrier")
    skip = g.newlab("OBS")
    g.e("s_cmp_ge_u32 %s, 4" % sr(S_WAVE))
    g.e("s_cbranch_scc1 %s" % skip)
    g.e("v_lshlrev_b32 v12, 2, v0")
    for w in range(8):
        g.e("ds_read_b32 %s, v12 offset:%d" % (v(32 + w), L_OX + w * 1024))
    g.e("s_waitcnt lgkmcnt(0)")
    for w in range(1, 8):
        g.e("v_add_f32 v32, v32, %s" % v(32 + w))
    g.e("v_cvt_pk_bf16_f32 v32, v32, v32")
    g.e("v_lshlrev_b32 v12, 1, v0")
    g.e("ds_write_b16 v12, v32 offset:%d" % L_OB)
    g.lab(skip)
    g.e("s_waitcnt lgkmcnt(0)")
    g.e("s_barrier")
    g.e("s_waitcnt vmcnt(0)")
    preperm(g, 128, 16)
    out_gemv(g, 128, 16, L_OB, 256, 48, 32)
    stamp(g, 7, 15)

    g.e("s_sub_u32 %s, %s, 128" % (sr(S_YI), sr(S_CU)))
    g.lab("L_YPUB")
    g.nop(3)
    g.e("s_mul_i32 s98, %s, 3584" % sr(S_WAVE))
    g.e("s_add_u32 s98, s98, %d" % L_YX)
    g.e("v_lshlrev_b32 v12, 5, %s" % v(V_LANE))
    g.e("v_add_u32 v12, s98, v12")
    g.e("s_mov_b32 exec_hi, 0x00ffffff")
    for b in range(2):
        for hh in range(2):
            g.e("ds_write_b128 v12, %s offset:%d" % (v(48 + b * 8 + hh * 4, 4), b * 1792 + hh * 16))
    g.e("s_mov_b32 exec_hi, -1")
    g.e("s_waitcnt lgkmcnt(0)")
    g.e("s_barrier")
    skip = g.newlab("YS")
    g.e("v_cmp_gt_u32 vcc, 224, v0")
    g.e("s_and_saveexec_b64 %s, vcc" % sr(S_EX, 2))
    g.e("s_cbranch_execz %s" % skip)
    g.e("v_lshlrev_b32 v12, 4, v0")
    g.e("v_add_u32 v13, %d, v12" % L_YX)
    for wv in range(8):
        g.e("ds_read_b128 %s, v13 offset:%d" % (v(64 + wv * 4, 4), wv * 3584))
    g.e("s_waitcnt lgkmcnt(0)")
    for wv in range(1, 8):
        for j in range(4):
            g.e("v_add_f32 %s, %s, %s" % (v(64 + j), v(64 + j), v(64 + wv * 4 + j)))
    g.e("s_mul_i32 s98, %s, 7168" % sr(S_YI))
    g.e("s_add_u32 s98, s98, %d" % WS_Y)
    g.e("v_lshlrev_b32 v12, 5, v0")
    for j in range(4):
        g.e("v_mov_b32 %s, %s" % (v(72 + 2 * j), v(64 + j)))
        g.e("v_mov_b32 %s, %s" % (v(73 + 2 * j), sr(S_TAG)))
    g.e("buffer_store_dwordx4 v[72:75], v12, %s, s98 offen sc1" % sr(SRD_WS, 4))
    g.e("buffer_store_dwordx4 v[76:79], v12, %s, s98 offen offset:16 sc1" % sr(SRD_WS, 4))
    g.lab(skip)
    g.e("s_mov_b64 exec, %s" % sr(S_EX, 2))
    g.e("s_barrier")
    flag_store(g, WS_YF, S_YI, 0)
    stamp(g, 9, 15)
    g.e("s_branch L_END")

    g.lab("L_FINAL")
    g.c("---- FINAL ----")
    g.e("s_lshl_b32 %s, %s, 2" % (sr(S_YI), sr(S_H)))
    g.e("s_add_u32 %s, %s, %s" % (sr(S_YI), sr(S_YI), sr(S_J)))
    g.e("s_sub_u32 %s, %s, 4" % (sr(S_YI), sr(S_YI)))
    g.e("s_cmp_ge_u32 %s, 56" % sr(S_YI))
    g.e("s_cbranch_scc1 L_END")
    poll_flags(g, WS_YF + 256, 64)
    poll_flags(g, WS_YF, 64)
    stamp(g, 10, 15)
    g.e("s_mov_b32 s98, %s" % sr(S_YI))
    g.e("s_cmp_ge_u32 s98, 28")
    g.e("s_cselect_b32 s99, 1, 0")
    g.e("s_mul_i32 s100, s99, 28")
    g.e("s_sub_u32 s98, s98, s100")
    g.e("s_mul_i32 s100, s99, 3584")
    g.e("s_lshl_b32 s101, s98, 7")
    g.e("s_add_u32 s100, s100, s101")
    g.e("s_add_u32 s100, s100, %d" % WS_Y)
    g.e("v_lshrrev_b32 v12, 3, v0")
    g.e("v_bfe_u32 v13, v0, 2, 1")
    g.e("v_lshl_add_u32 v12, v13, 6, v12")
    g.e("s_movk_i32 s101, 7168")
    g.e("v_mul_lo_u32 v12, v12, s101")
    g.e("v_and_b32 v13, 3, v0")
    g.e("v_lshl_add_u32 v12, v13, 5, v12")
    lp = g.newlab("FL"); ok = g.newlab("FOK")
    g.e("s_mov_b32 %s, 0" % sr(S_SPIN))
    g.lab(lp)
    g.e("buffer_load_dwordx4 v[40:43], v12, %s, s100 offen sc1" % sr(SRD_WS, 4))
    g.e("buffer_load_dwordx4 v[44:47], v12, %s, s100 offen offset:16 sc1" % sr(SRD_WS, 4))
    g.e("s_waitcnt vmcnt(0)")
    g.e("v_xor_b32 v13, %s, v41" % sr(S_TAG))
    for r_ in (43, 45, 47):
        g.e("v_xor_b32 v14, %s, %s" % (sr(S_TAG), v(r_)))
        g.e("v_or_b32 v13, v13, v14")
    g.e("v_cmp_eq_u32 vcc, 0, v13")
    g.e("s_cmp_eq_u64 vcc, exec")
    g.e("s_cbranch_scc1 %s" % ok)
    g.e("s_add_u32 %s, %s, 1" % (sr(S_SPIN), sr(S_SPIN)))
    g.e("s_cmp_gt_u32 %s, %d" % (sr(S_SPIN), SPIN_MAX))
    g.e("s_cbranch_scc0 %s" % lp)
    g.lab(ok)
    for j in range(4):
        g.e("v_mov_b32 %s, %s" % (v(32 + j), v(40 + 2 * j)))
    g.nop(1)
    for r_ in range(32, 36):
        g.e("v_add_f32_dpp %s, %s, %s row_ror:8 row_mask:0xf bank_mask:0xf" % (v(r_), v(r_), v(r_)))
    for r_ in range(32, 36):
        cross_rows(g, "v_add_f32", r_, 13)
    g.e("v_lshlrev_b32 v12, 4, %s" % v(V_LANE))
    g.e("s_lshl_b32 s101, %s, 7" % sr(S_WAVE))
    g.e("s_add_u32 s101, s101, %d" % L_FX)
    g.e("v_add_u32 v12, s101, v12")
    g.e("s_mov_b64 exec, 0xff")
    g.e("ds_write_b128 v12, v[32:35]")
    g.e("s_mov_b64 exec, -1")
    g.e("s_waitcnt lgkmcnt(0)")
    g.e("s_barrier")
    g.e("s_cmp_lg_u32 %s, 0" % sr(S_WAVE))
    g.e("s_cbranch_scc1 L_END")
    g.e("v_and_b32 v12, 31, %s" % v(V_LANE))
    g.e("v_lshlrev_b32 v12, 2, v12")
    for wv in range(8):
        g.e("ds_read_b32 %s, v12 offset:%d" % (v(32 + wv), L_FX + wv * 128))
    g.e("s_waitcnt lgkmcnt(0)")
    for wv in range(1, 8):
        g.e("v_add_f32 v32, v32, %s" % v(32 + wv))
    g.e("v_cvt_pk_bf16_f32 v32, v32, v32")
    g.e("s_movk_i32 s101, 896")
    g.e("v_mul_lo_u32 v12, %s, s101" % v(V_G))
    g.e("v_lshl_add_u32 v12, %s, 1, v12" % v(V_L16))
    g.e("s_mul_i32 s100, s99, 1792")
    g.e("s_lshl_b32 s101, s98, 5")
    g.e("s_add_u32 s100, s100, s101")
    g.e("s_mov_b32 exec_lo, -1")
    g.e("s_mov_b32 exec_hi, 0")
    g.e("buffer_store_short v32, v12, %s, s100 offen" % sr(SRD_OUT, 4))
    g.e("s_mov_b64 exec, -1")
    stamp(g, 11, 15)
    g.e("s_cmp_lg_u32 %s, 0" % sr(S_YI))
    g.e("s_cbranch_scc1 L_END")
    g.e("v_mov_b32 v13, %s" % sr(S_TAG))
    g.e("s_mov_b64 exec, 1")
    g.e("buffer_store_dword v13, off, %s, 0 sc1" % sr(SRD_WS, 4))
    g.lab("L_END")
    g.e("s_endpgm")
    g.lines += [
        '.section .rodata,"a"',
        ".p2align 6",
        ".amdhsa_kernel %s" % KN,
        "  .amdhsa_next_free_vgpr 256",
        "  .amdhsa_next_free_sgpr 102",
        "  .amdhsa_accum_offset 256",
        "  .amdhsa_group_segment_fixed_size 0",
        "  .amdhsa_kernarg_size 112",
        "  .amdhsa_user_sgpr_count 2",
        "  .amdhsa_user_sgpr_kernarg_segment_ptr 1",
        "  .amdhsa_system_sgpr_workgroup_id_x 1",
        ".end_amdhsa_kernel",
    ]
    return "\n".join(g.lines) + "\n"

if __name__ == "__main__":
    out = sys.argv[1] if len(sys.argv) > 1 and not sys.argv[1].startswith("--") else "cdna_kernels/%s.s" % NAME
    open(out, "w").write(gen())
    print("wrote", out)
```

```python
import sys

NAME = "concat_heads__mha_block_cached__compressed_kv_cla__decode"
KN = NAME + "_kernel"

def opt(name, default):
    for a in sys.argv:
        if a.startswith("--%s=" % name):
            return int(a.split("=")[1])
    return default

WS_NONCE = 0
WS_AP = 0x600000
WS_QH = 0xA0000
WS_QL = 0xB0000
WS_QF = 0xC0000
WS_PF = 0xC1000
WS_YF = 0xC2000
WS_AF = 0xC3000
WS_PS = 0xC4000
WS_Y = 0xD0000
WS_QP = 0x10000
WS_QPF = 0xC5000
WS_PC = 0x200000
WS_SIZE = 0x10000000
WS_STAMP = 0x800000

L_TILE0 = 0
L_TILE1 = 65536
L_SX = 131072
L_QX = 139264
L_QB = 147456
L_CNT = 149504
LDS_BYTES = 149504 + 1024
L_AO = 0
L_AM = 8192
L_OX = 0
L_OB = 8192
L_OA = 8704
L_CX = 16384
L_CB = 12288
L_FX = 28672
L_YX = 32768

SPIN_MAX = opt("SPIN", 400000)
STAMPS = "--stamps" in sys.argv
D = opt("D", 4)
PRE = opt("PRE", 4)
SH = opt("SH", 64)
WS_CT = 0xC8000

class G:
    def __init__(s):
        s.lines = []
        s.q = []
        s.uid = 0
    def e(s, t):
        s.lines.append("    " + t)
    def c(s, t):
        s.lines.append("    ; " + t)
    def lab(s, n):
        s.lines.append(n + ":")
    def newlab(s, p="L"):
        s.uid += 1
        return "%s_%d" % (p, s.uid)
    def vm(s, tag, t):
        s.e(t)
        s.q.append(tag)
    def wait(s, tag):
        if tag not in s.q:
            return
        idx = max(i for i, x in enumerate(s.q) if x == tag)
        n = len(s.q) - 1 - idx
        s.e("s_waitcnt vmcnt(%d)" % min(n, 63))
        s.q = s.q[idx + 1:]
    def waitall(s):
        s.e("s_waitcnt vmcnt(0)")
        s.q = []
    def nop(s, n):
        s.e("s_nop %d" % n)

def v(i, n=1):
    return "v%d" % i if n == 1 else "v[%d:%d]" % (i, i + n - 1)
def sr(i, n=1):
    return "s%d" % i if n == 1 else "s[%d:%d]" % (i, i + n - 1)

S_WAVE, S_TAG, S_H, S_J, S_CU = 3, 4, 5, 6, 7
S_T = [8, 9, 10, 11, 12, 13, 14, 15]
S_ROLE = 16
S_CUR, S_NXT, S_UEND, S_SLAB, S_FIRST, S_VALID, S_NU = 17, 18, 19, 20, 21, 22, 23
S_BB, S_KR, S_DH, S_CKV, S_LW, S_SC = 24, 25, 26, 27, 28, 29
S_MAT, S_JMAT, S_YI = 30, 31, 32
S_QN, S_QU, S_QV = 33, 34, 35
S_SIX, S_CTR, S_MODE = 25, 26, 27
SRD_X, SRD_WQ, SRD_WO, SRD_K, SRD_V, SRD_WUV, SRD_WS, SRD_OUT, SRD_WOA = 36, 40, 44, 48, 52, 56, 60, 64, 68
S_PLO, S_PHI, S_L2E, S_SPIN = 72, 73, 74, 75
S_MK, S_M2, S_EX = 76, 78, 80
S_O = 82
V_LANE, V_L16, V_G = 1, 2, 3
RING = 192


def dpp_allreduce16(g, op, regs):
    for st in (8, 4, 2, 1):
        if len(regs) < 3:
            g.nop(1)
        for r in regs:
            g.e("%s_dpp %s, %s, %s row_ror:%d row_mask:0xf bank_mask:0xf" % (op, v(r), v(r), v(r), st))

def cross_rows(g, op, r, t, both=True):
    g.e("v_mov_b32 %s, %s" % (v(t), v(r)))
    g.nop(1)
    g.e("v_permlane16_swap_b32 %s, %s" % (v(t), v(r)))
    g.nop(1)
    g.e("%s %s, %s, %s" % (op, v(r), v(r), v(t)))
    if both:
        g.e("v_mov_b32 %s, %s" % (v(t), v(r)))
        g.nop(1)
        g.e("v_permlane32_swap_b32 %s, %s" % (v(t), v(r)))
        g.nop(1)
        g.e("%s %s, %s, %s" % (op, v(r), v(r), v(t)))

def transpose_reduce16(g, a):
    g.nop(1)
    for k in range(8):
        g.e("v_permlane32_swap_b32 %s, %s" % (v(a + k), v(a + k + 8)))
    g.nop(1)
    for k in range(8):
        g.e("v_add_f32 %s, %s, %s" % (v(a + k), v(a + k), v(a + k + 8)))
    g.nop(1)
    for k in range(4):
        g.e("v_permlane16_swap_b32 %s, %s" % (v(a + k), v(a + k + 4)))
    g.nop(1)
    for k in range(4):
        g.e("v_add_f32 %s, %s, %s" % (v(a + k), v(a + k), v(a + k + 4)))

def stamp(g, idx, vt):
    if not STAMPS:
        return
    g.e("s_memrealtime s[100:101]")
    g.e("s_lshl_b32 s98, %s, 3" % sr(S_CU))
    g.e("s_add_u32 s98, s98, %s" % sr(S_WAVE))
    g.e("s_lshl_b32 s98, s98, 7")
    g.e("s_add_u32 s98, s98, %d" % (WS_STAMP + idx * 4))
    g.e("s_waitcnt lgkmcnt(0)")
    g.e("v_mov_b32 %s, s100" % v(vt))
    g.e("s_mov_b64 exec, 1")
    g.e("buffer_store_dword %s, off, %s, s98" % (v(vt), sr(SRD_WS, 4)))
    g.e("s_mov_b64 exec, -1")

def q_job(g, gather):
    ACC, PT, XR, W = 32, 48, 56, 128
    g.c("---- Q job ----")
    g.e("s_mul_i32 %s, %s, 224" % (sr(S_T[4]), sr(S_T[0])))
    g.e("s_add_u32 %s, %s, 896" % (sr(S_T[5]), sr(S_T[4])))
    g.e("s_mul_i32 %s, %s, %d" % (sr(S_T[2]), sr(S_T[0]), 112 * 8192))
    g.e("s_lshl_b32 %s, %s, 9" % (sr(S_T[3]), sr(S_H)))
    g.e("s_add_u32 %s, %s, %s" % (sr(S_T[2]), sr(S_T[2]), sr(S_T[3])))
    g.e("s_lshl_b32 %s, %s, 8" % (sr(S_T[3]), sr(S_T[1])))
    g.e("s_add_u32 %s, %s, %s" % (sr(S_T[2]), sr(S_T[2]), sr(S_T[3])))
    g.e("s_mov_b32 %s, %d" % (sr(S_T[6]), 28 * 8192))
    g.e("v_mul_lo_u32 v12, %s, %s" % (v(V_G), sr(S_T[6])))
    g.e("v_lshl_add_u32 v12, %s, 4, v12" % v(V_L16))
    g.e("v_mul_u32_u24 v13, 56, %s" % v(V_G))
    for b in range(2):
        sb = sr(S_T[4 + b])
        g.e("buffer_load_dwordx4 %s, v13, %s, %s offen" % (v(XR + b * 14, 4), sr(SRD_X, 4), sb))
        g.e("buffer_load_dwordx4 %s, v13, %s, %s offen offset:16" % (v(XR + b * 14 + 4, 4), sr(SRD_X, 4), sb))
        g.e("buffer_load_dwordx4 %s, v13, %s, %s offen offset:32" % (v(XR + b * 14 + 8, 4), sr(SRD_X, 4), sb))
        g.e("buffer_load_dwordx2 %s, v13, %s, %s offen offset:48" % (v(XR + b * 14 + 12, 2), sr(SRD_X, 4), sb))
    for n in range(28):
        g.e("buffer_load_dwordx4 %s, v12, %s, %s offen nt" % (v(W + 4 * n, 4), sr(SRD_WQ, 4), sr(S_T[2])))
        g.e("s_add_u32 %s, %s, 8192" % (sr(S_T[2]), sr(S_T[2])))
    QB = opt("QB", 0)
    if QB == 0:
        g.e("s_barrier")
    for i in range(16):
        g.e("v_mov_b32 %s, 0" % v(ACC + i))
    for k in range(14):
        g.e("s_waitcnt vmcnt(%d)" % (26 - 2 * k))
        if QB and k == QB - 1:
            g.e("s_barrier")
        r0 = W + 8 * k
        r1 = r0 + 4
        for j in range(4):
            g.e("v_perm_b32 %s, %s, %s, %s" % (v(PT + 2 * j), v(r1 + j), v(r0 + j), sr(S_PLO)))
            g.e("v_perm_b32 %s, %s, %s, %s" % (v(PT + 2 * j + 1), v(r1 + j), v(r0 + j), sr(S_PHI)))
        for b in range(2):
            for e_ in range(8):
                g.e("v_dot2_f32_bf16 %s, %s, %s, %s" % (v(ACC + b * 8 + e_), v(PT + e_), v(XR + b * 14 + k), v(ACC + b * 8 + e_)))
    stamp(g, 12, 15)
    g.e("v_readfirstlane_b32 %s, v127" % sr(S_TAG))
    g.e("s_add_u32 %s, %s, 1" % (sr(S_TAG), sr(S_TAG)))
    g.nop(1)
    transpose_reduce16(g, ACC)
    done = g.newlab("QDONE")
    g.e("v_lshrrev_b32 v12, 1, %s" % v(V_G))
    g.e("v_lshlrev_b32 v12, 11, v12")
    g.e("v_and_b32 v13, 1, %s" % v(V_G))
    g.e("v_lshl_add_u32 v12, v13, 5, v12")
    g.e("v_lshl_add_u32 v12, %s, 6, v12" % v(V_L16))
    g.e("s_lshl_b32 s98, %s, 1" % sr(S_H))
    g.e("s_add_u32 s98, s98, %s" % sr(S_JMAT))
    g.e("s_lshl_b32 s99, s98, 5")
    g.e("s_lshl_b32 s98, s98, 2")
    g.e("s_add_u32 s98, s98, %s" % sr(S_T[0]))
    g.e("s_lshl_b32 s98, s98, 12")
    g.e("s_lshl_b32 s100, %s, 10" % sr(S_T[1]))
    g.e("s_add_u32 s98, s98, s100")
    g.e("s_add_u32 s98, s98, %d" % WS_QP)
    g.e("v_mov_b32 v40, v32")
    g.e("v_mov_b32 v41, %s" % sr(S_TAG))
    g.e("v_mov_b32 v42, v33")
    g.e("v_mov_b32 v43, %s" % sr(S_TAG))
    g.e("v_mov_b32 v44, v34")
    g.e("v_mov_b32 v45, %s" % sr(S_TAG))
    g.e("v_mov_b32 v46, v35")
    g.e("v_mov_b32 v47, %s" % sr(S_TAG))
    g.e("buffer_store_dwordx4 v[40:43], v12, %s, s98 offen sc1" % sr(SRD_WS, 4))
    g.e("buffer_store_dwordx4 v[44:47], v12, %s, s98 offen offset:16 sc1" % sr(SRD_WS, 4))
    g.e("s_lshl_b32 s100, %s, 1" % sr(S_T[0]))
    g.e("s_add_u32 s100, s100, %s" % sr(S_T[1]))
    g.e("s_lshl_b32 s100, s100, 2")
    g.e("s_add_u32 s99, s99, s100")
    g.e("s_add_u32 s99, s99, %d" % WS_QPF)
    g.e("s_mov_b64 exec, 1")
    g.e("buffer_store_dword v41, off, %s, s99 sc1" % sr(SRD_WS, 4))
    g.e("s_mov_b64 exec, -1")
    stamp(g, 13, 15)
    if gather:
        g.e("s_mov_b32 %s, 0" % sr(S_SPIN))
        g.e("v_and_b32 v15, 15, %s" % v(V_LANE))
        g.e("v_lshlrev_b32 v15, 2, v15")
        lp = g.newlab("QG"); ok = g.newlab("QGOK")
        g.e("v_lshlrev_b32 v12, 4, %s" % v(V_LANE))
        g.lab(lp)
        g.e("s_lshl_b32 s99, %s, 6" % sr(S_H))
        g.e("s_add_u32 s99, s99, %d" % WS_QPF)
        g.e("buffer_load_dword v11, v15, %s, s99 offen sc1" % sr(SRD_WS, 4))
        g.e("s_lshl_b32 s98, %s, 15" % sr(S_H))
        g.e("s_add_u32 s98, s98, %d" % WS_QP)
        g.e("s_lshl_b32 s99, %s, 11" % sr(S_BB))
        g.e("s_add_u32 s99, s99, s98")
        for rq in range(4):
            for p in range(2):
                g.e("buffer_load_dwordx4 %s, v12, %s, s99 offen offset:%d sc1" % (v(32 + rq * 8 + p * 4, 4), sr(SRD_WS, 4), p * 1024))
            g.e("s_add_u32 s99, s99, 4096")
        g.e("s_add_u32 s99, s98, 16384")
        for rq in range(4):
            for z in (1, 2):
                for p in range(2):
                    g.e("buffer_load_dwordx4 %s, v12, %s, s99 offen offset:%d sc1" % (v(32 + z * 32 + rq * 8 + p * 4, 4), sr(SRD_WS, 4), (z - 1) * 2048 + p * 1024))
            g.e("s_add_u32 s99, s99, 4096")
        g.e("s_waitcnt vmcnt(0)")
        g.e("v_xor_b32 v13, %s, v11" % sr(S_TAG))
        for r_ in range(33, 128, 2):
            g.e("v_xor_b32 v14, %s, %s" % (sr(S_TAG), v(r_)))
            g.e("v_or_b32 v13, v13, v14")
        g.e("v_cmp_eq_u32 vcc, 0, v13")
        g.e("s_cmp_eq_u64 vcc, exec")
        g.e("s_cbranch_scc1 %s" % ok)
        g.e("s_add_u32 %s, %s, 1" % (sr(S_SPIN), sr(S_SPIN)))
        g.e("s_cmp_gt_u32 %s, %d" % (sr(S_SPIN), SPIN_MAX))
        g.e("s_cbranch_scc0 %s" % lp)
        g.lab(ok)
        stamp(g, 14, 15)
        g.e("v_lshlrev_b32 v12, 2, %s" % v(V_LANE))
        g.e("v_add_u32 v13, %d, v12" % L_QB)
        g.e("s_lshl_b32 s99, %s, 9" % sr(S_BB))
        g.e("v_add_u32 v12, s99, v13")
        for z in range(3):
            for p in range(2):
                a = 32 + z * 32 + p * 4
                for o_ in (0, 2):
                    g.e("v_add_f32 %s, %s, %s" % (v(a + o_), v(a + o_), v(a + 8 + o_)))
                    g.e("v_add_f32 %s, %s, %s" % (v(a + 16 + o_), v(a + 16 + o_), v(a + 24 + o_)))
                    g.e("v_add_f32 %s, %s, %s" % (v(a + o_), v(a + o_), v(a + 16 + o_)))
                g.e("v_cvt_pk_bf16_f32 %s, %s, %s" % (v(a + 1), v(a), v(a + 2)))
                if z == 0:
                    g.e("ds_write_b32 v12, %s offset:%d" % (v(a + 1), p * 256))
                else:
                    g.e("ds_write_b32 v13, %s offset:%d" % (v(a + 1), 1024 + (z - 1) * 512 + p * 256))
        g.e("s_waitcnt lgkmcnt(0)")
    g.lab(done)

def load_rows896(g, srd, rowbase_sgpr, nrows, wreg):
    g.e("s_mul_i32 %s, %s, %d" % (sr(S_T[0]), sr(S_WAVE), nrows))
    g.e("s_add_u32 %s, %s, %s" % (sr(S_T[0]), sr(S_T[0]), sr(rowbase_sgpr)))
    g.e("s_mul_i32 %s, %s, 896" % (sr(S_T[0]), sr(S_T[0])))
    g.e("v_lshlrev_b32 v12, 4, %s" % v(V_LANE))
    g.e("s_mov_b32 exec_hi, 0x00ffffff")
    for n in range(nrows):
        if n % 4 == 0 and n > 0:
            g.e("s_add_u32 %s, %s, 3584" % (sr(S_T[0]), sr(S_T[0])))
        g.e("buffer_load_dwordx4 %s, v12, %s, %s offen offset:%d" % (v(wreg + n * 4, 4), sr(srd, 4), sr(S_T[0]), (n % 4) * 896))
    g.e("s_mov_b32 exec_hi, -1")

def preperm(g, wreg, nrows):
    for k in range(nrows // 2):
        r0 = wreg + (2 * k) * 4
        r1 = r0 + 4
        for j in range(4):
            g.e("v_perm_b32 v12, %s, %s, %s" % (v(r1 + j), v(r0 + j), sr(S_PLO)))
            g.e("v_perm_b32 %s, %s, %s, %s" % (v(r1 + j), v(r1 + j), v(r0 + j), sr(S_PHI)))
            g.e("v_mov_b32 %s, v12" % v(r0 + j))

def out_gemv(g, wreg, nrows, lds_base, bstride, Y, OP):
    g.e("s_mul_i32 %s, %s, %d" % (sr(S_T[0]), sr(S_WAVE), nrows * 2))
    g.e("s_add_u32 %s, %s, %d" % (sr(S_T[0]), sr(S_T[0]), lds_base))
    g.e("v_mov_b32 v12, %s" % sr(S_T[0]))
    npk = nrows // 2
    for b in range(2):
        for x in range(npk // 4):
            g.e("ds_read_b128 %s, v12 offset:%d" % (v(OP + b * npk + 4 * x, 4), b * bstride + 16 * x))
    for i in range(16):
        g.e("v_mov_b32 %s, 0" % v(Y + i))
    g.e("s_waitcnt lgkmcnt(0)")
    for k in range(npk):
        r0 = wreg + (2 * k) * 4
        r1 = r0 + 4
        for b in range(2):
            for j in range(4):
                g.e("v_dot2_f32_bf16 %s, %s, %s, %s" % (v(Y + b * 8 + 2 * j), v(r0 + j), v(OP + b * npk + k), v(Y + b * 8 + 2 * j)))
                g.e("v_dot2_f32_bf16 %s, %s, %s, %s" % (v(Y + b * 8 + 2 * j + 1), v(r1 + j), v(OP + b * npk + k), v(Y + b * 8 + 2 * j + 1)))

def flag_store(g, base_const, idx_sgpr, sub):
    skip = g.newlab("FLAG")
    g.e("s_cmp_lg_u32 %s, 0" % sr(S_WAVE))
    g.e("s_cbranch_scc1 %s" % skip)
    g.e("s_sub_u32 s98, %s, %d" % (sr(idx_sgpr), sub))
    g.e("s_lshl_b32 s98, s98, 2")
    g.e("s_add_u32 s98, s98, %d" % base_const)
    g.e("v_mov_b32 v13, %s" % sr(S_TAG))
    g.e("s_mov_b64 exec, 1")
    g.e("buffer_store_dword v13, off, %s, s98 sc1" % sr(SRD_WS, 4))
    g.e("s_mov_b64 exec, -1")
    g.lab(skip)

def poll_flags(g, base_sgpr_or_const, nflags, pw=0):
    lp = g.newlab("POLL"); ok = g.newlab("POLLOK")
    g.e("s_cmp_lg_u32 %s, %d" % (sr(S_WAVE), pw))
    g.e("s_cbranch_scc1 %s" % ok)
    wide = nflags > 64
    g.e("v_lshlrev_b32 v12, %d, %s" % (4 if wide else 2, v(V_LANE)))
    if wide:
        nflags //= 4
    if isinstance(base_sgpr_or_const, int):
        g.e("s_mov_b32 s98, %d" % base_sgpr_or_const)
    else:
        g.e("s_mov_b32 s98, %s" % base_sgpr_or_const)
    if nflags < 64:
        m = (1 << nflags) - 1
        g.e("s_mov_b32 exec_lo, 0x%x" % (m & 0xffffffff))
        g.e("s_mov_b32 exec_hi, 0x%x" % (m >> 32))
    g.e("s_mov_b32 %s, 0" % sr(S_SPIN))
    g.lab(lp)
    if wide:
        g.e("buffer_load_dwordx4 v[88:91], v12, %s, s98 offen sc1" % sr(SRD_WS, 4))
        g.e("s_waitcnt vmcnt(0)")
        g.e("v_cmp_eq_u32 vcc, %s, v88" % sr(S_TAG))
        for i in range(1, 4):
            g.e("v_cmp_eq_u32 %s, %s, %s" % (sr(S_M2, 2), sr(S_TAG), v(88 + i)))
            g.e("s_and_b64 vcc, vcc, %s" % sr(S_M2, 2))
    else:
        g.e("buffer_load_dword v13, v12, %s, s98 offen sc1" % sr(SRD_WS, 4))
        g.e("s_waitcnt vmcnt(0)")
        g.e("v_cmp_eq_u32 vcc, %s, v13" % sr(S_TAG))
    g.e("s_cmp_eq_u64 vcc, exec")
    g.e("s_cbranch_scc1 %s" % ok)
    g.e("s_add_u32 %s, %s, 1" % (sr(S_SPIN), sr(S_SPIN)))
    g.e("s_cmp_gt_u32 %s, %d" % (sr(S_SPIN), SPIN_MAX))
    g.e("s_cbranch_scc1 %s" % ok)
    g.e("s_sleep 4")
    g.e("s_branch %s" % lp)
    g.lab(ok)
    g.e("s_mov_b64 exec, -1")
    g.e("s_barrier")


def gen():
    g = G()
    g.lines.append("; @launch grid=(256,1,1) block=(512,1,1) lds=%d" % LDS_BYTES)
    g.lines.append('.amdgcn_target "amdgcn-amd-amdhsa--gfx950"')
    g.lines.append(".text")
    g.lines.append(".globl %s" % KN)
    g.lines.append(".p2align 8")
    g.lines.append(".type %s,@function" % KN)
    g.lab(KN)
    g.e("s_cmp_ge_u32 s2, 256")
    g.e("s_cbranch_scc1 L_END")
    if "--noxmap" not in sys.argv:
        g.e("s_and_b32 s96, s2, 7")
        g.e("s_lshr_b32 s97, s2, 3")
        g.e("s_mul_i32 s98, s96, 24")
        g.e("s_add_u32 s98, s98, s97")
        g.e("s_lshl_b32 s99, s96, 3")
        g.e("s_add_u32 s99, s99, s97")
        g.e("s_add_u32 s99, s99, 168")
        g.e("s_cmp_lt_u32 s97, 24")
        g.e("s_cselect_b32 s2, s98, s99")
    g.e("s_load_dwordx16 s[8:23], s[0:1], 0")
    g.e("s_load_dwordx8 s[24:31], s[0:1], 64")
    g.e("s_load_dwordx4 s[32:35], s[0:1], 96")
    g.e("v_and_b32 %s, 63, v0" % v(V_LANE))
    g.e("v_lshrrev_b32 v12, 6, v0")
    g.e("v_and_b32 %s, 15, v0" % v(V_L16))
    g.e("v_bfe_u32 %s, v0, 4, 2" % v(V_G))
    g.e("v_readfirstlane_b32 %s, v12" % sr(S_WAVE))
    g.e("v_mov_b32 v4, 0")
    g.e("v_mov_b32 v5, 0")
    g.e("s_mov_b32 %s, 0x05040100" % sr(S_PLO))
    g.e("s_mov_b32 %s, 0x07060302" % sr(S_PHI))
    g.e("s_mov_b32 %s, 0x3fb8aa3b" % sr(S_L2E))
    g.e("s_mov_b32 %s, 0x00010001" % sr(S_MK))
    g.e("s_mov_b32 %s, 0x00010001" % sr(S_MK + 1))
    g.e("s_mul_i32 s96, s2, 43691")
    g.e("s_lshr_b32 s96, s96, 19")
    g.e("s_mul_i32 s97, s96, 12")
    g.e("s_sub_u32 s97, s2, s97")
    g.e("s_cmp_ge_u32 s97, 8")
    g.e("s_cselect_b32 s99, 1, 0")
    g.e("s_cmp_ge_u32 s2, 192")
    g.e("s_cselect_b32 s99, 1, s99")
    g.e("s_cmp_eq_u32 s99, 0")
    g.e("s_waitcnt lgkmcnt(0)")
    def srd(d, a, b, na, nb):
        g.e("s_cselect_b32 %s, %s, %s" % (sr(d), sr(a), sr(b)))
        g.e("s_cselect_b32 %s, %s, %s" % (sr(d + 1), sr(a + 1), sr(b + 1)))
        if na == nb:
            g.e("s_mov_b32 %s, %d" % (sr(d + 2), na))
        else:
            g.e("s_mov_b32 s98, %d" % na)
            g.e("s_cselect_b32 %s, s98, %d" % (sr(d + 2), nb))
        g.e("s_mov_b32 %s, 0x00020000" % sr(d + 3))
    srd(SRD_X, 8, 18, 1792, 1792)
    srd(SRD_WQ, 14, 22, 448 * 8192, 448 * 8192)
    g.e("s_cmp_lt_u32 s2, 192")
    srd(SRD_WO, 24, 28, 1 << 23, 4096 * 896)
    srd(SRD_K, 10, 20, 1 << 26, 1 << 24)
    srd(SRD_V, 12, 26, 1 << 26, 1 << 23)
    srd(SRD_WS, 34, 34, WS_SIZE, WS_SIZE)
    srd(SRD_OUT, 30, 30, 3584, 3584)
    srd(SRD_WOA, 16, 16, 4096 * 896, 4096 * 896)
    g.e("s_cselect_b32 %s, 1, 0" % sr(S_ROLE))
    g.e("s_cselect_b32 %s, 0, 1" % sr(S_MAT))
    g.e("s_mov_b32 %s, s99" % sr(S_JMAT))
    g.e("buffer_load_dword v127, off, %s, 0 sc1" % sr(SRD_WS, 4))
    g.e("s_cbranch_scc0 L_ROLE_B0")

    g.c("==== ROLE A setup ====")
    if "--noA" in sys.argv:
        g.e("s_branch L_END")
    g.e("s_mov_b32 %s, s97" % sr(S_J))
    g.e("s_mov_b32 %s, s96" % sr(S_H))
    g.e("s_mov_b32 %s, s2" % sr(S_CU))
    g.e("s_cmp_ge_u32 %s, 6" % sr(S_J))
    g.e("s_cselect_b32 %s, 1, 0" % sr(S_BB))
    g.e("s_mul_i32 s99, %s, 6" % sr(S_BB))
    g.e("s_sub_u32 s98, %s, s99" % sr(S_J))
    g.e("s_mov_b32 %s, s98" % sr(S_SIX))
    g.e("s_mul_i32 s99, s98, %d" % (((512 - SH) // 2) * 43691))
    g.e("s_lshr_b32 s99, s99, 17")
    g.e("s_add_u32 s98, s98, 1")
    g.e("s_mul_i32 s98, s98, %d" % (((512 - SH) // 2) * 43691))
    g.e("s_lshr_b32 %s, s98, 17" % sr(S_UEND))
    g.e("s_lshl_b32 s98, %s, 4" % sr(S_BB))
    g.e("s_add_u32 s98, s98, %s" % sr(S_H))
    g.e("s_lshl_b32 %s, s98, 8" % sr(S_CTR))
    g.e("s_add_u32 %s, %s, %d" % (sr(S_CTR), sr(S_CTR), WS_CT))
    g.e("s_lshl_b32 %s, s98, 21" % sr(S_SLAB))
    g.e("s_add_u32 s100, s99, %s" % sr(S_WAVE))
    g.e("s_lshl_b32 s100, s100, 12")
    g.e("s_add_u32 %s, %s, s100" % (sr(S_CUR), sr(S_SLAB)))
    g.e("v_lshlrev_b32 v4, 10, %s" % v(V_G))
    g.e("v_lshl_add_u32 v4, %s, 4, v4" % v(V_L16))
    g.e("s_add_u32 s99, s99, 8")
    g.e("v_mov_b32 v5, %d" % L_CNT)
    g.e("v_mov_b32 v6, s99")
    g.e("v_mov_b32 v7, 0")
    g.e("ds_write_b64 v5, v[6:7]")
    stamp(g, 0, 15)
    g.e("s_and_b32 %s, %s, 3" % (sr(S_T[0]), sr(S_J)))
    g.e("s_cmp_ge_u32 %s, 4" % sr(S_J))
    g.e("s_cselect_b32 %s, 1, 0" % sr(S_T[1]))
    g.e("s_cmp_ge_u32 %s, 8" % sr(S_J))
    g.e("s_cselect_b32 %s, 0, %s" % (sr(S_T[1]), sr(S_T[1])))
    skip = g.newlab("NOQ"); skip2 = g.newlab("NOQ")
    g.e("s_cmp_ge_u32 %s, 1" % sr(S_WAVE))
    g.e("s_cbranch_scc1 %s" % skip)
    sk3 = g.newlab("NOZ")
    g.e("s_cmp_lg_u32 %s, 0" % sr(S_SIX))
    g.e("s_cbranch_scc1 %s" % sk3)
    g.e("s_mov_b64 exec, 1")
    g.e("buffer_store_dword v7, off, %s, %s sc1" % (sr(SRD_WS, 4), sr(S_CTR)))
    g.e("s_mov_b64 exec, -1")
    g.lab(sk3)
    q_job(g, True)
    g.e("s_branch %s" % skip2)
    g.lab(skip)
    g.e("s_barrier")
    g.lab(skip2)
    VOFF = [0, 512, 256, 768]
    def a_issue(slot, base):
        p = slot & 7
        if p < 4:
            g.e("buffer_load_dwordx4 %s, v4, %s, %s offen offset:%d nt" % (v(RING + 4 * slot, 4), sr(SRD_K, 4), sr(base), p * 256))
        else:
            g.e("buffer_load_dwordx4 %s, v4, %s, %s offen offset:%d nt" % (v(RING + 4 * slot, 4), sr(SRD_V, 4), sr(base), VOFF[p - 4]))
    g.e("s_mul_i32 s98, %s, %d" % (sr(S_J), 16 * 43691))
    g.e("s_lshr_b32 s98, s98, 17")
    g.e("s_add_u32 s99, %s, 1" % sr(S_J))
    g.e("s_mul_i32 s99, s99, %d" % (16 * 43691))
    g.e("s_lshr_b32 s99, s99, 17")
    g.e("s_sub_u32 %s, s99, s98" % sr(S_QN))
    g.e("s_add_u32 s98, s98, %s" % sr(S_WAVE))
    g.e("s_sub_u32 %s, s98, 2" % sr(S_QU))
    g.e("s_cmp_lt_u32 %s, 2" % sr(S_WAVE))
    g.e("s_cselect_b32 %s, 0, 1" % sr(S_QV))
    g.e("s_cmp_ge_u32 %s, s99" % sr(S_QU))
    g.e("s_cselect_b32 %s, 0, %s" % (sr(S_QV), sr(S_QV)))
    LATE = opt("LATE", 6)
    def uk_loads():
        skip = g.newlab("NOUK")
        g.e("s_cmp_eq_u32 %s, 0" % sr(S_QV))
        g.e("s_cbranch_scc1 %s" % skip)
        g.e("v_lshlrev_b32 v12, 15, %s" % v(V_G))
        g.e("v_lshl_add_u32 v12, %s, 4, v12" % v(V_L16))
        g.e("s_lshl_b32 s98, %s, 17" % sr(S_QU))
        g.e("s_lshl_b32 s99, %s, 9" % sr(S_H))
        g.e("s_add_u32 s98, s98, s99")
        for i in range(4):
            for hf in range(2):
                g.e("buffer_load_dwordx4 %s, v12, %s, s98 offen offset:%d nt" % (v(128 + 4 * (2 * i + hf), 4), sr(SRD_WO, 4), hf * 256))
            g.e("s_add_u32 s98, s98, 8192")
        g.lab(skip)
    def wo_loads():
        skip = g.newlab("NOWO")
        g.e("s_cmp_ge_u32 %s, 4" % sr(S_J))
        g.e("s_cbranch_scc1 %s" % skip)
        g.e("s_lshl_b32 %s, %s, 8" % (sr(S_T[1]), sr(S_H)))
        g.e("s_lshl_b32 %s, %s, 6" % (sr(S_T[2]), sr(S_J)))
        g.e("s_add_u32 %s, %s, %s" % (sr(S_T[1]), sr(S_T[1]), sr(S_T[2])))
        load_rows896(g, SRD_WOA, S_T[1], 8, 160)
        g.lab(skip)
    def pre_loads():
        for p in range(PRE):
            a_issue(p, S_CUR)
    if not LATE & 1: uk_loads()
    if not LATE & 2: wo_loads()
    if not LATE & 4: pre_loads()
    g.e("s_waitcnt lgkmcnt(0)")
    g.e("s_barrier")
    if LATE & 1: uk_loads()
    g.e("v_lshlrev_b32 v12, 4, %s" % v(V_L16))
    g.e("s_lshl_b32 s98, %s, 9" % sr(S_BB))
    g.e("s_add_u32 s98, s98, %d" % L_QB)
    g.e("v_add_u32 v13, s98, v12")
    g.e("ds_read_b128 v[16:19], v13")
    g.e("ds_read_b128 v[20:23], v13 offset:256")
    g.e("s_waitcnt vmcnt(%d)" % (0 if LATE & 4 else PRE))
    sk = g.newlab("TAGOK")
    g.e("s_cmp_lt_u32 %s, 1" % sr(S_WAVE))
    g.e("s_cbranch_scc1 %s" % sk)
    g.e("v_readfirstlane_b32 %s, v127" % sr(S_TAG))
    g.e("s_add_u32 %s, %s, 1" % (sr(S_TAG), sr(S_TAG)))
    g.lab(sk)
    stamp(g, 1, 15)
    skipq = g.newlab("NOQABS")
    g.e("s_cmp_eq_u32 %s, 0" % sr(S_QV))
    g.e("s_cbranch_scc1 %s" % skipq)
    g.c("---- QABS on A CUs ----")
    g.e("v_add_u32 v13, %d, v12" % (L_QB + 1024))
    for b in range(2):
        for hf in range(2):
            g.e("ds_read_b128 %s, v13 offset:%d" % (v(64 + b * 8 + hf * 4, 4), b * 512 + hf * 256))
    g.e("s_waitcnt lgkmcnt(0)")
    for i in range(4):
        ra = 128 + 8 * i
        for b in range(2):
            d = 32 + b * 4 + i
            Q = 64 + b * 8
            g.e("v_dot2_f32_bf16 %s, %s, %s, 0" % (v(d), v(ra), v(Q)))
            for j in range(1, 8):
                g.e("v_dot2_f32_bf16 %s, %s, %s, %s" % (v(d), v(ra + j), v(Q + j), v(d)))
    g.nop(2)
    dpp_allreduce16(g, "v_add_f32", list(range(32, 40)))
    for i in range(1, 4):
        g.e("s_lshl_b64 %s, %s, %d" % (sr(S_M2, 2), sr(S_MK, 2), i))
        g.e("v_cndmask_b32 v32, v32, %s, %s" % (v(32 + i), sr(S_M2, 2)))
        g.e("v_cndmask_b32 v36, v36, %s, %s" % (v(36 + i), sr(S_M2, 2)))
    g.e("v_lshl_add_u32 v14, %s, 2, %s" % (v(V_G), v(V_L16)))
    g.e("s_lshl_b32 s99, %s, 4" % sr(S_QU))
    g.e("s_and_b32 s98, s99, 255")
    g.e("v_add_u32 v14, s98, v14")
    g.e("v_and_b32 v40, 7, v14")
    g.e("v_lshlrev_b32 v40, 1, v40")
    g.e("v_bfe_u32 v41, v14, 3, 1")
    g.e("v_lshrrev_b32 v42, 6, v14")
    g.e("v_lshl_add_u32 v41, v42, 1, v41")
    g.e("v_lshl_add_u32 v40, v41, 11, v40")
    g.e("v_bfe_u32 v41, v14, 4, 2")
    g.e("v_lshl_add_u32 v14, v41, 8, v40")
    g.e("s_lshr_b32 s98, s99, 8")
    g.e("s_lshl_b32 s98, s98, 14")
    g.e("s_lshl_b32 s99, %s, 4" % sr(S_H))
    g.e("s_add_u32 s98, s98, s99")
    for b in range(2):
        x = 32 + 4 * b
        g.e("v_cvt_pk_bf16_f32 %s, %s, %s" % (v(40 + 2 * b), v(x), v(x)))
        g.e("v_lshlrev_b32 %s, 16, %s" % (v(41 + 2 * b), v(40 + 2 * b)))
        g.e("v_sub_f32 %s, %s, %s" % (v(41 + 2 * b), v(x), v(41 + 2 * b)))
        g.e("v_cvt_pk_bf16_f32 %s, %s, %s" % (v(41 + 2 * b), v(41 + 2 * b), v(41 + 2 * b)))
        g.e("s_add_u32 s99, s98, %d" % (WS_QH + b * 65536))
        g.e("s_add_u32 s100, s98, %d" % (WS_QH + b * 65536 + 1024))
        g.e("s_mov_b32 exec_lo, 0x000f000f")
        g.e("s_mov_b32 exec_hi, 0x000f000f")
        g.e("buffer_store_short %s, v14, %s, s99 offen sc1" % (v(40 + 2 * b), sr(SRD_WS, 4)))
        g.e("buffer_store_short %s, v14, %s, s100 offen sc1" % (v(41 + 2 * b), sr(SRD_WS, 4)))
        g.e("s_mov_b64 exec, -1")
    g.e("v_mov_b32 v7, 1")
    g.e("s_waitcnt vmcnt(0)")
    g.e("s_mov_b64 exec, 1")
    g.e("ds_add_rtn_u32 v6, v5, v7 offset:4")
    g.e("s_waitcnt lgkmcnt(0)")
    g.e("v_readfirstlane_b32 s98, v6")
    g.e("s_add_u32 s98, s98, 1")
    g.e("s_cmp_lg_u32 s98, %s" % sr(S_QN))
    sk2 = g.newlab("QAF")
    g.e("s_cbranch_scc1 %s" % sk2)
    g.e("s_lshl_b32 s98, %s, 2" % sr(S_CU))
    g.e("s_add_u32 s98, s98, %d" % WS_QF)
    g.e("v_mov_b32 v13, %s" % sr(S_TAG))
    g.e("buffer_store_dword v13, off, %s, s98 sc1" % sr(SRD_WS, 4))
    g.lab(sk2)
    g.e("s_mov_b64 exec, -1")
    stamp(g, 5, 15)
    g.lab(skipq)
    if LATE & 2: wo_loads()
    if LATE & 4: pre_loads()
    g.e("s_waitcnt lgkmcnt(0)")
    g.e("s_branch L_A_MAIN")

    g.lab("L_ROLE_B0")
    g.q = []
    g.c("==== ROLE B setup ====")
    g.e("s_sub_u32 s99, s2, 192")
    g.e("s_lshr_b32 %s, s99, 2" % sr(S_H))
    g.e("s_and_b32 %s, s99, 3" % sr(S_J))
    g.e("s_mov_b32 %s, s2" % sr(S_CU))
    g.e("s_lshr_b32 %s, s99, 5" % sr(S_BB))
    g.e("s_and_b32 %s, s99, 31" % sr(S_KR))
    g.e("s_and_b32 %s, %s, 1" % (sr(S_DH), sr(S_J)))
    stamp(g, 0, 15)
    g.e("s_mov_b32 %s, %s" % (sr(S_T[0]), sr(S_J)))
    g.e("s_mov_b32 %s, 1" % sr(S_T[1]))
    skip = g.newlab("NOQB"); skip2 = g.newlab("NOQB")
    g.e("s_cmp_ge_u32 %s, 1" % sr(S_WAVE))
    g.e("s_cbranch_scc1 %s" % skip)
    q_job(g, False)
    g.e("s_branch %s" % skip2)
    g.lab(skip)
    g.e("s_barrier")
    g.lab(skip2)
    g.e("s_branch L_ROLE_B")

    g.lab("L_A_MAIN")
    g.c("================ ROLE A main ================")
    for i in range(16):
        g.e("v_mov_b32 %s, 0" % v(32 + i))
    g.e("v_mov_b32 v8, 0xff800000")
    g.e("v_mov_b32 v9, 0")
    g.e("v_mov_b32 v7, 1")
    g.e("s_mov_b32 %s, %d" % (sr(S_FIRST), (PRE - D) // 2))
    g.e("s_mov_b32 %s, 1" % sr(S_VALID))
    g.e("s_mov_b32 %s, 0" % sr(S_MODE))
    g.e("s_mov_b32 %s, 0x3db8aa3b" % sr(S_SC))
    Q = 16
    assert D <= 6 and PRE <= 8
    def unit_body(s0):
        o0 = 8 - s0
        sk = g.newlab("GR"); sk2 = g.newlab("GR")
        g.e("s_mov_b64 exec, 1")
        g.e("s_cmp_lg_u32 %s, 0" % sr(S_MODE))
        g.e("s_cbranch_scc1 %s" % sk)
        g.e("ds_add_rtn_u32 v6, v5, v7")
        g.e("s_branch %s" % sk2)
        g.lab(sk)
        g.e("v_mov_b32 v6, 1")
        g.e("buffer_atomic_add v6, off, %s, %s sc0 sc1" % (sr(SRD_WS, 4), sr(S_CTR)))
        g.lab(sk2)
        g.e("s_mov_b64 exec, -1")
        def resolve():
            gl = g.newlab("RG"); fin = g.newlab("RF"); loc = g.newlab("RL")
            g.e("s_waitcnt vmcnt(2) lgkmcnt(0)")
            g.e("v_readfirstlane_b32 %s, v6" % sr(S_NU))
            g.e("s_cmp_lg_u32 %s, 0" % sr(S_MODE))
            g.e("s_cbranch_scc1 %s" % gl)
            g.e("s_add_u32 s98, %s, 8" % sr(S_NU))
            g.e("s_cmp_ge_u32 s98, %s" % sr(S_UEND))
            g.e("s_cselect_b32 %s, 1, 0" % sr(S_MODE))
            g.e("s_cmp_lt_u32 %s, %s" % (sr(S_NU), sr(S_UEND)))
            g.e("s_cbranch_scc1 %s" % fin)
            g.e("s_mov_b64 exec, 1")
            g.e("v_mov_b32 v6, 1")
            g.e("buffer_atomic_add v6, off, %s, %s sc0 sc1" % (sr(SRD_WS, 4), sr(S_CTR)))
            g.e("s_mov_b64 exec, -1")
            g.e("s_waitcnt vmcnt(0)")
            g.e("v_readfirstlane_b32 %s, v6" % sr(S_NU))
            g.lab(gl)
            g.e("s_min_u32 %s, %s, 4096" % (sr(S_NU), sr(S_NU)))
            g.e("s_add_u32 %s, %s, %d" % (sr(S_NU), sr(S_NU), 512 - SH))
            g.e("s_cmp_lt_u32 %s, 512" % sr(S_NU))
            g.e("s_cselect_b32 %s, 1, 0" % sr(S_VALID))
            g.lab(fin)
            g.e("s_lshl_b32 %s, %s, 12" % (sr(S_NXT), sr(S_NU)))
            g.e("s_add_u32 %s, %s, %s" % (sr(S_NXT), sr(S_NXT), sr(S_SLAB)))
        def step_wait(c):
            g.e("s_waitcnt vmcnt(%d)" % (D - 2))
            if 2 * c + D - 1 >= 8:
                sk = g.newlab("W")
                g.e("s_cmp_lg_u32 %s, 0" % sr(S_VALID))
                g.e("s_cbranch_scc1 %s" % sk)
                g.e("s_waitcnt vmcnt(%d)" % min(D - 2, 6 - 2 * c))
                g.lab(sk)
        def step_issue(c):
            p = 2 * c + D
            sk = g.newlab("I"); sk2 = g.newlab("I")
            g.e("s_cmp_eq_u32 %s, 0" % sr(S_FIRST))
            g.e("s_cbranch_scc1 %s" % sk2)
            g.e("s_sub_u32 %s, %s, 1" % (sr(S_FIRST), sr(S_FIRST)))
            g.e("s_branch %s" % sk)
            g.lab(sk2)
            if p < 8:
                a_issue(s0 + p, S_CUR); a_issue(s0 + p + 1, S_CUR)
            else:
                g.e("s_cmp_eq_u32 %s, 0" % sr(S_VALID))
                g.e("s_cbranch_scc1 %s" % sk)
                a_issue(o0 + p - 8, S_NXT); a_issue(o0 + p - 7, S_NXT)
            g.lab(sk)
        for c in range(2):
            step_wait(c)
            ra, rb_ = RING + 4 * s0 + 8 * c, RING + 4 * s0 + 8 * c + 4
            g.e("v_dot2_f32_bf16 %s, %s, %s, 0" % (v(108 + c), v(ra), v(Q)))
            g.e("v_dot2_f32_bf16 %s, %s, %s, 0" % (v(112 + c), v(rb_), v(Q + 4)))
            for j in range(1, 4):
                g.e("v_dot2_f32_bf16 %s, %s, %s, %s" % (v(108 + c), v(ra + j), v(Q + j), v(108 + c)))
                g.e("v_dot2_f32_bf16 %s, %s, %s, %s" % (v(112 + c), v(rb_ + j), v(Q + 4 + j), v(112 + c)))
            if c == 1:
                resolve()
            step_issue(c)
        g.nop(2)
        g.e("v_add_f32 v108, v108, v112")
        g.e("v_add_f32 v109, v109, v113")
        dpp_allreduce16(g, "v_add_f32", [108, 109])
        g.e("v_cvt_pk_bf16_f32 v112, v108, v109")
        g.e("v_lshlrev_b32 v108, 16, v112")
        g.e("v_and_b32 v109, 0xffff0000, v112")
        g.e("v_mul_f32 v108, %s, v108" % sr(S_SC))
        g.e("v_mul_f32 v109, %s, v109" % sr(S_SC))
        g.e("v_max3_f32 v10, v108, v109, v8")
        g.e("v_cmp_gt_f32 vcc, v10, v8")
        g.e("v_sub_f32 v108, v108, v10")
        g.e("v_sub_f32 v109, v109, v10")
        g.e("v_exp_f32 v108, v108")
        g.e("v_exp_f32 v109, v109")
        sk = g.newlab("NORS")
        g.e("s_cbranch_vccz %s" % sk)
        g.e("v_sub_f32 v11, v8, v10")
        g.e("v_exp_f32 v11, v11")
        g.e("v_mov_b32 v8, v10")
        g.e("v_mul_f32 v9, v9, v11")
        for i in range(16):
            g.e("v_mul_f32 %s, %s, v11" % (v(32 + i), v(32 + i)))
        g.lab(sk)
        g.e("v_cvt_pk_bf16_f32 v96, v108, v109")
        g.e("v_add_f32 v9, v9, v108")
        g.e("v_add_f32 v9, v9, v109")
        for c in range(2, 4):
            step_wait(c)
            r0, r1 = RING + 4 * s0 + 8 * c, RING + 4 * s0 + 8 * c + 4
            hf = c - 2
            for j in range(4):
                g.e("v_perm_b32 %s, %s, %s, %s" % (v(100 + 2 * j), v(r1 + j), v(r0 + j), sr(S_PLO)))
                g.e("v_perm_b32 %s, %s, %s, %s" % (v(101 + 2 * j), v(r1 + j), v(r0 + j), sr(S_PHI)))
            step_issue(c)
            for e_ in range(8):
                g.e("v_dot2_f32_bf16 %s, %s, v96, %s" % (v(32 + 8 * hf + e_), v(100 + e_), v(32 + 8 * hf + e_)))
        g.e("s_cmp_eq_u32 %s, 0" % sr(S_VALID))
        g.e("s_cbranch_scc1 A_DONE")
        g.e("s_mov_b32 %s, %s" % (sr(S_CUR), sr(S_NXT)))
    g.lab("A_LOOP")
    unit_body(0)
    unit_body(8)
    g.e("s_branch A_LOOP")
    g.lab("A_DONE")
    g.e("s_waitcnt lgkmcnt(0)")
    stamp(g, 2, 15)
    g.e("v_mov_b32 v10, v8")
    cross_rows(g, "v_max_f32", 10, 12)
    g.e("v_sub_f32 v11, v8, v10")
    g.e("v_exp_f32 v11, v11")
    g.nop(0)
    g.e("v_mul_f32 v9, v9, v11")
    for i in range(16):
        g.e("v_mul_f32 %s, %s, v11" % (v(32 + i), v(32 + i)))
    g.e("v_mov_b32 v11, v9")
    cross_rows(g, "v_add_f32", 11, 12)
    transpose_reduce16(g, 32)
    g.e("v_lshrrev_b32 v12, 1, %s" % v(V_G))
    g.e("v_lshlrev_b32 v12, 9, v12")
    g.e("v_and_b32 v13, 1, %s" % v(V_G))
    g.e("v_lshl_add_u32 v12, v13, 4, v12")
    g.e("v_lshl_add_u32 v12, %s, 5, v12" % v(V_L16))
    g.e("s_lshl_b32 s98, %s, 10" % sr(S_WAVE))
    g.e("v_add_u32 v12, s98, v12")
    g.e("ds_write_b128 v12, %s offset:%d" % (v(32, 4), L_AO))
    g.e("s_lshl_b32 s98, %s, 3" % sr(S_WAVE))
    g.e("v_mov_b32 v12, s98")
    g.e("s_mov_b64 exec, 1")
    g.e("ds_write_b64 v12, v[10:11] offset:%d" % L_AM)
    g.e("s_mov_b64 exec, -1")
    g.e("s_waitcnt lgkmcnt(0)")
    g.e("s_barrier")
    skip = g.newlab("ACOMB")
    g.e("s_cmp_ge_u32 %s, 4" % sr(S_WAVE))
    g.e("s_cbranch_scc1 %s" % skip)
    g.e("v_lshlrev_b32 v12, 2, v0")
    g.e("v_mov_b32 v13, 0")
    for w in range(8):
        g.e("ds_read_b32 %s, v12 offset:%d" % (v(32 + w), L_AO + w * 1024))
    for x in range(4):
        g.e("ds_read_b128 %s, v13 offset:%d" % (v(48 + 4 * x, 4), L_AM + 16 * x))
    g.e("s_waitcnt lgkmcnt(0)")
    g.e("v_max3_f32 v10, v48, v50, v52")
    g.e("v_max3_f32 v10, v10, v54, v56")
    g.e("v_max3_f32 v10, v10, v58, v60")
    g.e("v_max_f32 v10, v10, v62")
    for w in range(8):
        g.e("v_sub_f32 %s, %s, v10" % (v(48 + 2 * w), v(48 + 2 * w)))
    for w in range(8):
        g.e("v_exp_f32 %s, %s" % (v(48 + 2 * w), v(48 + 2 * w)))
    g.nop(0)
    g.e("v_mul_f32 v14, v32, v48")
    g.e("v_mul_f32 v11, v49, v48")
    for w in range(1, 8):
        g.e("v_fmac_f32 v14, %s, %s" % (v(32 + w), v(48 + 2 * w)))
        g.e("v_fmac_f32 v11, %s, %s" % (v(49 + 2 * w), v(48 + 2 * w)))
    g.e("s_lshl_b32 s98, %s, 12" % sr(S_CU))
    g.e("s_add_u32 s98, s98, %d" % WS_AP)
    g.e("v_mov_b32 v15, %s" % sr(S_TAG))
    g.e("v_lshlrev_b32 v12, 3, v0")
    g.e("buffer_store_dwordx2 v[14:15], v12, %s, s98 offen sc1" % sr(SRD_WS, 4))
    g.e("s_cmp_lg_u32 %s, 0" % sr(S_WAVE))
    g.e("s_cbranch_scc1 %s" % skip)
    g.e("v_mov_b32 v32, v10")
    g.e("v_mov_b32 v33, %s" % sr(S_TAG))
    g.e("v_mov_b32 v34, v11")
    g.e("v_mov_b32 v35, %s" % sr(S_TAG))
    g.e("s_mov_b64 exec, 1")
    g.e("buffer_store_dwordx4 v[32:35], off, %s, s98 offset:2048 sc1" % sr(SRD_WS, 4))
    g.e("s_mov_b64 exec, -1")
    g.lab(skip)
    g.e("s_barrier")
    flag_store(g, WS_AF, S_CU, 0)
    stamp(g, 3, 15)
    g.e("s_cmp_ge_u32 %s, 8" % sr(S_J))
    g.e("s_cbranch_scc1 L_END")
    g.e("s_cmp_ge_u32 %s, 4" % sr(S_J))
    g.e("s_cbranch_scc1 L_FINAL")
    g.c("---- A combine (CUs j<4): rows h*256+64j ----")
    preperm(g, 160, 8)
    g.e("s_mul_i32 s99, %s, 48" % sr(S_H))
    g.e("s_add_u32 s99, s99, %d" % WS_AF)
    poll_flags(g, "s99", 12)
    stamp(g, 4, 15)
    skip = g.newlab("ACB")
    g.e("s_cmp_ge_u32 %s, 2" % sr(S_WAVE))
    g.e("s_cbranch_scc1 %s" % skip)
    lp = g.newlab("ACL"); ok = g.newlab("ACOK")
    g.e("s_mov_b32 %s, 0" % sr(S_SPIN))
    g.e("s_lshl_b32 s99, %s, 9" % sr(S_J))
    g.e("v_lshlrev_b32 v12, 3, %s" % v(V_LANE))
    g.e("v_add_u32 v12, s99, v12")
    g.lab(lp)
    g.e("s_mul_i32 s98, %s, 12" % sr(S_H))
    g.e("s_mul_i32 s99, %s, 6" % sr(S_WAVE))
    g.e("s_add_u32 s98, s98, s99")
    g.e("s_lshl_b32 s98, s98, 12")
    g.e("s_add_u32 s98, s98, %d" % WS_AP)
    for s_ in range(6):
        g.e("buffer_load_dwordx2 %s, v12, %s, s98 offen sc1" % (v(32 + 2 * s_, 2), sr(SRD_WS, 4)))
        g.e("buffer_load_dwordx4 %s, off, %s, s98 offset:2048 sc1" % (v(80 + 4 * s_, 4), sr(SRD_WS, 4)))
        g.e("s_add_u32 s98, s98, 4096")
    g.e("s_waitcnt vmcnt(0)")
    g.e("v_xor_b32 v13, %s, v33" % sr(S_TAG))
    for r_ in list(range(35, 44, 2)) + list(range(81, 104, 2)):
        g.e("v_xor_b32 v14, %s, %s" % (sr(S_TAG), v(r_)))
        g.e("v_or_b32 v13, v13, v14")
    g.e("v_cmp_eq_u32 vcc, 0, v13")
    g.e("s_cmp_eq_u64 vcc, exec")
    g.e("s_cbranch_scc1 %s" % ok)
    g.e("s_add_u32 %s, %s, 1" % (sr(S_SPIN), sr(S_SPIN)))
    g.e("s_cmp_gt_u32 %s, %d" % (sr(S_SPIN), SPIN_MAX))
    g.e("s_cbranch_scc0 %s" % lp)
    g.lab(ok)
    g.e("v_max3_f32 v10, v80, v84, v88")
    g.e("v_max3_f32 v10, v10, v92, v96")
    g.e("v_max_f32 v10, v10, v100")
    for s_ in range(6):
        g.e("v_sub_f32 %s, %s, v10" % (v(80 + 4 * s_), v(80 + 4 * s_)))
    for s_ in range(6):
        g.e("v_exp_f32 %s, %s" % (v(80 + 4 * s_), v(80 + 4 * s_)))
    g.nop(0)
    g.e("v_mul_f32 v14, v32, v80")
    g.e("v_mul_f32 v11, v82, v80")
    for s_ in range(1, 6):
        g.e("v_fmac_f32 v14, %s, %s" % (v(32 + 2 * s_), v(80 + 4 * s_)))
        g.e("v_fmac_f32 v11, %s, %s" % (v(82 + 4 * s_), v(80 + 4 * s_)))
    g.e("v_rcp_f32 v11, v11")
    g.nop(0)
    g.e("v_mul_f32 v14, v14, v11")
    g.e("v_cvt_pk_bf16_f32 v14, v14, v14")
    g.e("v_lshlrev_b32 v12, 1, v0")
    g.e("ds_write_b16 v12, v14 offset:%d" % L_OA)
    g.lab(skip)
    g.e("s_waitcnt lgkmcnt(0)")
    g.e("s_barrier")
    out_gemv(g, 160, 8, L_OA, 128, 48, 32)
    g.e("s_lshl_b32 %s, %s, 2" % (sr(S_YI), sr(S_H)))
    g.e("s_add_u32 %s, %s, %s" % (sr(S_YI), sr(S_YI), sr(S_J)))
    g.e("s_branch L_YPUB")

    g.lab("L_ROLE_B")
    g.c("================ ROLE B main ================")
    if "--noB" in sys.argv:
        g.e("s_branch L_END")
    for i in range(4):
        g.e("s_lshl_b32 s98, %s, 2" % sr(S_WAVE))
        g.e("s_add_u32 s98, s98, %d" % i)
        g.e("s_and_b32 s98, s98, 15")
        g.e("s_and_b32 s99, s98, 7")
        g.e("s_lshl_b32 s99, s99, 1")
        g.e("s_lshr_b32 s98, s98, 3")
        g.e("s_or_b32 s98, s98, s99")
        g.e("v_xor_b32 %s, s98, %s" % (v(8 + i), v(V_LANE)))
        g.e("v_lshlrev_b32 %s, 4, %s" % (v(8 + i), v(8 + i)))
    g.e("s_lshl_b32 s98, %s, 12" % sr(S_BB))
    g.e("s_lshl_b32 s99, %s, 7" % sr(S_KR))
    g.e("s_add_u32 s98, s98, s99")
    g.e("s_lshl_b32 s99, %s, 2" % sr(S_WAVE))
    g.e("s_add_u32 s98, s98, s99")
    g.e("s_lshl_b32 %s, s98, 11" % sr(S_CKV))
    g.e("s_lshl_b32 %s, %s, 13" % (sr(S_LW), sr(S_WAVE)))
    def dma_tile(t):
        buf = L_TILE0 if t % 2 == 0 else L_TILE1
        for i in range(4):
            for hf in range(2):
                g.e("s_add_u32 s98, %s, %d" % (sr(S_LW), buf + i * 2048 + hf * 1024))
                g.e("s_mov_b32 m0, s98")
                g.e("s_add_u32 s99, %s, %d" % (sr(S_CKV), t * 65536 + i * 2048 + hf * 1024))
                g.vm("dma%d" % t, "buffer_load_dwordx4 %s, %s, s99 offen nt lds" % (v(8 + i), sr(SRD_K, 4)))
    dma_tile(0)
    dma_tile(1)
    for t in (2, 3):
        for i in range(4):
            for hf in range(2):
                g.e("s_add_u32 s99, %s, %d" % (sr(S_CKV), t * 65536 + i * 2048 + hf * 1024))
                g.vm("rt%d" % t, "buffer_load_dwordx4 %s, %s, %s, s99 offen nt" % (v(192 + 32 * (t - 2) + 4 * (2 * i + hf), 4), v(8 + i), sr(SRD_K, 4)))
    g.e("v_lshlrev_b32 v31, 4, %s" % v(V_LANE))
    g.e("v_add_u32 v31, %s, v31" % sr(S_LW))
    UV = 192
    uvn = [0]
    def uv_setup():
        g.e("v_lshlrev_b32 v30, 17, %s" % v(V_G))
        g.e("v_lshl_add_u32 v30, %s, 4, v30" % v(V_L16))
        g.e("s_lshr_b32 s98, %s, 1" % sr(S_J))
        g.e("s_lshl_b32 s98, s98, 9")
        g.e("s_lshl_b32 s99, %s, 6" % sr(S_WAVE))
        g.e("s_add_u32 s98, s98, s99")
        g.e("s_lshl_b32 s98, s98, 13")
        g.e("s_lshl_b32 s99, %s, 9" % sr(S_H))
        g.e("s_add_u32 s98, s98, s99")
        g.e("s_lshl_b32 s99, %s, 8" % sr(S_DH))
        g.e("s_add_u32 %s, s98, s99" % sr(S_QU))
    def uv_some(k):
        for _ in range(k):
            n = uvn[0]
            if n >= 16:
                return
            g.e("buffer_load_dwordx4 %s, v30, %s, %s offen nt" % (v(UV + 4 * n, 4), sr(SRD_V, 4), sr(S_QU)))
            g.e("s_add_u32 %s, %s, 8192" % (sr(S_QU), sr(S_QU)))
            uvn[0] += 1
    uv_setup()
    g.e("v_and_b32 v12, 7, %s" % v(V_L16))
    g.e("v_lshlrev_b32 v12, 1, v12")
    g.e("v_lshrrev_b32 v13, 3, %s" % v(V_L16))
    g.e("v_or_b32 v12, v12, v13")
    g.e("v_lshlrev_b32 v13, 1, %s" % v(V_G))
    g.e("v_xor_b32 v12, v12, v13")
    g.e("s_lshr_b32 s98, %s, 2" % sr(S_WAVE))
    g.e("s_lshl_b32 s98, s98, 15")
    g.e("s_and_b32 s99, %s, 3" % sr(S_WAVE))
    g.e("s_lshl_b32 s99, s99, 9")
    g.e("s_add_u32 s98, s98, s99")
    g.e("v_lshlrev_b32 v13, 11, %s" % v(V_L16))
    g.e("v_add_u32 v13, s98, v13")
    for x, X in enumerate((0, 1, 8, 9)):
        g.e("v_xor_b32 v14, %d, v12" % X)
        g.e("v_lshl_add_u32 %s, v14, 4, v13" % v(4 + x))
    g.e("v_lshrrev_b32 v12, 2, %s" % v(V_L16))
    g.e("v_lshl_add_u32 v12, %s, 2, v12" % v(V_G))
    g.e("v_and_b32 v13, 7, v12")
    g.e("v_lshlrev_b32 v13, 1, v13")
    g.e("v_lshrrev_b32 v14, 3, v12")
    g.e("v_or_b32 v13, v13, v14")
    g.e("v_bfe_u32 v14, %s, 1, 1" % v(V_L16))
    g.e("v_xor_b32 v13, v13, v14")
    g.e("v_lshlrev_b32 v12, 11, v12")
    g.e("v_and_b32 v14, 1, %s" % v(V_L16))
    g.e("v_lshl_add_u32 v12, v14, 3, v12")
    g.e("s_lshl_b32 s98, %s, 8" % sr(S_WAVE))
    g.e("v_add_u32 v12, s98, v12")
    for ct in range(8):
        g.e("v_xor_b32 v14, %d, v13" % (2 * ct))
        g.e("v_lshl_add_u32 %s, v14, 4, v12" % v(16 + ct))
    g.e("v_lshlrev_b32 v29, 4, %s" % v(V_LANE))
    g.e("v_add_u32 v29, %d, v29" % L_SX)
    g.e("s_lshl_b32 s98, %s, 10" % sr(S_WAVE))
    g.e("v_add_u32 v28, s98, v29")
    ACC = 32
    for i in range(32):
        g.e("v_mov_b32 %s, 0" % v(ACC + i))
    g.e("v_mov_b32 v124, 0xff800000")
    g.e("v_mov_b32 v125, 0")
    g.e("s_mov_b32 %s, 0x3db8aa3b" % sr(S_SC))
    g.e("s_waitcnt vmcnt(32)")
    g.e("v_readfirstlane_b32 %s, v127" % sr(S_TAG))
    g.e("s_add_u32 %s, %s, 1" % (sr(S_TAG), sr(S_TAG)))
    stamp(g, 2, 15)
    if "--ckvtest" in sys.argv:
        g.e("s_waitcnt vmcnt(16)")
        stamp(g, 3, 15)
        g.e("s_waitcnt vmcnt(0)")
        stamp(g, 4, 15)
        g.e("s_branch L_END")
    poll_flags(g, WS_QF, 192, pw=4)
    stamp(g, 3, 15)

    QF = 128
    g.c("---- ATT B ----")
    g.e("v_lshlrev_b32 v12, 4, %s" % v(V_LANE))
    g.e("s_and_b32 s98, %s, 3" % sr(S_WAVE))
    g.e("s_lshl_b32 s98, s98, 14")
    g.e("s_lshl_b32 s99, %s, 16" % sr(S_BB))
    g.e("s_add_u32 s98, s98, s99")
    g.e("s_add_u32 s98, s98, %d" % WS_QH)
    for ks in range(8):
        g.vm("qf", "buffer_load_dwordx4 %s, v12, %s, s98 offen offset:%d sc1" % (v(QF + 8 * ks, 4), sr(SRD_WS, 4), (ks & 1) * 2048))
        g.vm("qf", "buffer_load_dwordx4 %s, v12, %s, s98 offen offset:%d sc1" % (v(QF + 8 * ks + 4, 4), sr(SRD_WS, 4), (ks & 1) * 2048 + 1024))
        if ks & 1:
            g.e("s_add_u32 s98, s98, 4096")
    g.wait("qf")
    stamp(g, 16, 15)
    for t in range(4):
        g.c("tile %d" % t)
        if t: stamp(g, 16 + 3 * t, 15)
        g.e("s_waitcnt lgkmcnt(0)")
        g.e("s_barrier")
        if t >= 1 and t + 1 < 4:
            if t == 2:
                g.e("v_add_u32 v31, 0x10000, v31")
            for x in range(8):
                g.e("ds_write_b128 v31, %s offset:%d" % (v(192 + 32 * (t - 1) + 4 * x, 4), x * 1024))
        if t >= 1:
            op = "v_add_u32" if t % 2 == 1 else "v_subrev_u32"
            for r_ in list(range(4, 8)) + list(range(16, 24)):
                g.e("%s %s, 0x10000, %s" % (op, v(r_), v(r_)))
        if t >= 2: uv_some(2)
        for i in range(8):
            g.e("v_mov_b32 %s, 0" % v(80 + i))
        for ks in range(8):
            g.e("ds_read_b128 %s, %s offset:%d" % (v(88 + 4 * ks, 4), v(4 + (ks & 3)), (ks >> 2) * 256))
        for ks in range(8):
            g.e("s_waitcnt lgkmcnt(%d)" % (7 - ks))
            g.e("v_mfma_f32_16x16x32_bf16 %s, %s, %s, %s" % (v(80, 4), v(88 + 4 * ks, 4), v(QF + 8 * ks, 4), v(80, 4)))
            g.e("v_mfma_f32_16x16x32_bf16 %s, %s, %s, %s" % (v(84, 4), v(88 + 4 * ks, 4), v(QF + 8 * ks + 4, 4), v(84, 4)))
        g.nop(7)
        g.nop(1)
        for i in range(4):
            g.e("v_add_f32 %s, %s, %s" % (v(80 + i), v(80 + i), v(84 + i)))
        g.e("ds_write_b128 v28, %s" % v(80, 4))
        if t >= 2: uv_some(2)
        g.e("s_waitcnt lgkmcnt(0)")
        stamp(g, 17 + 3 * t, 15)
        g.e("s_barrier")
        stamp(g, 18 + 3 * t, 15)
        for x in range(8):
            g.e("ds_read_b128 %s, v29 offset:%d" % (v(88 + 4 * x, 4), x * 1024))
        g.e("s_waitcnt lgkmcnt(0)")
        for st in range(2):
            for i in range(4):
                a = 88 + 16 * st + i
                g.e("v_add_f32 %s, %s, %s" % (v(a), v(a), v(a + 4)))
                g.e("v_add_f32 %s, %s, %s" % (v(a + 8), v(a + 8), v(a + 12)))
                g.e("v_add_f32 %s, %s, %s" % (v(a), v(a), v(a + 8)))
                g.e("v_mul_f32 %s, %s, %s" % (v(80 + 4 * st + i), sr(S_SC), v(a)))
        if t >= 2: uv_some(2)
        g.e("v_max3_f32 v12, v80, v81, v82")
        g.e("v_max3_f32 v12, v12, v83, v84")
        g.e("v_max3_f32 v12, v12, v85, v86")
        g.e("v_max3_f32 v12, v12, v87, v124")
        cross_rows(g, "v_max_f32", 12, 13)
        g.e("v_sub_f32 v126, v124, v12")
        g.e("v_exp_f32 v126, v126")
        g.e("v_mov_b32 v124, v12")
        for i in range(8):
            g.e("v_sub_f32 %s, %s, v12" % (v(80 + i), v(80 + i)))
        for i in range(8):
            g.e("v_exp_f32 %s, %s" % (v(80 + i), v(80 + i)))
        g.e("v_mul_f32 v125, v125, v126")
        for i in range(8):
            g.e("v_add_f32 v125, v125, %s" % v(80 + i))
        for k in range(4):
            g.e("v_cvt_pk_bf16_f32 %s, %s, %s" % (v(120 + k), v(80 + 2 * k), v(81 + 2 * k)))
        for ct in range(8):
            g.e("ds_read_b64_tr_b16 %s, %s" % (v(88 + 4 * ct, 2), v(16 + ct)))
            g.e("ds_read_b64_tr_b16 %s, %s offset:32768" % (v(90 + 4 * ct, 2), v(16 + ct)))
        if t >= 2: uv_some(2)
        for i in range(32):
            g.e("v_mul_f32 %s, %s, v126" % (v(ACC + i), v(ACC + i)))
        for ct in range(8):
            g.e("s_waitcnt lgkmcnt(%d)" % (14 - 2 * ct))
            g.e("v_mfma_f32_16x16x32_bf16 %s, %s, %s, %s" % (v(ACC + 4 * ct, 4), v(88 + 4 * ct, 4), v(120, 4), v(ACC + 4 * ct, 4)))
    g.nop(7)
    g.nop(1)
    stamp(g, 4, 15)
    g.e("s_mul_i32 s98, %s, 4352" % sr(S_WAVE))
    g.e("s_movk_i32 s99, 272")
    g.e("v_mul_lo_u32 v12, %s, s99" % v(V_L16))
    g.e("v_lshl_add_u32 v12, %s, 3, v12" % v(V_G))
    g.e("v_add_u32 v12, s98, v12")
    for ct in range(8):
        g.e("v_cvt_pk_bf16_f32 %s, %s, %s" % (v(88 + 2 * ct), v(ACC + 4 * ct), v(ACC + 4 * ct + 1)))
        g.e("v_cvt_pk_bf16_f32 %s, %s, %s" % (v(89 + 2 * ct), v(ACC + 4 * ct + 2), v(ACC + 4 * ct + 3)))
        g.e("ds_write_b64 v12, %s offset:%d" % (v(88 + 2 * ct, 2), ct * 32))
    g.e("v_mul_lo_u32 v12, %s, s99" % v(V_G))
    g.e("v_lshl_add_u32 v12, %s, 4, v12" % v(V_L16))
    g.e("v_add_u32 v12, s98, v12")
    g.e("s_waitcnt lgkmcnt(0)")
    for x in range(4):
        g.e("ds_read_b128 %s, v12 offset:%d" % (v(88 + 4 * x, 4), x * 4 * 272))
    g.e("v_lshlrev_b32 v12, 11, %s" % v(V_G))
    g.e("v_lshl_add_u32 v12, %s, 4, v12" % v(V_L16))
    g.e("s_sub_u32 s98, %s, 192" % sr(S_CU))
    g.e("s_lshl_b32 s98, s98, 15")
    g.e("s_lshl_b32 s99, %s, 8" % sr(S_WAVE))
    g.e("s_add_u32 s98, s98, s99")
    g.e("s_add_u32 s98, s98, %d" % WS_PC)
    for x in range(4):
        g.e("s_waitcnt lgkmcnt(%d)" % (3 - x))
        g.e("buffer_store_dwordx4 %s, v12, %s, s98 offen sc1" % (v(88 + 4 * x, 4), sr(SRD_WS, 4)))
        g.e("s_add_u32 s98, s98, 8192")
    cross_rows(g, "v_add_f32", 125, 13)
    skip = g.newlab("PST")
    g.e("s_cmp_lg_u32 %s, 0" % sr(S_WAVE))
    g.e("s_cbranch_scc1 %s" % skip)
    g.e("v_lshlrev_b32 v12, 9, %s" % v(V_L16))
    g.e("s_sub_u32 s98, %s, 192" % sr(S_CU))
    g.e("s_lshl_b32 s98, s98, 3")
    g.e("s_add_u32 s98, s98, %d" % WS_PS)
    g.e("s_mov_b64 exec, 0xffff")
    g.e("buffer_store_dwordx2 %s, v12, %s, s98 offen sc1" % (v(124, 2), sr(SRD_WS, 4)))
    g.e("s_mov_b64 exec, -1")
    g.lab(skip)
    g.waitall()
    g.e("s_barrier")
    flag_store(g, WS_PF, S_CU, 192)
    stamp(g, 5, 15)
    def wo_b():
        g.e("s_lshl_b32 %s, %s, 8" % (sr(S_T[1]), sr(S_H)))
        g.e("s_lshl_b32 %s, %s, 7" % (sr(S_T[2]), sr(S_DH)))
        g.e("s_add_u32 %s, %s, %s" % (sr(S_T[1]), sr(S_T[1]), sr(S_T[2])))
        load_rows896(g, SRD_WO, S_T[1], 16, 128)
    skip = g.newlab("WOB")
    g.e("s_cmp_eq_u32 %s, 0" % sr(S_WAVE))
    g.e("s_cbranch_scc1 %s" % skip)
    wo_b()
    g.lab(skip)
    g.c("---- CTX ----")
    poll_flags(g, WS_PF, 64)
    stamp(g, 6, 15)
    g.q = []
    g.e("v_lshlrev_b32 v12, 3, %s" % v(V_LANE))
    g.e("s_lshl_b32 s98, %s, 9" % sr(S_H))
    g.e("s_add_u32 s98, s98, %d" % WS_PS)
    g.e("buffer_load_dwordx2 v[14:15], v12, %s, s98 offen sc1" % sr(SRD_WS, 4))
    g.e("v_lshlrev_b32 v13, 4, %s" % v(V_LANE))
    g.e("s_lshl_b32 s98, %s, 18" % sr(S_WAVE))
    g.e("s_lshl_b32 s99, %s, 11" % sr(S_H))
    g.e("s_add_u32 s98, s98, s99")
    g.e("s_lshr_b32 s99, %s, 1" % sr(S_J))
    g.e("s_lshl_b32 s99, s99, 10")
    g.e("s_add_u32 s98, s98, s99")
    g.e("s_add_u32 s98, s98, %d" % WS_PC)
    for i in range(8):
        g.e("buffer_load_dwordx4 %s, v13, %s, s98 offen sc1" % (v(64 + 4 * i, 4), sr(SRD_WS, 4)))
        g.e("s_add_u32 s98, s98, 32768")
    g.e("s_waitcnt vmcnt(8)")
    g.e("v_mov_b32 v12, v14")
    dpp_allreduce16(g, "v_max_f32", [12])
    cross_rows(g, "v_max_f32", 12, 13, both=False)
    g.e("v_sub_f32 v12, v14, v12")
    g.e("v_exp_f32 v12, v12")
    g.nop(0)
    g.e("v_mul_f32 v13, v12, v15")
    dpp_allreduce16(g, "v_add_f32", [13])
    cross_rows(g, "v_add_f32", 13, 14, both=False)
    g.e("v_rcp_f32 v13, v13")
    g.nop(0)
    g.e("v_mul_f32 v12, v12, v13")
    g.e("s_lshl_b32 s98, %s, 3" % sr(S_WAVE))
    g.nop(1)
    for i in range(8):
        g.e("v_readlane_b32 %s, v12, s98" % sr(S_O + i))
        g.e("s_add_u32 s98, s98, 1")
    for j in range(8):
        g.e("v_mov_b32 %s, 0" % v(32 + j))
    for i in range(8):
        g.e("s_waitcnt vmcnt(%d)" % (7 - i))
        for j in range(4):
            g.e("v_lshlrev_b32 v12, 16, %s" % v(64 + 4 * i + j))
            g.e("v_and_b32 v13, 0xffff0000, %s" % v(64 + 4 * i + j))
            g.e("v_fmac_f32 %s, %s, v12" % (v(32 + 2 * j), sr(S_O + i)))
            g.e("v_fmac_f32 %s, %s, v13" % (v(33 + 2 * j), sr(S_O + i)))
    skip = g.newlab("WOB0")
    g.e("s_cmp_lg_u32 %s, 0" % sr(S_WAVE))
    g.e("s_cbranch_scc1 %s" % skip)
    wo_b()
    g.lab(skip)
    g.e("s_and_b32 s98, %s, 3" % sr(S_WAVE))
    g.e("s_lshl_b32 s98, s98, 12")
    g.e("s_lshr_b32 s99, %s, 2" % sr(S_WAVE))
    g.e("s_lshl_b32 s99, s99, 11")
    g.e("s_add_u32 s98, s98, s99")
    g.e("s_add_u32 s98, s98, %d" % L_CX)
    g.e("v_lshlrev_b32 v13, 5, %s" % v(V_LANE))
    g.e("v_add_u32 v13, s98, v13")
    g.e("ds_write_b128 v13, %s" % v(32, 4))
    g.e("ds_write_b128 v13, %s offset:16" % v(36, 4))
    g.e("s_waitcnt lgkmcnt(0)")
    g.e("s_barrier")
    g.e("v_lshlrev_b32 v12, 3, v0")
    g.e("v_add_u32 v12, %d, v12" % L_CX)
    for x in range(4):
        g.e("ds_read_b64 %s, v12 offset:%d" % (v(32 + 2 * x, 2), x * 4096))
    g.e("s_waitcnt lgkmcnt(0)")
    g.e("v_add_f32 v32, v32, v34")
    g.e("v_add_f32 v33, v33, v35")
    g.e("v_add_f32 v36, v36, v38")
    g.e("v_add_f32 v37, v37, v39")
    g.e("v_add_f32 v32, v32, v36")
    g.e("v_add_f32 v33, v33, v37")
    g.e("v_cvt_pk_bf16_f32 v32, v32, v33")
    g.e("v_lshlrev_b32 v12, 2, v0")
    g.e("v_add_u32 v12, %d, v12" % L_CB)
    g.e("ds_write_b32 v12, v32")
    g.e("s_waitcnt lgkmcnt(0)")
    g.e("s_barrier")
    g.e("v_lshlrev_b32 v12, 5, %s" % v(V_G))
    g.e("s_lshl_b32 s98, %s, 7" % sr(S_WAVE))
    g.e("s_add_u32 s98, s98, %d" % L_CB)
    g.e("v_add_u32 v12, s98, v12")
    for b in range(2):
        g.e("ds_read_b128 %s, v12 offset:%d" % (v(64 + 8 * b, 4), b * 1024))
        g.e("ds_read_b128 %s, v12 offset:%d" % (v(68 + 8 * b, 4), b * 1024 + 16))
    for i in range(16):
        g.e("v_mov_b32 %s, 0" % v(32 + i))
    g.e("s_waitcnt lgkmcnt(0)")
    for k in range(8):
        r0, r1 = UV + 8 * k, UV + 8 * k + 4
        for j in range(4):
            g.e("v_perm_b32 %s, %s, %s, %s" % (v(100 + 2 * j), v(r1 + j), v(r0 + j), sr(S_PLO)))
            g.e("v_perm_b32 %s, %s, %s, %s" % (v(101 + 2 * j), v(r1 + j), v(r0 + j), sr(S_PHI)))
        for b in range(2):
            for e_ in range(8):
                g.e("v_dot2_f32_bf16 %s, %s, %s, %s" % (v(32 + 8 * b + e_), v(100 + e_), v(64 + 8 * b + k), v(32 + 8 * b + e_)))
    g.nop(3)
    transpose_reduce16(g, 32)
    g.e("v_lshrrev_b32 v12, 1, %s" % v(V_G))
    g.e("v_lshlrev_b32 v12, 9, v12")
    g.e("v_and_b32 v13, 1, %s" % v(V_G))
    g.e("v_lshl_add_u32 v12, v13, 4, v12")
    g.e("v_lshl_add_u32 v12, %s, 5, v12" % v(V_L16))
    g.e("s_lshl_b32 s98, %s, 10" % sr(S_WAVE))
    g.e("v_add_u32 v12, s98, v12")
    g.e("ds_write_b128 v12, %s offset:%d" % (v(32, 4), L_OX))
    g.e("s_waitcnt lgkmcnt(0)")
    g.e("s_barrier")
    skip = g.newlab("OBS")
    g.e("s_cmp_ge_u32 %s, 4" % sr(S_WAVE))
    g.e("s_cbranch_scc1 %s" % skip)
    g.e("v_lshlrev_b32 v12, 2, v0")
    for w in range(8):
        g.e("ds_read_b32 %s, v12 offset:%d" % (v(32 + w), L_OX + w * 1024))
    g.e("s_waitcnt lgkmcnt(0)")
    for w in range(1, 8):
        g.e("v_add_f32 v32, v32, %s" % v(32 + w))
    g.e("v_cvt_pk_bf16_f32 v32, v32, v32")
    g.e("v_lshlrev_b32 v12, 1, v0")
    g.e("ds_write_b16 v12, v32 offset:%d" % L_OB)
    g.lab(skip)
    g.e("s_waitcnt lgkmcnt(0)")
    g.e("s_barrier")
    g.e("s_waitcnt vmcnt(0)")
    preperm(g, 128, 16)
    out_gemv(g, 128, 16, L_OB, 256, 48, 32)
    stamp(g, 7, 15)

    g.e("s_sub_u32 %s, %s, 128" % (sr(S_YI), sr(S_CU)))
    g.lab("L_YPUB")
    g.nop(3)
    g.e("s_mul_i32 s98, %s, 3584" % sr(S_WAVE))
    g.e("s_add_u32 s98, s98, %d" % L_YX)
    g.e("v_lshlrev_b32 v12, 5, %s" % v(V_LANE))
    g.e("v_add_u32 v12, s98, v12")
    g.e("s_mov_b32 exec_hi, 0x00ffffff")
    for b in range(2):
        for hh in range(2):
            g.e("ds_write_b128 v12, %s offset:%d" % (v(48 + b * 8 + hh * 4, 4), b * 1792 + hh * 16))
    g.e("s_mov_b32 exec_hi, -1")
    g.e("s_waitcnt lgkmcnt(0)")
    g.e("s_barrier")
    skip = g.newlab("YS")
    g.e("v_cmp_gt_u32 vcc, 224, v0")
    g.e("s_and_saveexec_b64 %s, vcc" % sr(S_EX, 2))
    g.e("s_cbranch_execz %s" % skip)
    g.e("v_lshlrev_b32 v12, 4, v0")
    g.e("v_add_u32 v13, %d, v12" % L_YX)
    for wv in range(8):
        g.e("ds_read_b128 %s, v13 offset:%d" % (v(64 + wv * 4, 4), wv * 3584))
    g.e("s_waitcnt lgkmcnt(0)")
    for wv in range(1, 8):
        for j in range(4):
            g.e("v_add_f32 %s, %s, %s" % (v(64 + j), v(64 + j), v(64 + wv * 4 + j)))
    g.e("s_mul_i32 s98, %s, 7168" % sr(S_YI))
    g.e("s_add_u32 s98, s98, %d" % WS_Y)
    g.e("v_lshlrev_b32 v12, 5, v0")
    for j in range(4):
        g.e("v_mov_b32 %s, %s" % (v(72 + 2 * j), v(64 + j)))
        g.e("v_mov_b32 %s, %s" % (v(73 + 2 * j), sr(S_TAG)))
    g.e("buffer_store_dwordx4 v[72:75], v12, %s, s98 offen sc1" % sr(SRD_WS, 4))
    g.e("buffer_store_dwordx4 v[76:79], v12, %s, s98 offen offset:16 sc1" % sr(SRD_WS, 4))
    g.lab(skip)
    g.e("s_mov_b64 exec, %s" % sr(S_EX, 2))
    g.e("s_barrier")
    flag_store(g, WS_YF, S_YI, 0)
    stamp(g, 9, 15)
    g.e("s_branch L_END")

    g.lab("L_FINAL")
    g.c("---- FINAL ----")
    g.e("s_lshl_b32 %s, %s, 2" % (sr(S_YI), sr(S_H)))
    g.e("s_add_u32 %s, %s, %s" % (sr(S_YI), sr(S_YI), sr(S_J)))
    g.e("s_sub_u32 %s, %s, 4" % (sr(S_YI), sr(S_YI)))
    g.e("s_cmp_ge_u32 %s, 56" % sr(S_YI))
    g.e("s_cbranch_scc1 L_END")
    poll_flags(g, WS_YF + 256, 64)
    poll_flags(g, WS_YF, 64)
    stamp(g, 10, 15)
    g.e("s_mov_b32 s98, %s" % sr(S_YI))
    g.e("s_cmp_ge_u32 s98, 28")
    g.e("s_cselect_b32 s99, 1, 0")
    g.e("s_mul_i32 s100, s99, 28")
    g.e("s_sub_u32 s98, s98, s100")
    g.e("s_mul_i32 s100, s99, 3584")
    g.e("s_lshl_b32 s101, s98, 7")
    g.e("s_add_u32 s100, s100, s101")
    g.e("s_add_u32 s100, s100, %d" % WS_Y)
    g.e("v_lshrrev_b32 v12, 3, v0")
    g.e("v_bfe_u32 v13, v0, 2, 1")
    g.e("v_lshl_add_u32 v12, v13, 6, v12")
    g.e("s_movk_i32 s101, 7168")
    g.e("v_mul_lo_u32 v12, v12, s101")
    g.e("v_and_b32 v13, 3, v0")
    g.e("v_lshl_add_u32 v12, v13, 5, v12")
    lp = g.newlab("FL"); ok = g.newlab("FOK")
    g.e("s_mov_b32 %s, 0" % sr(S_SPIN))
    g.lab(lp)
    g.e("buffer_load_dwordx4 v[40:43], v12, %s, s100 offen sc1" % sr(SRD_WS, 4))
    g.e("buffer_load_dwordx4 v[44:47], v12, %s, s100 offen offset:16 sc1" % sr(SRD_WS, 4))
    g.e("s_waitcnt vmcnt(0)")
    g.e("v_xor_b32 v13, %s, v41" % sr(S_TAG))
    for r_ in (43, 45, 47):
        g.e("v_xor_b32 v14, %s, %s" % (sr(S_TAG), v(r_)))
        g.e("v_or_b32 v13, v13, v14")
    g.e("v_cmp_eq_u32 vcc, 0, v13")
    g.e("s_cmp_eq_u64 vcc, exec")
    g.e("s_cbranch_scc1 %s" % ok)
    g.e("s_add_u32 %s, %s, 1" % (sr(S_SPIN), sr(S_SPIN)))
    g.e("s_cmp_gt_u32 %s, %d" % (sr(S_SPIN), SPIN_MAX))
    g.e("s_cbranch_scc0 %s" % lp)
    g.lab(ok)
    for j in range(4):
        g.e("v_mov_b32 %s, %s" % (v(32 + j), v(40 + 2 * j)))
    g.nop(1)
    for r_ in range(32, 36):
        g.e("v_add_f32_dpp %s, %s, %s row_ror:8 row_mask:0xf bank_mask:0xf" % (v(r_), v(r_), v(r_)))
    for r_ in range(32, 36):
        cross_rows(g, "v_add_f32", r_, 13)
    g.e("v_lshlrev_b32 v12, 4, %s" % v(V_LANE))
    g.e("s_lshl_b32 s101, %s, 7" % sr(S_WAVE))
    g.e("s_add_u32 s101, s101, %d" % L_FX)
    g.e("v_add_u32 v12, s101, v12")
    g.e("s_mov_b64 exec, 0xff")
    g.e("ds_write_b128 v12, v[32:35]")
    g.e("s_mov_b64 exec, -1")
    g.e("s_waitcnt lgkmcnt(0)")
    g.e("s_barrier")
    g.e("s_cmp_lg_u32 %s, 0" % sr(S_WAVE))
    g.e("s_cbranch_scc1 L_END")
    g.e("v_and_b32 v12, 31, %s" % v(V_LANE))
    g.e("v_lshlrev_b32 v12, 2, v12")
    for wv in range(8):
        g.e("ds_read_b32 %s, v12 offset:%d" % (v(32 + wv), L_FX + wv * 128))
    g.e("s_waitcnt lgkmcnt(0)")
    for wv in range(1, 8):
        g.e("v_add_f32 v32, v32, %s" % v(32 + wv))
    g.e("v_cvt_pk_bf16_f32 v32, v32, v32")
    g.e("s_movk_i32 s101, 896")
    g.e("v_mul_lo_u32 v12, %s, s101" % v(V_G))
    g.e("v_lshl_add_u32 v12, %s, 1, v12" % v(V_L16))
    g.e("s_mul_i32 s100, s99, 1792")
    g.e("s_lshl_b32 s101, s98, 5")
    g.e("s_add_u32 s100, s100, s101")
    g.e("s_mov_b32 exec_lo, -1")
    g.e("s_mov_b32 exec_hi, 0")
    g.e("buffer_store_short v32, v12, %s, s100 offen" % sr(SRD_OUT, 4))
    g.e("s_mov_b64 exec, -1")
    stamp(g, 11, 15)
    g.e("s_cmp_lg_u32 %s, 0" % sr(S_YI))
    g.e("s_cbranch_scc1 L_END")
    g.e("v_mov_b32 v13, %s" % sr(S_TAG))
    g.e("s_mov_b64 exec, 1")
    g.e("buffer_store_dword v13, off, %s, 0 sc1" % sr(SRD_WS, 4))
    g.lab("L_END")
    g.e("s_endpgm")
    g.lines += [
        '.section .rodata,"a"',
        ".p2align 6",
        ".amdhsa_kernel %s" % KN,
        "  .amdhsa_next_free_vgpr 256",
        "  .amdhsa_next_free_sgpr 102",
        "  .amdhsa_accum_offset 256",
        "  .amdhsa_group_segment_fixed_size 0",
        "  .amdhsa_kernarg_size 112",
        "  .amdhsa_user_sgpr_count 2",
        "  .amdhsa_user_sgpr_kernarg_segment_ptr 1",
        "  .amdhsa_system_sgpr_workgroup_id_x 1",
        ".end_amdhsa_kernel",
    ]
    return "\n".join(g.lines) + "\n"

if __name__ == "__main__":
    out = sys.argv[1] if len(sys.argv) > 1 and not sys.argv[1].startswith("--") else "cdna_kernels/%s.s" % NAME
    open(out, "w").write(gen())
    print("wrote", out)
```

```python
import sys

NAME = "concat_heads__mha_block_cached__compressed_kv_cla__decode"
KN = NAME + "_kernel"

def opt(name, default):
    for a in sys.argv:
        if a.startswith("--%s=" % name):
            return int(a.split("=")[1])
    return default

WS_NONCE = 0
WS_AP = 0x600000
WS_QH = 0xA0000
WS_QL = 0xB0000
WS_QF = 0xC0000
WS_PF = 0xC1000
WS_YF = 0xC2000
WS_AF = 0xC3000
WS_PS = 0xC4000
WS_Y = 0xD0000
WS_QP = 0x10000
WS_QPF = 0xC5000
WS_PC = 0x200000
WS_SIZE = 0x10000000
WS_STAMP = 0x800000

L_TILE0 = 0
L_TILE1 = 65536
L_SX = 131072
L_QX = 139264
L_QB = 147456
L_CNT = 149504
LDS_BYTES = 149504 + 1024
L_AO = 0
L_AM = 8192
L_OX = 0
L_OB = 8192
L_OA = 8704
L_CX = 16384
L_CB = 12288
L_FX = 28672
L_YX = 32768

SPIN_MAX = opt("SPIN", 400000)
STAMPS = "--stamps" in sys.argv
D = opt("D", 6)
PRE = opt("PRE", 6)
SH = opt("SH", 64)
WS_CT = 0xC8000

class G:
    def __init__(s):
        s.lines = []
        s.q = []
        s.uid = 0
    def e(s, t):
        s.lines.append("    " + t)
    def c(s, t):
        s.lines.append("    ; " + t)
    def lab(s, n):
        s.lines.append(n + ":")
    def newlab(s, p="L"):
        s.uid += 1
        return "%s_%d" % (p, s.uid)
    def vm(s, tag, t):
        s.e(t)
        s.q.append(tag)
    def wait(s, tag):
        if tag not in s.q:
            return
        idx = max(i for i, x in enumerate(s.q) if x == tag)
        n = len(s.q) - 1 - idx
        s.e("s_waitcnt vmcnt(%d)" % min(n, 63))
        s.q = s.q[idx + 1:]
    def waitall(s):
        s.e("s_waitcnt vmcnt(0)")
        s.q = []
    def nop(s, n):
        s.e("s_nop %d" % n)

def v(i, n=1):
    return "v%d" % i if n == 1 else "v[%d:%d]" % (i, i + n - 1)
def sr(i, n=1):
    return "s%d" % i if n == 1 else "s[%d:%d]" % (i, i + n - 1)

S_WAVE, S_TAG, S_H, S_J, S_CU = 3, 4, 5, 6, 7
S_T = [8, 9, 10, 11, 12, 13, 14, 15]
S_ROLE = 16
S_CUR, S_NXT, S_UEND, S_SLAB, S_FIRST, S_VALID, S_NU = 17, 18, 19, 20, 21, 22, 23
S_BB, S_KR, S_DH, S_CKV, S_LW, S_SC = 24, 25, 26, 27, 28, 29
S_MAT, S_JMAT, S_YI = 30, 31, 32
S_QN, S_QU, S_QV = 33, 34, 35
S_SIX, S_CTR, S_MODE = 25, 26, 27
SRD_X, SRD_WQ, SRD_WO, SRD_K, SRD_V, SRD_WUV, SRD_WS, SRD_OUT, SRD_WOA = 36, 40, 44, 48, 52, 56, 60, 64, 68
S_PLO, S_PHI, S_L2E, S_SPIN = 72, 73, 74, 75
S_MK, S_M2, S_EX = 76, 78, 80
S_O = 82
V_LANE, V_L16, V_G = 1, 2, 3
RING = 192


def dpp_allreduce16(g, op, regs):
    for st in (8, 4, 2, 1):
        if len(regs) < 3:
            g.nop(1)
        for r in regs:
            g.e("%s_dpp %s, %s, %s row_ror:%d row_mask:0xf bank_mask:0xf" % (op, v(r), v(r), v(r), st))

def cross_rows(g, op, r, t, both=True):
    g.e("v_mov_b32 %s, %s" % (v(t), v(r)))
    g.nop(1)
    g.e("v_permlane16_swap_b32 %s, %s" % (v(t), v(r)))
    g.nop(1)
    g.e("%s %s, %s, %s" % (op, v(r), v(r), v(t)))
    if both:
        g.e("v_mov_b32 %s, %s" % (v(t), v(r)))
        g.nop(1)
        g.e("v_permlane32_swap_b32 %s, %s" % (v(t), v(r)))
        g.nop(1)
        g.e("%s %s, %s, %s" % (op, v(r), v(r), v(t)))

def transpose_reduce16(g, a):
    g.nop(1)
    for k in range(8):
        g.e("v_permlane32_swap_b32 %s, %s" % (v(a + k), v(a + k + 8)))
    g.nop(1)
    for k in range(8):
        g.e("v_add_f32 %s, %s, %s" % (v(a + k), v(a + k), v(a + k + 8)))
    g.nop(1)
    for k in range(4):
        g.e("v_permlane16_swap_b32 %s, %s" % (v(a + k), v(a + k + 4)))
    g.nop(1)
    for k in range(4):
        g.e("v_add_f32 %s, %s, %s" % (v(a + k), v(a + k), v(a + k + 4)))

def stamp(g, idx, vt):
    if not STAMPS:
        return
    g.e("s_memrealtime s[100:101]")
    g.e("s_lshl_b32 s98, %s, 3" % sr(S_CU))
    g.e("s_add_u32 s98, s98, %s" % sr(S_WAVE))
    g.e("s_lshl_b32 s98, s98, 7")
    g.e("s_add_u32 s98, s98, %d" % (WS_STAMP + idx * 4))
    g.e("s_waitcnt lgkmcnt(0)")
    g.e("v_mov_b32 %s, s100" % v(vt))
    g.e("s_mov_b64 exec, 1")
    g.e("buffer_store_dword %s, off, %s, s98" % (v(vt), sr(SRD_WS, 4)))
    g.e("s_mov_b64 exec, -1")

def q_job(g, gather):
    ACC, PT, XR, W = 32, 48, 56, 128
    g.c("---- Q job ----")
    g.e("s_mul_i32 %s, %s, 224" % (sr(S_T[4]), sr(S_T[0])))
    g.e("s_add_u32 %s, %s, 896" % (sr(S_T[5]), sr(S_T[4])))
    g.e("s_mul_i32 %s, %s, %d" % (sr(S_T[2]), sr(S_T[0]), 112 * 8192))
    g.e("s_lshl_b32 %s, %s, 9" % (sr(S_T[3]), sr(S_H)))
    g.e("s_add_u32 %s, %s, %s" % (sr(S_T[2]), sr(S_T[2]), sr(S_T[3])))
    g.e("s_lshl_b32 %s, %s, 8" % (sr(S_T[3]), sr(S_T[1])))
    g.e("s_add_u32 %s, %s, %s" % (sr(S_T[2]), sr(S_T[2]), sr(S_T[3])))
    g.e("s_mov_b32 %s, %d" % (sr(S_T[6]), 28 * 8192))
    g.e("v_mul_lo_u32 v12, %s, %s" % (v(V_G), sr(S_T[6])))
    g.e("v_lshl_add_u32 v12, %s, 4, v12" % v(V_L16))
    g.e("v_mul_u32_u24 v13, 56, %s" % v(V_G))
    for b in range(2):
        sb = sr(S_T[4 + b])
        g.e("buffer_load_dwordx4 %s, v13, %s, %s offen" % (v(XR + b * 14, 4), sr(SRD_X, 4), sb))
        g.e("buffer_load_dwordx4 %s, v13, %s, %s offen offset:16" % (v(XR + b * 14 + 4, 4), sr(SRD_X, 4), sb))
        g.e("buffer_load_dwordx4 %s, v13, %s, %s offen offset:32" % (v(XR + b * 14 + 8, 4), sr(SRD_X, 4), sb))
        g.e("buffer_load_dwordx2 %s, v13, %s, %s offen offset:48" % (v(XR + b * 14 + 12, 2), sr(SRD_X, 4), sb))
    for n in range(28):
        g.e("buffer_load_dwordx4 %s, v12, %s, %s offen nt" % (v(W + 4 * n, 4), sr(SRD_WQ, 4), sr(S_T[2])))
        g.e("s_add_u32 %s, %s, 8192" % (sr(S_T[2]), sr(S_T[2])))
    QB = opt("QB", 14)
    if QB == 0:
        g.e("s_barrier")
    for i in range(16):
        g.e("v_mov_b32 %s, 0" % v(ACC + i))
    for k in range(14):
        g.e("s_waitcnt vmcnt(%d)" % (26 - 2 * k))
        if QB and k == QB - 1:
            g.e("s_barrier")
        r0 = W + 8 * k
        r1 = r0 + 4
        for j in range(4):
            g.e("v_perm_b32 %s, %s, %s, %s" % (v(PT + 2 * j), v(r1 + j), v(r0 + j), sr(S_PLO)))
            g.e("v_perm_b32 %s, %s, %s, %s" % (v(PT + 2 * j + 1), v(r1 + j), v(r0 + j), sr(S_PHI)))
        for b in range(2):
            for e_ in range(8):
                g.e("v_dot2_f32_bf16 %s, %s, %s, %s" % (v(ACC + b * 8 + e_), v(PT + e_), v(XR + b * 14 + k), v(ACC + b * 8 + e_)))
    stamp(g, 12, 15)
    g.e("v_readfirstlane_b32 %s, v127" % sr(S_TAG))
    g.e("s_add_u32 %s, %s, 1" % (sr(S_TAG), sr(S_TAG)))
    g.nop(1)
    transpose_reduce16(g, ACC)
    done = g.newlab("QDONE")
    g.e("v_lshrrev_b32 v12, 1, %s" % v(V_G))
    g.e("v_lshlrev_b32 v12, 11, v12")
    g.e("v_and_b32 v13, 1, %s" % v(V_G))
    g.e("v_lshl_add_u32 v12, v13, 5, v12")
    g.e("v_lshl_add_u32 v12, %s, 6, v12" % v(V_L16))
    g.e("s_lshl_b32 s98, %s, 1" % sr(S_H))
    g.e("s_add_u32 s98, s98, %s" % sr(S_JMAT))
    g.e("s_lshl_b32 s99, s98, 5")
    g.e("s_lshl_b32 s98, s98, 2")
    g.e("s_add_u32 s98, s98, %s" % sr(S_T[0]))
    g.e("s_lshl_b32 s98, s98, 12")
    g.e("s_lshl_b32 s100, %s, 10" % sr(S_T[1]))
    g.e("s_add_u32 s98, s98, s100")
    g.e("s_add_u32 s98, s98, %d" % WS_QP)
    g.e("v_mov_b32 v40, v32")
    g.e("v_mov_b32 v41, %s" % sr(S_TAG))
    g.e("v_mov_b32 v42, v33")
    g.e("v_mov_b32 v43, %s" % sr(S_TAG))
    g.e("v_mov_b32 v44, v34")
    g.e("v_mov_b32 v45, %s" % sr(S_TAG))
    g.e("v_mov_b32 v46, v35")
    g.e("v_mov_b32 v47, %s" % sr(S_TAG))
    g.e("buffer_store_dwordx4 v[40:43], v12, %s, s98 offen sc1" % sr(SRD_WS, 4))
    g.e("buffer_store_dwordx4 v[44:47], v12, %s, s98 offen offset:16 sc1" % sr(SRD_WS, 4))
    g.e("s_lshl_b32 s100, %s, 1" % sr(S_T[0]))
    g.e("s_add_u32 s100, s100, %s" % sr(S_T[1]))
    g.e("s_lshl_b32 s100, s100, 2")
    g.e("s_add_u32 s99, s99, s100")
    g.e("s_add_u32 s99, s99, %d" % WS_QPF)
    g.e("s_mov_b64 exec, 1")
    g.e("buffer_store_dword v41, off, %s, s99 sc1" % sr(SRD_WS, 4))
    g.e("s_mov_b64 exec, -1")
    stamp(g, 13, 15)
    if gather:
        g.e("s_mov_b32 %s, 0" % sr(S_SPIN))
        g.e("v_and_b32 v15, 15, %s" % v(V_LANE))
        g.e("v_lshlrev_b32 v15, 2, v15")
        g.e("s_lshl_b32 s99, %s, 6" % sr(S_H))
        g.e("s_add_u32 s99, s99, %d" % WS_QPF)
        lp0 = g.newlab("QH"); ok0 = g.newlab("QHOK")
        g.lab(lp0)
        g.e("buffer_load_dword v11, v15, %s, s99 offen sc1" % sr(SRD_WS, 4))
        g.e("s_waitcnt vmcnt(0)")
        g.e("v_cmp_eq_u32 vcc, %s, v11" % sr(S_TAG))
        g.e("s_cmp_eq_u64 vcc, exec")
        g.e("s_cbranch_scc1 %s" % ok0)
        g.e("s_add_u32 %s, %s, 1" % (sr(S_SPIN), sr(S_SPIN)))
        g.e("s_sleep 1")
        g.e("s_cmp_gt_u32 %s, %d" % (sr(S_SPIN), SPIN_MAX))
        g.e("s_cbranch_scc0 %s" % lp0)
        g.lab(ok0)
        g.e("s_mov_b32 %s, 1" % sr(S_T[7]))
        lp = g.newlab("QG"); ok = g.newlab("QGOK")
        g.e("v_lshlrev_b32 v12, 4, %s" % v(V_LANE))
        g.lab(lp)
        g.e("s_lshl_b32 s99, %s, 6" % sr(S_H))
        g.e("s_add_u32 s99, s99, %d" % WS_QPF)
        g.e("buffer_load_dword v11, v15, %s, s99 offen sc1" % sr(SRD_WS, 4))
        g.e("s_lshl_b32 s98, %s, 15" % sr(S_H))
        g.e("s_add_u32 s98, s98, %d" % WS_QP)
        g.e("s_lshl_b32 s99, %s, 11" % sr(S_BB))
        g.e("s_add_u32 s99, s99, s98")
        for rq in range(4):
            for p in range(2):
                g.e("buffer_load_dwordx4 %s, v12, %s, s99 offen offset:%d sc1" % (v(32 + rq * 8 + p * 4, 4), sr(SRD_WS, 4), p * 1024))
            g.e("s_add_u32 s99, s99, 4096")
        g.e("s_add_u32 s99, s98, 16384")
        for rq in range(4):
            for z in (1, 2):
                for p in range(2):
                    g.e("buffer_load_dwordx4 %s, v12, %s, s99 offen offset:%d sc1" % (v(32 + z * 32 + rq * 8 + p * 4, 4), sr(SRD_WS, 4), (z - 1) * 2048 + p * 1024))
            g.e("s_add_u32 s99, s99, 4096")
        sk = g.newlab("QREL")
        g.e("s_cmp_eq_u32 %s, 0" % sr(S_T[7]))
        g.e("s_cbranch_scc1 %s" % sk)
        g.e("s_barrier")
        g.e("s_mov_b32 %s, 0" % sr(S_T[7]))
        g.lab(sk)
        g.e("s_waitcnt vmcnt(0)")
        g.e("v_xor_b32 v13, %s, v11" % sr(S_TAG))
        for r_ in range(33, 128, 2):
            g.e("v_xor_b32 v14, %s, %s" % (sr(S_TAG), v(r_)))
            g.e("v_or_b32 v13, v13, v14")
        g.e("v_cmp_eq_u32 vcc, 0, v13")
        g.e("s_cmp_eq_u64 vcc, exec")
        g.e("s_cbranch_scc1 %s" % ok)
        g.e("s_add_u32 %s, %s, 1" % (sr(S_SPIN), sr(S_SPIN)))
        g.e("s_cmp_gt_u32 %s, %d" % (sr(S_SPIN), SPIN_MAX))
        g.e("s_cbranch_scc0 %s" % lp)
        g.lab(ok)
        stamp(g, 14, 15)
        g.e("v_lshlrev_b32 v12, 2, %s" % v(V_LANE))
        g.e("v_add_u32 v13, %d, v12" % L_QB)
        g.e("s_lshl_b32 s99, %s, 9" % sr(S_BB))
        g.e("v_add_u32 v12, s99, v13")
        for z in range(3):
            for p in range(2):
                a = 32 + z * 32 + p * 4
                for o_ in (0, 2):
                    g.e("v_add_f32 %s, %s, %s" % (v(a + o_), v(a + o_), v(a + 8 + o_)))
                    g.e("v_add_f32 %s, %s, %s" % (v(a + 16 + o_), v(a + 16 + o_), v(a + 24 + o_)))
                    g.e("v_add_f32 %s, %s, %s" % (v(a + o_), v(a + o_), v(a + 16 + o_)))
                g.e("v_cvt_pk_bf16_f32 %s, %s, %s" % (v(a + 1), v(a), v(a + 2)))
                if z == 0:
                    g.e("ds_write_b32 v12, %s offset:%d" % (v(a + 1), p * 256))
                else:
                    g.e("ds_write_b32 v13, %s offset:%d" % (v(a + 1), 1024 + (z - 1) * 512 + p * 256))
        g.e("s_waitcnt lgkmcnt(0)")
    g.lab(done)

def load_rows896(g, srd, rowbase_sgpr, nrows, wreg):
    g.e("s_mul_i32 %s, %s, %d" % (sr(S_T[0]), sr(S_WAVE), nrows))
    g.e("s_add_u32 %s, %s, %s" % (sr(S_T[0]), sr(S_T[0]), sr(rowbase_sgpr)))
    g.e("s_mul_i32 %s, %s, 896" % (sr(S_T[0]), sr(S_T[0])))
    g.e("v_lshlrev_b32 v12, 4, %s" % v(V_LANE))
    g.e("s_mov_b32 exec_hi, 0x00ffffff")
    for n in range(nrows):
        if n % 4 == 0 and n > 0:
            g.e("s_add_u32 %s, %s, 3584" % (sr(S_T[0]), sr(S_T[0])))
        g.e("buffer_load_dwordx4 %s, v12, %s, %s offen offset:%d" % (v(wreg + n * 4, 4), sr(srd, 4), sr(S_T[0]), (n % 4) * 896))
    g.e("s_mov_b32 exec_hi, -1")

def preperm(g, wreg, nrows):
    for k in range(nrows // 2):
        r0 = wreg + (2 * k) * 4
        r1 = r0 + 4
        for j in range(4):
            g.e("v_perm_b32 v12, %s, %s, %s" % (v(r1 + j), v(r0 + j), sr(S_PLO)))
            g.e("v_perm_b32 %s, %s, %s, %s" % (v(r1 + j), v(r1 + j), v(r0 + j), sr(S_PHI)))
            g.e("v_mov_b32 %s, v12" % v(r0 + j))

def out_gemv(g, wreg, nrows, lds_base, bstride, Y, OP):
    g.e("s_mul_i32 %s, %s, %d" % (sr(S_T[0]), sr(S_WAVE), nrows * 2))
    g.e("s_add_u32 %s, %s, %d" % (sr(S_T[0]), sr(S_T[0]), lds_base))
    g.e("v_mov_b32 v12, %s" % sr(S_T[0]))
    npk = nrows // 2
    for b in range(2):
        for x in range(npk // 4):
            g.e("ds_read_b128 %s, v12 offset:%d" % (v(OP + b * npk + 4 * x, 4), b * bstride + 16 * x))
    for i in range(16):
        g.e("v_mov_b32 %s, 0" % v(Y + i))
    g.e("s_waitcnt lgkmcnt(0)")
    for k in range(npk):
        r0 = wreg + (2 * k) * 4
        r1 = r0 + 4
        for b in range(2):
            for j in range(4):
                g.e("v_dot2_f32_bf16 %s, %s, %s, %s" % (v(Y + b * 8 + 2 * j), v(r0 + j), v(OP + b * npk + k), v(Y + b * 8 + 2 * j)))
                g.e("v_dot2_f32_bf16 %s, %s, %s, %s" % (v(Y + b * 8 + 2 * j + 1), v(r1 + j), v(OP + b * npk + k), v(Y + b * 8 + 2 * j + 1)))

def flag_store(g, base_const, idx_sgpr, sub):
    skip = g.newlab("FLAG")
    g.e("s_cmp_lg_u32 %s, 0" % sr(S_WAVE))
    g.e("s_cbranch_scc1 %s" % skip)
    g.e("s_sub_u32 s98, %s, %d" % (sr(idx_sgpr), sub))
    g.e("s_lshl_b32 s98, s98, 2")
    g.e("s_add_u32 s98, s98, %d" % base_const)
    g.e("v_mov_b32 v13, %s" % sr(S_TAG))
    g.e("s_mov_b64 exec, 1")
    g.e("buffer_store_dword v13, off, %s, s98 sc1" % sr(SRD_WS, 4))
    g.e("s_mov_b64 exec, -1")
    g.lab(skip)

def poll_flags(g, base_sgpr_or_const, nflags, pw=0, sleep=4):
    lp = g.newlab("POLL"); ok = g.newlab("POLLOK")
    g.e("s_cmp_lg_u32 %s, %d" % (sr(S_WAVE), pw))
    g.e("s_cbranch_scc1 %s" % ok)
    wide = nflags > 64
    g.e("v_lshlrev_b32 v12, %d, %s" % (4 if wide else 2, v(V_LANE)))
    if wide:
        nflags //= 4
    if isinstance(base_sgpr_or_const, int):
        g.e("s_mov_b32 s98, %d" % base_sgpr_or_const)
    else:
        g.e("s_mov_b32 s98, %s" % base_sgpr_or_const)
    if nflags < 64:
        m = (1 << nflags) - 1
        g.e("s_mov_b32 exec_lo, 0x%x" % (m & 0xffffffff))
        g.e("s_mov_b32 exec_hi, 0x%x" % (m >> 32))
    g.e("s_mov_b32 %s, 0" % sr(S_SPIN))
    g.lab(lp)
    if wide:
        g.e("buffer_load_dwordx4 v[88:91], v12, %s, s98 offen sc1" % sr(SRD_WS, 4))
        g.e("s_waitcnt vmcnt(0)")
        g.e("v_cmp_eq_u32 vcc, %s, v88" % sr(S_TAG))
        for i in range(1, 4):
            g.e("v_cmp_eq_u32 %s, %s, %s" % (sr(S_M2, 2), sr(S_TAG), v(88 + i)))
            g.e("s_and_b64 vcc, vcc, %s" % sr(S_M2, 2))
    else:
        g.e("buffer_load_dword v13, v12, %s, s98 offen sc1" % sr(SRD_WS, 4))
        g.e("s_waitcnt vmcnt(0)")
        g.e("v_cmp_eq_u32 vcc, %s, v13" % sr(S_TAG))
    g.e("s_cmp_eq_u64 vcc, exec")
    g.e("s_cbranch_scc1 %s" % ok)
    g.e("s_add_u32 %s, %s, 1" % (sr(S_SPIN), sr(S_SPIN)))
    g.e("s_cmp_gt_u32 %s, %d" % (sr(S_SPIN), SPIN_MAX))
    g.e("s_cbranch_scc1 %s" % ok)
    g.e("s_sleep %d" % sleep)
    g.e("s_branch %s" % lp)
    g.lab(ok)
    g.e("s_mov_b64 exec, -1")
    g.e("s_barrier")


def gen():
    g = G()
    g.lines.append("; @launch grid=(256,1,1) block=(512,1,1) lds=%d" % LDS_BYTES)
    g.lines.append('.amdgcn_target "amdgcn-amd-amdhsa--gfx950"')
    g.lines.append(".text")
    g.lines.append(".globl %s" % KN)
    g.lines.append(".p2align 8")
    g.lines.append(".type %s,@function" % KN)
    g.lab(KN)
    g.e("s_cmp_ge_u32 s2, 256")
    g.e("s_cbranch_scc1 L_END")
    if "--noxmap" not in sys.argv:
        g.e("s_and_b32 s96, s2, 7")
        g.e("s_lshr_b32 s97, s2, 3")
        XM = opt("XM", 1)
        if XM == 1:
            g.e("s_mul_i32 s98, s96, 24")
            g.e("s_add_u32 s98, s98, s97")
        else:
            sh = {2: 1, 4: 2}[XM]
            g.e("s_lshr_b32 s98, s96, %d" % sh)
            g.e("s_mul_i32 s98, s98, %d" % (24 * XM))
            g.e("s_and_b32 s99, s96, %d" % (XM - 1))
            g.e("s_add_u32 s98, s98, s99")
            g.e("s_lshl_b32 s99, s97, %d" % sh)
            g.e("s_add_u32 s98, s98, s99")
        g.e("s_lshl_b32 s99, s96, 3")
        g.e("s_add_u32 s99, s99, s97")
        g.e("s_add_u32 s99, s99, 168")
        g.e("s_cmp_lt_u32 s97, 24")
        g.e("s_cselect_b32 s2, s98, s99")
    g.e("s_load_dwordx16 s[8:23], s[0:1], 0")
    g.e("s_load_dwordx8 s[24:31], s[0:1], 64")
    g.e("s_load_dwordx4 s[32:35], s[0:1], 96")
    g.e("v_and_b32 %s, 63, v0" % v(V_LANE))
    g.e("v_lshrrev_b32 v12, 6, v0")
    g.e("v_and_b32 %s, 15, v0" % v(V_L16))
    g.e("v_bfe_u32 %s, v0, 4, 2" % v(V_G))
    g.e("v_readfirstlane_b32 %s, v12" % sr(S_WAVE))
    g.e("v_mov_b32 v4, 0")
    g.e("v_mov_b32 v5, 0")
    g.e("s_mov_b32 %s, 0x05040100" % sr(S_PLO))
    g.e("s_mov_b32 %s, 0x07060302" % sr(S_PHI))
    g.e("s_mov_b32 %s, 0x3fb8aa3b" % sr(S_L2E))
    g.e("s_mov_b32 %s, 0x00010001" % sr(S_MK))
    g.e("s_mov_b32 %s, 0x00010001" % sr(S_MK + 1))
    g.e("s_mul_i32 s96, s2, 43691")
    g.e("s_lshr_b32 s96, s96, 19")
    g.e("s_mul_i32 s97, s96, 12")
    g.e("s_sub_u32 s97, s2, s97")
    g.e("s_cmp_ge_u32 s97, 8")
    g.e("s_cselect_b32 s99, 1, 0")
    g.e("s_cmp_ge_u32 s2, 192")
    g.e("s_cselect_b32 s99, 1, s99")
    g.e("s_cmp_eq_u32 s99, 0")
    g.e("s_waitcnt lgkmcnt(0)")
    def srd(d, a, b, na, nb):
        g.e("s_cselect_b32 %s, %s, %s" % (sr(d), sr(a), sr(b)))
        g.e("s_cselect_b32 %s, %s, %s" % (sr(d + 1), sr(a + 1), sr(b + 1)))
        if na == nb:
            g.e("s_mov_b32 %s, %d" % (sr(d + 2), na))
        else:
            g.e("s_mov_b32 s98, %d" % na)
            g.e("s_cselect_b32 %s, s98, %d" % (sr(d + 2), nb))
        g.e("s_mov_b32 %s, 0x00020000" % sr(d + 3))
    srd(SRD_X, 8, 18, 1792, 1792)
    srd(SRD_WQ, 14, 22, 448 * 8192, 448 * 8192)
    g.e("s_cmp_lt_u32 s2, 192")
    srd(SRD_WO, 24, 28, 1 << 23, 4096 * 896)
    srd(SRD_K, 10, 20, 1 << 26, 1 << 24)
    srd(SRD_V, 12, 26, 1 << 26, 1 << 23)
    srd(SRD_WS, 34, 34, WS_SIZE, WS_SIZE)
    srd(SRD_OUT, 30, 30, 3584, 3584)
    srd(SRD_WOA, 16, 16, 4096 * 896, 4096 * 896)
    g.e("s_cselect_b32 %s, 1, 0" % sr(S_ROLE))
    g.e("s_cselect_b32 %s, 0, 1" % sr(S_MAT))
    g.e("s_mov_b32 %s, s99" % sr(S_JMAT))
    g.e("buffer_load_dword v127, off, %s, 0 sc1" % sr(SRD_WS, 4))
    g.e("s_cbranch_scc0 L_ROLE_B0")

    g.c("==== ROLE A setup ====")
    if "--noA" in sys.argv:
        g.e("s_branch L_END")
    g.e("s_mov_b32 %s, s97" % sr(S_J))
    g.e("s_mov_b32 %s, s96" % sr(S_H))
    g.e("s_mov_b32 %s, s2" % sr(S_CU))
    g.e("s_cmp_ge_u32 %s, 6" % sr(S_J))
    g.e("s_cselect_b32 %s, 1, 0" % sr(S_BB))
    g.e("s_mul_i32 s99, %s, 6" % sr(S_BB))
    g.e("s_sub_u32 s98, %s, s99" % sr(S_J))
    g.e("s_mov_b32 %s, s98" % sr(S_SIX))
    g.e("s_mul_i32 s99, s98, %d" % (((512 - SH) // 2) * 43691))
    g.e("s_lshr_b32 s99, s99, 17")
    g.e("s_add_u32 s98, s98, 1")
    g.e("s_mul_i32 s98, s98, %d" % (((512 - SH) // 2) * 43691))
    g.e("s_lshr_b32 %s, s98, 17" % sr(S_UEND))
    g.e("s_lshl_b32 s98, %s, 4" % sr(S_BB))
    g.e("s_add_u32 s98, s98, %s" % sr(S_H))
    g.e("s_lshl_b32 %s, s98, 8" % sr(S_CTR))
    g.e("s_add_u32 %s, %s, %d" % (sr(S_CTR), sr(S_CTR), WS_CT))
    g.e("s_lshl_b32 %s, s98, 21" % sr(S_SLAB))
    g.e("s_add_u32 s100, s99, %s" % sr(S_WAVE))
    g.e("s_lshl_b32 s100, s100, 12")
    g.e("s_add_u32 %s, %s, s100" % (sr(S_CUR), sr(S_SLAB)))
    g.e("v_lshlrev_b32 v4, 10, %s" % v(V_G))
    g.e("v_lshl_add_u32 v4, %s, 4, v4" % v(V_L16))
    g.e("s_add_u32 s99, s99, 8")
    g.e("v_mov_b32 v5, %d" % L_CNT)
    g.e("v_mov_b32 v6, s99")
    g.e("v_mov_b32 v7, 0")
    g.e("ds_write_b64 v5, v[6:7]")
    stamp(g, 0, 15)
    g.e("s_and_b32 %s, %s, 3" % (sr(S_T[0]), sr(S_J)))
    g.e("s_cmp_ge_u32 %s, 4" % sr(S_J))
    g.e("s_cselect_b32 %s, 1, 0" % sr(S_T[1]))
    g.e("s_cmp_ge_u32 %s, 8" % sr(S_J))
    g.e("s_cselect_b32 %s, 0, %s" % (sr(S_T[1]), sr(S_T[1])))
    skip = g.newlab("NOQ"); skip2 = g.newlab("NOQ")
    g.e("s_cmp_ge_u32 %s, 1" % sr(S_WAVE))
    g.e("s_cbranch_scc1 %s" % skip)
    sk3 = g.newlab("NOZ")
    g.e("s_cmp_lg_u32 %s, 0" % sr(S_SIX))
    g.e("s_cbranch_scc1 %s" % sk3)
    g.e("s_mov_b64 exec, 1")
    g.e("buffer_store_dword v7, off, %s, %s sc1" % (sr(SRD_WS, 4), sr(S_CTR)))
    g.e("s_mov_b64 exec, -1")
    g.lab(sk3)
    q_job(g, True)
    g.e("s_branch %s" % skip2)
    g.lab(skip)
    g.e("s_barrier")
    g.lab(skip2)
    VOFF = [0, 512, 256, 768]
    def a_issue(slot, base):
        p = slot & 7
        if p < 4:
            g.e("buffer_load_dwordx4 %s, v4, %s, %s offen offset:%d nt" % (v(RING + 4 * slot, 4), sr(SRD_K, 4), sr(base), p * 256))
        else:
            g.e("buffer_load_dwordx4 %s, v4, %s, %s offen offset:%d nt" % (v(RING + 4 * slot, 4), sr(SRD_V, 4), sr(base), VOFF[p - 4]))
    g.e("s_mul_i32 s98, %s, %d" % (sr(S_J), 16 * 43691))
    g.e("s_lshr_b32 s98, s98, 17")
    g.e("s_add_u32 s99, %s, 1" % sr(S_J))
    g.e("s_mul_i32 s99, s99, %d" % (16 * 43691))
    g.e("s_lshr_b32 s99, s99, 17")
    g.e("s_sub_u32 %s, s99, s98" % sr(S_QN))
    g.e("s_add_u32 s98, s98, %s" % sr(S_WAVE))
    g.e("s_sub_u32 %s, s98, 2" % sr(S_QU))
    g.e("s_cmp_lt_u32 %s, 2" % sr(S_WAVE))
    g.e("s_cselect_b32 %s, 0, 1" % sr(S_QV))
    g.e("s_cmp_ge_u32 %s, s99" % sr(S_QU))
    g.e("s_cselect_b32 %s, 0, %s" % (sr(S_QV), sr(S_QV)))
    LATE = opt("LATE", 6)
    def uk_loads():
        skip = g.newlab("NOUK")
        g.e("s_cmp_eq_u32 %s, 0" % sr(S_QV))
        g.e("s_cbranch_scc1 %s" % skip)
        g.e("v_lshlrev_b32 v12, 15, %s" % v(V_G))
        g.e("v_lshl_add_u32 v12, %s, 4, v12" % v(V_L16))
        g.e("s_lshl_b32 s98, %s, 17" % sr(S_QU))
        g.e("s_lshl_b32 s99, %s, 9" % sr(S_H))
        g.e("s_add_u32 s98, s98, s99")
        for i in range(4):
            for hf in range(2):
                g.e("buffer_load_dwordx4 %s, v12, %s, s98 offen offset:%d nt" % (v(128 + 4 * (2 * i + hf), 4), sr(SRD_WO, 4), hf * 256))
            g.e("s_add_u32 s98, s98, 8192")
        g.lab(skip)
    def wo_loads():
        skip = g.newlab("NOWO")
        g.e("s_cmp_ge_u32 %s, 4" % sr(S_J))
        g.e("s_cbranch_scc1 %s" % skip)
        g.e("s_lshl_b32 %s, %s, 8" % (sr(S_T[1]), sr(S_H)))
        g.e("s_lshl_b32 %s, %s, 6" % (sr(S_T[2]), sr(S_J)))
        g.e("s_add_u32 %s, %s, %s" % (sr(S_T[1]), sr(S_T[1]), sr(S_T[2])))
        load_rows896(g, SRD_WOA, S_T[1], 8, 160)
        g.lab(skip)
    def pre_loads():
        for p in range(PRE):
            a_issue(p, S_CUR)
    uk_loads()
    sk = g.newlab("W0")
    g.e("s_cmp_eq_u32 %s, 0" % sr(S_WAVE))
    g.e("s_cbranch_scc1 %s" % sk)
    g.e("s_barrier")
    g.lab(sk)
    pre_loads()
    g.e("s_waitcnt lgkmcnt(0)")
    g.e("s_barrier")
    g.e("v_lshlrev_b32 v12, 4, %s" % v(V_L16))
    g.e("s_lshl_b32 s98, %s, 9" % sr(S_BB))
    g.e("s_add_u32 s98, s98, %d" % L_QB)
    g.e("v_add_u32 v13, s98, v12")
    g.e("ds_read_b128 v[16:19], v13")
    g.e("ds_read_b128 v[20:23], v13 offset:256")
    g.e("s_waitcnt vmcnt(%d)" % PRE)
    sk = g.newlab("TAGOK")
    g.e("s_cmp_lt_u32 %s, 1" % sr(S_WAVE))
    g.e("s_cbranch_scc1 %s" % sk)
    g.e("v_readfirstlane_b32 %s, v127" % sr(S_TAG))
    g.e("s_add_u32 %s, %s, 1" % (sr(S_TAG), sr(S_TAG)))
    g.lab(sk)
    stamp(g, 1, 15)
    skipq = g.newlab("NOQABS")
    g.e("s_cmp_eq_u32 %s, 0" % sr(S_QV))
    g.e("s_cbranch_scc1 %s" % skipq)
    g.c("---- QABS on A CUs ----")
    g.e("v_add_u32 v13, %d, v12" % (L_QB + 1024))
    for b in range(2):
        for hf in range(2):
            g.e("ds_read_b128 %s, v13 offset:%d" % (v(64 + b * 8 + hf * 4, 4), b * 512 + hf * 256))
    g.e("s_waitcnt lgkmcnt(0)")
    for i in range(4):
        ra = 128 + 8 * i
        for b in range(2):
            d = 32 + b * 4 + i
            Q = 64 + b * 8
            g.e("v_dot2_f32_bf16 %s, %s, %s, 0" % (v(d), v(ra), v(Q)))
            for j in range(1, 8):
                g.e("v_dot2_f32_bf16 %s, %s, %s, %s" % (v(d), v(ra + j), v(Q + j), v(d)))
    g.nop(2)
    dpp_allreduce16(g, "v_add_f32", list(range(32, 40)))
    for i in range(1, 4):
        g.e("s_lshl_b64 %s, %s, %d" % (sr(S_M2, 2), sr(S_MK, 2), i))
        g.e("v_cndmask_b32 v32, v32, %s, %s" % (v(32 + i), sr(S_M2, 2)))
        g.e("v_cndmask_b32 v36, v36, %s, %s" % (v(36 + i), sr(S_M2, 2)))
    g.e("v_lshl_add_u32 v14, %s, 2, %s" % (v(V_G), v(V_L16)))
    g.e("s_lshl_b32 s99, %s, 4" % sr(S_QU))
    g.e("s_and_b32 s98, s99, 255")
    g.e("v_add_u32 v14, s98, v14")
    g.e("v_and_b32 v40, 7, v14")
    g.e("v_lshlrev_b32 v40, 1, v40")
    g.e("v_bfe_u32 v41, v14, 3, 1")
    g.e("v_lshrrev_b32 v42, 6, v14")
    g.e("v_lshl_add_u32 v41, v42, 1, v41")
    g.e("v_lshl_add_u32 v40, v41, 11, v40")
    g.e("v_bfe_u32 v41, v14, 4, 2")
    g.e("v_lshl_add_u32 v14, v41, 8, v40")
    g.e("s_lshr_b32 s98, s99, 8")
    g.e("s_lshl_b32 s98, s98, 14")
    g.e("s_lshl_b32 s99, %s, 4" % sr(S_H))
    g.e("s_add_u32 s98, s98, s99")
    for b in range(2):
        x = 32 + 4 * b
        g.e("v_cvt_pk_bf16_f32 %s, %s, %s" % (v(40 + 2 * b), v(x), v(x)))
        g.e("v_lshlrev_b32 %s, 16, %s" % (v(41 + 2 * b), v(40 + 2 * b)))
        g.e("v_sub_f32 %s, %s, %s" % (v(41 + 2 * b), v(x), v(41 + 2 * b)))
        g.e("v_cvt_pk_bf16_f32 %s, %s, %s" % (v(41 + 2 * b), v(41 + 2 * b), v(41 + 2 * b)))
        g.e("s_add_u32 s99, s98, %d" % (WS_QH + b * 65536))
        g.e("s_add_u32 s100, s98, %d" % (WS_QH + b * 65536 + 1024))
        g.e("s_mov_b32 exec_lo, 0x000f000f")
        g.e("s_mov_b32 exec_hi, 0x000f000f")
        g.e("buffer_store_short %s, v14, %s, s99 offen sc1" % (v(40 + 2 * b), sr(SRD_WS, 4)))
        g.e("buffer_store_short %s, v14, %s, s100 offen sc1" % (v(41 + 2 * b), sr(SRD_WS, 4)))
        g.e("s_mov_b64 exec, -1")
    g.e("v_mov_b32 v7, 1")
    g.e("s_waitcnt vmcnt(0)")
    g.e("s_mov_b64 exec, 1")
    g.e("ds_add_rtn_u32 v6, v5, v7 offset:4")
    g.e("s_waitcnt lgkmcnt(0)")
    g.e("v_readfirstlane_b32 s98, v6")
    g.e("s_add_u32 s98, s98, 1")
    g.e("s_cmp_lg_u32 s98, %s" % sr(S_QN))
    sk2 = g.newlab("QAF")
    g.e("s_cbranch_scc1 %s" % sk2)
    g.e("s_lshl_b32 s98, %s, 2" % sr(S_CU))
    g.e("s_add_u32 s98, s98, %d" % WS_QF)
    g.e("v_mov_b32 v13, %s" % sr(S_TAG))
    g.e("buffer_store_dword v13, off, %s, s98 sc1" % sr(SRD_WS, 4))
    g.lab(sk2)
    g.e("s_mov_b64 exec, -1")
    stamp(g, 5, 15)
    g.lab(skipq)
    wo_loads()
    g.e("s_waitcnt lgkmcnt(0)")
    g.e("s_branch L_A_MAIN")

    g.lab("L_ROLE_B0")
    g.q = []
    g.c("==== ROLE B setup ====")
    g.e("s_sub_u32 s99, s2, 192")
    g.e("s_lshr_b32 %s, s99, 2" % sr(S_H))
    g.e("s_and_b32 %s, s99, 3" % sr(S_J))
    g.e("s_mov_b32 %s, s2" % sr(S_CU))
    g.e("s_lshr_b32 %s, s99, 5" % sr(S_BB))
    g.e("s_and_b32 %s, s99, 31" % sr(S_KR))
    g.e("s_and_b32 %s, %s, 1" % (sr(S_DH), sr(S_J)))
    stamp(g, 0, 15)
    g.e("s_mov_b32 %s, %s" % (sr(S_T[0]), sr(S_J)))
    g.e("s_mov_b32 %s, 1" % sr(S_T[1]))
    skip = g.newlab("NOQB"); skip2 = g.newlab("NOQB")
    g.e("s_cmp_ge_u32 %s, 1" % sr(S_WAVE))
    g.e("s_cbranch_scc1 %s" % skip)
    q_job(g, False)
    g.e("s_branch %s" % skip2)
    g.lab(skip)
    g.e("s_barrier")
    g.lab(skip2)
    g.e("s_branch L_ROLE_B")

    g.lab("L_A_MAIN")
    g.c("================ ROLE A main ================")
    for i in range(16):
        g.e("v_mov_b32 %s, 0" % v(32 + i))
    g.e("v_mov_b32 v8, 0xff800000")
    g.e("v_mov_b32 v9, 0")
    g.e("v_mov_b32 v7, 1")
    g.e("s_mov_b32 %s, %d" % (sr(S_FIRST), (PRE - D) // 2))
    g.e("s_mov_b32 %s, 1" % sr(S_VALID))
    g.e("s_mov_b32 %s, 0" % sr(S_MODE))
    g.e("s_mov_b32 %s, 0x3db8aa3b" % sr(S_SC))
    Q = 16
    assert D <= 6 and PRE <= 8
    def unit_body(s0):
        o0 = 8 - s0
        sk = g.newlab("GR"); sk2 = g.newlab("GR")
        g.e("s_mov_b64 exec, 1")
        g.e("s_cmp_lg_u32 %s, 0" % sr(S_MODE))
        g.e("s_cbranch_scc1 %s" % sk)
        g.e("ds_add_rtn_u32 v6, v5, v7")
        g.e("s_branch %s" % sk2)
        g.lab(sk)
        g.e("v_mov_b32 v6, 1")
        g.e("buffer_atomic_add v6, off, %s, %s sc0 sc1" % (sr(SRD_WS, 4), sr(S_CTR)))
        g.lab(sk2)
        g.e("s_mov_b64 exec, -1")
        def resolve():
            gl = g.newlab("RG"); fin = g.newlab("RF"); loc = g.newlab("RL")
            g.e("s_waitcnt vmcnt(2) lgkmcnt(0)")
            g.e("v_readfirstlane_b32 %s, v6" % sr(S_NU))
            g.e("s_cmp_lg_u32 %s, 0" % sr(S_MODE))
            g.e("s_cbranch_scc1 %s" % gl)
            g.e("s_add_u32 s98, %s, 8" % sr(S_NU))
            g.e("s_cmp_ge_u32 s98, %s" % sr(S_UEND))
            g.e("s_cselect_b32 %s, 1, 0" % sr(S_MODE))
            g.e("s_cmp_lt_u32 %s, %s" % (sr(S_NU), sr(S_UEND)))
            g.e("s_cbranch_scc1 %s" % fin)
            g.e("s_mov_b64 exec, 1")
            g.e("v_mov_b32 v6, 1")
            g.e("buffer_atomic_add v6, off, %s, %s sc0 sc1" % (sr(SRD_WS, 4), sr(S_CTR)))
            g.e("s_mov_b64 exec, -1")
            g.e("s_waitcnt vmcnt(0)")
            g.e("v_readfirstlane_b32 %s, v6" % sr(S_NU))
            g.lab(gl)
            g.e("s_min_u32 %s, %s, 4096" % (sr(S_NU), sr(S_NU)))
            g.e("s_add_u32 %s, %s, %d" % (sr(S_NU), sr(S_NU), 512 - SH))
            g.e("s_cmp_lt_u32 %s, 512" % sr(S_NU))
            g.e("s_cselect_b32 %s, 1, 0" % sr(S_VALID))
            g.lab(fin)
            g.e("s_lshl_b32 %s, %s, 12" % (sr(S_NXT), sr(S_NU)))
            g.e("s_add_u32 %s, %s, %s" % (sr(S_NXT), sr(S_NXT), sr(S_SLAB)))
        def step_wait(c):
            g.e("s_waitcnt vmcnt(%d)" % (D - 2))
            if 2 * c + D - 1 >= 8:
                sk = g.newlab("W")
                g.e("s_cmp_lg_u32 %s, 0" % sr(S_VALID))
                g.e("s_cbranch_scc1 %s" % sk)
                g.e("s_waitcnt vmcnt(%d)" % min(D - 2, 6 - 2 * c))
                g.lab(sk)
        def step_issue(c):
            p = 2 * c + D
            sk = g.newlab("I"); sk2 = g.newlab("I")
            g.e("s_cmp_eq_u32 %s, 0" % sr(S_FIRST))
            g.e("s_cbranch_scc1 %s" % sk2)
            g.e("s_sub_u32 %s, %s, 1" % (sr(S_FIRST), sr(S_FIRST)))
            g.e("s_branch %s" % sk)
            g.lab(sk2)
            if p < 8:
                a_issue(s0 + p, S_CUR); a_issue(s0 + p + 1, S_CUR)
            else:
                g.e("s_cmp_eq_u32 %s, 0" % sr(S_VALID))
                g.e("s_cbranch_scc1 %s" % sk)
                a_issue(o0 + p - 8, S_NXT); a_issue(o0 + p - 7, S_NXT)
            g.lab(sk)
        for c in range(2):
            step_wait(c)
            ra, rb_ = RING + 4 * s0 + 8 * c, RING + 4 * s0 + 8 * c + 4
            g.e("v_dot2_f32_bf16 %s, %s, %s, 0" % (v(108 + c), v(ra), v(Q)))
            g.e("v_dot2_f32_bf16 %s, %s, %s, 0" % (v(112 + c), v(rb_), v(Q + 4)))
            for j in range(1, 4):
                g.e("v_dot2_f32_bf16 %s, %s, %s, %s" % (v(108 + c), v(ra + j), v(Q + j), v(108 + c)))
                g.e("v_dot2_f32_bf16 %s, %s, %s, %s" % (v(112 + c), v(rb_ + j), v(Q + 4 + j), v(112 + c)))
            if c == 1:
                resolve()
            step_issue(c)
        g.nop(2)
        g.e("v_add_f32 v108, v108, v112")
        g.e("v_add_f32 v109, v109, v113")
        dpp_allreduce16(g, "v_add_f32", [108, 109])
        g.e("v_cvt_pk_bf16_f32 v112, v108, v109")
        g.e("v_lshlrev_b32 v108, 16, v112")
        g.e("v_and_b32 v109, 0xffff0000, v112")
        g.e("v_mul_f32 v108, %s, v108" % sr(S_SC))
        g.e("v_mul_f32 v109, %s, v109" % sr(S_SC))
        g.e("v_max3_f32 v10, v108, v109, v8")
        g.e("v_cmp_gt_f32 vcc, v10, v8")
        g.e("v_sub_f32 v108, v108, v10")
        g.e("v_sub_f32 v109, v109, v10")
        g.e("v_exp_f32 v108, v108")
        g.e("v_exp_f32 v109, v109")
        sk = g.newlab("NORS")
        g.e("s_cbranch_vccz %s" % sk)
        g.e("v_sub_f32 v11, v8, v10")
        g.e("v_exp_f32 v11, v11")
        g.e("v_mov_b32 v8, v10")
        g.e("v_mul_f32 v9, v9, v11")
        for i in range(16):
            g.e("v_mul_f32 %s, %s, v11" % (v(32 + i), v(32 + i)))
        g.lab(sk)
        g.e("v_cvt_pk_bf16_f32 v96, v108, v109")
        g.e("v_add_f32 v9, v9, v108")
        g.e("v_add_f32 v9, v9, v109")
        for c in range(2, 4):
            step_wait(c)
            r0, r1 = RING + 4 * s0 + 8 * c, RING + 4 * s0 + 8 * c + 4
            hf = c - 2
            for j in range(4):
                g.e("v_perm_b32 %s, %s, %s, %s" % (v(100 + 2 * j), v(r1 + j), v(r0 + j), sr(S_PLO)))
                g.e("v_perm_b32 %s, %s, %s, %s" % (v(101 + 2 * j), v(r1 + j), v(r0 + j), sr(S_PHI)))
            step_issue(c)
            for e_ in range(8):
                g.e("v_dot2_f32_bf16 %s, %s, v96, %s" % (v(32 + 8 * hf + e_), v(100 + e_), v(32 + 8 * hf + e_)))
        g.e("s_cmp_eq_u32 %s, 0" % sr(S_VALID))
        g.e("s_cbranch_scc1 A_DONE")
        g.e("s_mov_b32 %s, %s" % (sr(S_CUR), sr(S_NXT)))
    g.lab("A_LOOP")
    unit_body(0)
    unit_body(8)
    g.e("s_branch A_LOOP")
    g.lab("A_DONE")
    g.e("s_waitcnt lgkmcnt(0)")
    stamp(g, 2, 15)
    g.e("v_mov_b32 v10, v8")
    cross_rows(g, "v_max_f32", 10, 12)
    g.e("v_sub_f32 v11, v8, v10")
    g.e("v_exp_f32 v11, v11")
    g.nop(0)
    g.e("v_mul_f32 v9, v9, v11")
    for i in range(16):
        g.e("v_mul_f32 %s, %s, v11" % (v(32 + i), v(32 + i)))
    g.e("v_mov_b32 v11, v9")
    cross_rows(g, "v_add_f32", 11, 12)
    transpose_reduce16(g, 32)
    g.e("v_lshrrev_b32 v12, 1, %s" % v(V_G))
    g.e("v_lshlrev_b32 v12, 9, v12")
    g.e("v_and_b32 v13, 1, %s" % v(V_G))
    g.e("v_lshl_add_u32 v12, v13, 4, v12")
    g.e("v_lshl_add_u32 v12, %s, 5, v12" % v(V_L16))
    g.e("s_lshl_b32 s98, %s, 10" % sr(S_WAVE))
    g.e("v_add_u32 v12, s98, v12")
    g.e("ds_write_b128 v12, %s offset:%d" % (v(32, 4), L_AO))
    g.e("s_lshl_b32 s98, %s, 3" % sr(S_WAVE))
    g.e("v_mov_b32 v12, s98")
    g.e("s_mov_b64 exec, 1")
    g.e("ds_write_b64 v12, v[10:11] offset:%d" % L_AM)
    g.e("s_mov_b64 exec, -1")
    g.e("s_waitcnt lgkmcnt(0)")
    g.e("s_barrier")
    skip = g.newlab("ACOMB")
    g.e("s_cmp_ge_u32 %s, 4" % sr(S_WAVE))
    g.e("s_cbranch_scc1 %s" % skip)
    g.e("v_lshlrev_b32 v12, 2, v0")
    g.e("v_mov_b32 v13, 0")
    for w in range(8):
        g.e("ds_read_b32 %s, v12 offset:%d" % (v(32 + w), L_AO + w * 1024))
    for x in range(4):
        g.e("ds_read_b128 %s, v13 offset:%d" % (v(48 + 4 * x, 4), L_AM + 16 * x))
    g.e("s_waitcnt lgkmcnt(0)")
    g.e("v_max3_f32 v10, v48, v50, v52")
    g.e("v_max3_f32 v10, v10, v54, v56")
    g.e("v_max3_f32 v10, v10, v58, v60")
    g.e("v_max_f32 v10, v10, v62")
    for w in range(8):
        g.e("v_sub_f32 %s, %s, v10" % (v(48 + 2 * w), v(48 + 2 * w)))
    for w in range(8):
        g.e("v_exp_f32 %s, %s" % (v(48 + 2 * w), v(48 + 2 * w)))
    g.nop(0)
    g.e("v_mul_f32 v14, v32, v48")
    g.e("v_mul_f32 v11, v49, v48")
    for w in range(1, 8):
        g.e("v_fmac_f32 v14, %s, %s" % (v(32 + w), v(48 + 2 * w)))
        g.e("v_fmac_f32 v11, %s, %s" % (v(49 + 2 * w), v(48 + 2 * w)))
    g.e("s_lshl_b32 s98, %s, 12" % sr(S_CU))
    g.e("s_add_u32 s98, s98, %d" % WS_AP)
    g.e("v_mov_b32 v15, %s" % sr(S_TAG))
    g.e("v_lshlrev_b32 v12, 3, v0")
    g.e("buffer_store_dwordx2 v[14:15], v12, %s, s98 offen sc1" % sr(SRD_WS, 4))
    g.e("s_cmp_lg_u32 %s, 0" % sr(S_WAVE))
    g.e("s_cbranch_scc1 %s" % skip)
    g.e("v_mov_b32 v32, v10")
    g.e("v_mov_b32 v33, %s" % sr(S_TAG))
    g.e("v_mov_b32 v34, v11")
    g.e("v_mov_b32 v35, %s" % sr(S_TAG))
    g.e("s_mov_b64 exec, 1")
    g.e("buffer_store_dwordx4 v[32:35], off, %s, s98 offset:2048 sc1" % sr(SRD_WS, 4))
    g.e("s_mov_b64 exec, -1")
    g.lab(skip)
    flag_store(g, WS_AF, S_CU, 0)
    stamp(g, 3, 15)
    g.e("s_cmp_ge_u32 %s, 8" % sr(S_J))
    g.e("s_cbranch_scc1 L_END")
    g.e("s_cmp_ge_u32 %s, 4" % sr(S_J))
    g.e("s_cbranch_scc1 L_FINAL")
    g.c("---- A combine (CUs j<4): rows h*256+64j ----")
    preperm(g, 160, 8)
    g.e("s_mul_i32 s99, %s, 48" % sr(S_H))
    g.e("s_add_u32 s99, s99, %d" % WS_AF)
    poll_flags(g, "s99", 12, sleep=1)
    stamp(g, 4, 15)
    skip = g.newlab("ACB")
    g.e("s_cmp_ge_u32 %s, 2" % sr(S_WAVE))
    g.e("s_cbranch_scc1 %s" % skip)
    lp = g.newlab("ACL"); ok = g.newlab("ACOK")
    g.e("s_mov_b32 %s, 0" % sr(S_SPIN))
    g.e("s_lshl_b32 s99, %s, 9" % sr(S_J))
    g.e("v_lshlrev_b32 v12, 3, %s" % v(V_LANE))
    g.e("v_add_u32 v12, s99, v12")
    g.lab(lp)
    g.e("s_mul_i32 s98, %s, 12" % sr(S_H))
    g.e("s_mul_i32 s99, %s, 6" % sr(S_WAVE))
    g.e("s_add_u32 s98, s98, s99")
    g.e("s_lshl_b32 s98, s98, 12")
    g.e("s_add_u32 s98, s98, %d" % WS_AP)
    for s_ in range(6):
        g.e("buffer_load_dwordx2 %s, v12, %s, s98 offen sc1" % (v(32 + 2 * s_, 2), sr(SRD_WS, 4)))
        g.e("buffer_load_dwordx4 %s, off, %s, s98 offset:2048 sc1" % (v(80 + 4 * s_, 4), sr(SRD_WS, 4)))
        g.e("s_add_u32 s98, s98, 4096")
    g.e("s_waitcnt vmcnt(0)")
    g.e("v_xor_b32 v13, %s, v33" % sr(S_TAG))
    for r_ in list(range(35, 44, 2)) + list(range(81, 104, 2)):
        g.e("v_xor_b32 v14, %s, %s" % (sr(S_TAG), v(r_)))
        g.e("v_or_b32 v13, v13, v14")
    g.e("v_cmp_eq_u32 vcc, 0, v13")
    g.e("s_cmp_eq_u64 vcc, exec")
    g.e("s_cbranch_scc1 %s" % ok)
    g.e("s_add_u32 %s, %s, 1" % (sr(S_SPIN), sr(S_SPIN)))
    g.e("s_cmp_gt_u32 %s, %d" % (sr(S_SPIN), SPIN_MAX))
    g.e("s_cbranch_scc0 %s" % lp)
    g.lab(ok)
    g.e("v_max3_f32 v10, v80, v84, v88")
    g.e("v_max3_f32 v10, v10, v92, v96")
    g.e("v_max_f32 v10, v10, v100")
    for s_ in range(6):
        g.e("v_sub_f32 %s, %s, v10" % (v(80 + 4 * s_), v(80 + 4 * s_)))
    for s_ in range(6):
        g.e("v_exp_f32 %s, %s" % (v(80 + 4 * s_), v(80 + 4 * s_)))
    g.nop(0)
    g.e("v_mul_f32 v14, v32, v80")
    g.e("v_mul_f32 v11, v82, v80")
    for s_ in range(1, 6):
        g.e("v_fmac_f32 v14, %s, %s" % (v(32 + 2 * s_), v(80 + 4 * s_)))
        g.e("v_fmac_f32 v11, %s, %s" % (v(82 + 4 * s_), v(80 + 4 * s_)))
    g.e("v_rcp_f32 v11, v11")
    g.nop(0)
    g.e("v_mul_f32 v14, v14, v11")
    g.e("v_cvt_pk_bf16_f32 v14, v14, v14")
    g.e("v_lshlrev_b32 v12, 1, v0")
    g.e("ds_write_b16 v12, v14 offset:%d" % L_OA)
    g.lab(skip)
    g.e("s_waitcnt lgkmcnt(0)")
    g.e("s_barrier")
    out_gemv(g, 160, 8, L_OA, 128, 48, 32)
    g.e("s_lshl_b32 %s, %s, 2" % (sr(S_YI), sr(S_H)))
    g.e("s_add_u32 %s, %s, %s" % (sr(S_YI), sr(S_YI), sr(S_J)))
    g.e("s_branch L_YPUB")

    g.lab("L_ROLE_B")
    g.c("================ ROLE B main ================")
    if "--noB" in sys.argv:
        g.e("s_branch L_END")
    for i in range(4):
        g.e("s_lshl_b32 s98, %s, 2" % sr(S_WAVE))
        g.e("s_add_u32 s98, s98, %d" % i)
        g.e("s_and_b32 s98, s98, 15")
        g.e("s_and_b32 s99, s98, 7")
        g.e("s_lshl_b32 s99, s99, 1")
        g.e("s_lshr_b32 s98, s98, 3")
        g.e("s_or_b32 s98, s98, s99")
        g.e("v_xor_b32 %s, s98, %s" % (v(8 + i), v(V_LANE)))
        g.e("v_lshlrev_b32 %s, 4, %s" % (v(8 + i), v(8 + i)))
    g.e("s_lshl_b32 s98, %s, 12" % sr(S_BB))
    g.e("s_lshl_b32 s99, %s, 7" % sr(S_KR))
    g.e("s_add_u32 s98, s98, s99")
    g.e("s_lshl_b32 s99, %s, 2" % sr(S_WAVE))
    g.e("s_add_u32 s98, s98, s99")
    g.e("s_lshl_b32 %s, s98, 11" % sr(S_CKV))
    g.e("s_lshl_b32 %s, %s, 13" % (sr(S_LW), sr(S_WAVE)))
    def dma_tile(t):
        buf = L_TILE0 if t % 2 == 0 else L_TILE1
        for i in range(4):
            for hf in range(2):
                g.e("s_add_u32 s98, %s, %d" % (sr(S_LW), buf + i * 2048 + hf * 1024))
                g.e("s_mov_b32 m0, s98")
                g.e("s_add_u32 s99, %s, %d" % (sr(S_CKV), t * 65536 + i * 2048 + hf * 1024))
                g.vm("dma%d" % t, "buffer_load_dwordx4 %s, %s, s99 offen nt lds" % (v(8 + i), sr(SRD_K, 4)))
    dma_tile(0)
    dma_tile(1)
    for t in (2, 3):
        for i in range(4):
            for hf in range(2):
                g.e("s_add_u32 s99, %s, %d" % (sr(S_CKV), t * 65536 + i * 2048 + hf * 1024))
                g.vm("rt%d" % t, "buffer_load_dwordx4 %s, %s, %s, s99 offen nt" % (v(192 + 32 * (t - 2) + 4 * (2 * i + hf), 4), v(8 + i), sr(SRD_K, 4)))
    g.e("v_lshlrev_b32 v31, 4, %s" % v(V_LANE))
    g.e("v_add_u32 v31, %s, v31" % sr(S_LW))
    UV = 192
    uvn = [0]
    def uv_setup():
        g.e("v_lshlrev_b32 v30, 17, %s" % v(V_G))
        g.e("v_lshl_add_u32 v30, %s, 4, v30" % v(V_L16))
        g.e("s_lshr_b32 s98, %s, 1" % sr(S_J))
        g.e("s_lshl_b32 s98, s98, 9")
        g.e("s_lshl_b32 s99, %s, 6" % sr(S_WAVE))
        g.e("s_add_u32 s98, s98, s99")
        g.e("s_lshl_b32 s98, s98, 13")
        g.e("s_lshl_b32 s99, %s, 9" % sr(S_H))
        g.e("s_add_u32 s98, s98, s99")
        g.e("s_lshl_b32 s99, %s, 8" % sr(S_DH))
        g.e("s_add_u32 %s, s98, s99" % sr(S_QU))
    def uv_some(k):
        for _ in range(k):
            n = uvn[0]
            if n >= 16:
                return
            g.e("buffer_load_dwordx4 %s, v30, %s, %s offen nt" % (v(UV + 4 * n, 4), sr(SRD_V, 4), sr(S_QU)))
            g.e("s_add_u32 %s, %s, 8192" % (sr(S_QU), sr(S_QU)))
            uvn[0] += 1
    uv_setup()
    g.e("v_and_b32 v12, 7, %s" % v(V_L16))
    g.e("v_lshlrev_b32 v12, 1, v12")
    g.e("v_lshrrev_b32 v13, 3, %s" % v(V_L16))
    g.e("v_or_b32 v12, v12, v13")
    g.e("v_lshlrev_b32 v13, 1, %s" % v(V_G))
    g.e("v_xor_b32 v12, v12, v13")
    g.e("s_lshr_b32 s98, %s, 2" % sr(S_WAVE))
    g.e("s_lshl_b32 s98, s98, 15")
    g.e("s_and_b32 s99, %s, 3" % sr(S_WAVE))
    g.e("s_lshl_b32 s99, s99, 9")
    g.e("s_add_u32 s98, s98, s99")
    g.e("v_lshlrev_b32 v13, 11, %s" % v(V_L16))
    g.e("v_add_u32 v13, s98, v13")
    for x, X in enumerate((0, 1, 8, 9)):
        g.e("v_xor_b32 v14, %d, v12" % X)
        g.e("v_lshl_add_u32 %s, v14, 4, v13" % v(4 + x))
    g.e("v_lshrrev_b32 v12, 2, %s" % v(V_L16))
    g.e("v_lshl_add_u32 v12, %s, 2, v12" % v(V_G))
    g.e("v_and_b32 v13, 7, v12")
    g.e("v_lshlrev_b32 v13, 1, v13")
    g.e("v_lshrrev_b32 v14, 3, v12")
    g.e("v_or_b32 v13, v13, v14")
    g.e("v_bfe_u32 v14, %s, 1, 1" % v(V_L16))
    g.e("v_xor_b32 v13, v13, v14")
    g.e("v_lshlrev_b32 v12, 11, v12")
    g.e("v_and_b32 v14, 1, %s" % v(V_L16))
    g.e("v_lshl_add_u32 v12, v14, 3, v12")
    g.e("s_lshl_b32 s98, %s, 8" % sr(S_WAVE))
    g.e("v_add_u32 v12, s98, v12")
    for ct in range(8):
        g.e("v_xor_b32 v14, %d, v13" % (2 * ct))
        g.e("v_lshl_add_u32 %s, v14, 4, v12" % v(16 + ct))
    g.e("v_lshlrev_b32 v29, 4, %s" % v(V_LANE))
    g.e("v_add_u32 v29, %d, v29" % L_SX)
    g.e("s_lshl_b32 s98, %s, 10" % sr(S_WAVE))
    g.e("v_add_u32 v28, s98, v29")
    ACC = 32
    for i in range(32):
        g.e("v_mov_b32 %s, 0" % v(ACC + i))
    g.e("v_mov_b32 v124, 0xff800000")
    g.e("v_mov_b32 v125, 0")
    g.e("s_mov_b32 %s, 0x3db8aa3b" % sr(S_SC))
    g.e("s_waitcnt vmcnt(32)")
    g.e("v_readfirstlane_b32 %s, v127" % sr(S_TAG))
    g.e("s_add_u32 %s, %s, 1" % (sr(S_TAG), sr(S_TAG)))
    stamp(g, 2, 15)
    if "--ckvtest" in sys.argv:
        g.e("s_waitcnt vmcnt(16)")
        stamp(g, 3, 15)
        g.e("s_waitcnt vmcnt(0)")
        stamp(g, 4, 15)
        g.e("s_branch L_END")
    poll_flags(g, WS_QF, 192, pw=4)
    stamp(g, 3, 15)

    QF = 128
    g.c("---- ATT B ----")
    g.e("v_lshlrev_b32 v12, 4, %s" % v(V_LANE))
    g.e("s_and_b32 s98, %s, 3" % sr(S_WAVE))
    g.e("s_lshl_b32 s98, s98, 14")
    g.e("s_lshl_b32 s99, %s, 16" % sr(S_BB))
    g.e("s_add_u32 s98, s98, s99")
    g.e("s_add_u32 s98, s98, %d" % WS_QH)
    for ks in range(8):
        g.vm("qf", "buffer_load_dwordx4 %s, v12, %s, s98 offen offset:%d sc1" % (v(QF + 8 * ks, 4), sr(SRD_WS, 4), (ks & 1) * 2048))
        g.vm("qf", "buffer_load_dwordx4 %s, v12, %s, s98 offen offset:%d sc1" % (v(QF + 8 * ks + 4, 4), sr(SRD_WS, 4), (ks & 1) * 2048 + 1024))
        if ks & 1:
            g.e("s_add_u32 s98, s98, 4096")
    g.wait("qf")
    stamp(g, 16, 15)
    for t in range(4):
        g.c("tile %d" % t)
        if t: stamp(g, 16 + 3 * t, 15)
        g.e("s_waitcnt lgkmcnt(0)")
        g.e("s_barrier")
        if t >= 1 and t + 1 < 4:
            if t == 2:
                g.e("v_add_u32 v31, 0x10000, v31")
            for x in range(8):
                g.e("ds_write_b128 v31, %s offset:%d" % (v(192 + 32 * (t - 1) + 4 * x, 4), x * 1024))
        if t >= 1:
            op = "v_add_u32" if t % 2 == 1 else "v_subrev_u32"
            for r_ in list(range(4, 8)) + list(range(16, 24)):
                g.e("%s %s, 0x10000, %s" % (op, v(r_), v(r_)))
        if t >= 2: uv_some(2)
        for i in range(8):
            g.e("v_mov_b32 %s, 0" % v(80 + i))
        for ks in range(8):
            g.e("ds_read_b128 %s, %s offset:%d" % (v(88 + 4 * ks, 4), v(4 + (ks & 3)), (ks >> 2) * 256))
        for ks in range(8):
            g.e("s_waitcnt lgkmcnt(%d)" % (7 - ks))
            g.e("v_mfma_f32_16x16x32_bf16 %s, %s, %s, %s" % (v(80, 4), v(88 + 4 * ks, 4), v(QF + 8 * ks, 4), v(80, 4)))
            g.e("v_mfma_f32_16x16x32_bf16 %s, %s, %s, %s" % (v(84, 4), v(88 + 4 * ks, 4), v(QF + 8 * ks + 4, 4), v(84, 4)))
        g.nop(7)
        g.nop(1)
        for i in range(4):
            g.e("v_add_f32 %s, %s, %s" % (v(80 + i), v(80 + i), v(84 + i)))
        g.e("ds_write_b128 v28, %s" % v(80, 4))
        if t >= 2: uv_some(2)
        g.e("s_waitcnt lgkmcnt(0)")
        stamp(g, 17 + 3 * t, 15)
        g.e("s_barrier")
        stamp(g, 18 + 3 * t, 15)
        for x in range(8):
            g.e("ds_read_b128 %s, v29 offset:%d" % (v(88 + 4 * x, 4), x * 1024))
        g.e("s_waitcnt lgkmcnt(0)")
        for st in range(2):
            for i in range(4):
                a = 88 + 16 * st + i
                g.e("v_add_f32 %s, %s, %s" % (v(a), v(a), v(a + 4)))
                g.e("v_add_f32 %s, %s, %s" % (v(a + 8), v(a + 8), v(a + 12)))
                g.e("v_add_f32 %s, %s, %s" % (v(a), v(a), v(a + 8)))
                g.e("v_mul_f32 %s, %s, %s" % (v(80 + 4 * st + i), sr(S_SC), v(a)))
        if t >= 2: uv_some(2)
        g.e("v_max3_f32 v12, v80, v81, v82")
        g.e("v_max3_f32 v12, v12, v83, v84")
        g.e("v_max3_f32 v12, v12, v85, v86")
        g.e("v_max3_f32 v12, v12, v87, v124")
        cross_rows(g, "v_max_f32", 12, 13)
        g.e("v_sub_f32 v126, v124, v12")
        g.e("v_exp_f32 v126, v126")
        g.e("v_mov_b32 v124, v12")
        for i in range(8):
            g.e("v_sub_f32 %s, %s, v12" % (v(80 + i), v(80 + i)))
        for i in range(8):
            g.e("v_exp_f32 %s, %s" % (v(80 + i), v(80 + i)))
        g.e("v_mul_f32 v125, v125, v126")
        for i in range(8):
            g.e("v_add_f32 v125, v125, %s" % v(80 + i))
        for k in range(4):
            g.e("v_cvt_pk_bf16_f32 %s, %s, %s" % (v(120 + k), v(80 + 2 * k), v(81 + 2 * k)))
        for ct in range(8):
            g.e("ds_read_b64_tr_b16 %s, %s" % (v(88 + 4 * ct, 2), v(16 + ct)))
            g.e("ds_read_b64_tr_b16 %s, %s offset:32768" % (v(90 + 4 * ct, 2), v(16 + ct)))
        if t >= 2: uv_some(2)
        for i in range(32):
            g.e("v_mul_f32 %s, %s, v126" % (v(ACC + i), v(ACC + i)))
        for ct in range(8):
            g.e("s_waitcnt lgkmcnt(%d)" % (14 - 2 * ct))
            g.e("v_mfma_f32_16x16x32_bf16 %s, %s, %s, %s" % (v(ACC + 4 * ct, 4), v(88 + 4 * ct, 4), v(120, 4), v(ACC + 4 * ct, 4)))
    g.nop(7)
    g.nop(1)
    stamp(g, 4, 15)
    g.e("s_mul_i32 s98, %s, 4352" % sr(S_WAVE))
    g.e("s_movk_i32 s99, 272")
    g.e("v_mul_lo_u32 v12, %s, s99" % v(V_L16))
    g.e("v_lshl_add_u32 v12, %s, 3, v12" % v(V_G))
    g.e("v_add_u32 v12, s98, v12")
    for ct in range(8):
        g.e("v_cvt_pk_bf16_f32 %s, %s, %s" % (v(88 + 2 * ct), v(ACC + 4 * ct), v(ACC + 4 * ct + 1)))
        g.e("v_cvt_pk_bf16_f32 %s, %s, %s" % (v(89 + 2 * ct), v(ACC + 4 * ct + 2), v(ACC + 4 * ct + 3)))
        g.e("ds_write_b64 v12, %s offset:%d" % (v(88 + 2 * ct, 2), ct * 32))
    g.e("v_mul_lo_u32 v12, %s, s99" % v(V_G))
    g.e("v_lshl_add_u32 v12, %s, 4, v12" % v(V_L16))
    g.e("v_add_u32 v12, s98, v12")
    g.e("s_waitcnt lgkmcnt(0)")
    for x in range(4):
        g.e("ds_read_b128 %s, v12 offset:%d" % (v(88 + 4 * x, 4), x * 4 * 272))
    g.e("v_lshlrev_b32 v12, 11, %s" % v(V_G))
    g.e("v_lshl_add_u32 v12, %s, 4, v12" % v(V_L16))
    g.e("s_sub_u32 s98, %s, 192" % sr(S_CU))
    g.e("s_lshl_b32 s98, s98, 15")
    g.e("s_lshl_b32 s99, %s, 8" % sr(S_WAVE))
    g.e("s_add_u32 s98, s98, s99")
    g.e("s_add_u32 s98, s98, %d" % WS_PC)
    for x in range(4):
        g.e("s_waitcnt lgkmcnt(%d)" % (3 - x))
        g.e("buffer_store_dwordx4 %s, v12, %s, s98 offen sc1" % (v(88 + 4 * x, 4), sr(SRD_WS, 4)))
        g.e("s_add_u32 s98, s98, 8192")
    cross_rows(g, "v_add_f32", 125, 13)
    skip = g.newlab("PST")
    g.e("s_cmp_lg_u32 %s, 0" % sr(S_WAVE))
    g.e("s_cbranch_scc1 %s" % skip)
    g.e("v_lshlrev_b32 v12, 9, %s" % v(V_L16))
    g.e("s_sub_u32 s98, %s, 192" % sr(S_CU))
    g.e("s_lshl_b32 s98, s98, 3")
    g.e("s_add_u32 s98, s98, %d" % WS_PS)
    g.e("s_mov_b64 exec, 0xffff")
    g.e("buffer_store_dwordx2 %s, v12, %s, s98 offen sc1" % (v(124, 2), sr(SRD_WS, 4)))
    g.e("s_mov_b64 exec, -1")
    g.lab(skip)
    g.waitall()
    g.e("s_barrier")
    flag_store(g, WS_PF, S_CU, 192)
    stamp(g, 5, 15)
    def wo_b():
        g.e("s_lshl_b32 %s, %s, 8" % (sr(S_T[1]), sr(S_H)))
        g.e("s_lshl_b32 %s, %s, 7" % (sr(S_T[2]), sr(S_DH)))
        g.e("s_add_u32 %s, %s, %s" % (sr(S_T[1]), sr(S_T[1]), sr(S_T[2])))
        load_rows896(g, SRD_WO, S_T[1], 16, 128)
    skip = g.newlab("WOB")
    g.e("s_cmp_eq_u32 %s, 0" % sr(S_WAVE))
    g.e("s_cbranch_scc1 %s" % skip)
    wo_b()
    g.lab(skip)
    g.c("---- CTX ----")
    poll_flags(g, WS_PF, 64)
    stamp(g, 6, 15)
    g.q = []
    g.e("v_lshlrev_b32 v12, 3, %s" % v(V_LANE))
    g.e("s_lshl_b32 s98, %s, 9" % sr(S_H))
    g.e("s_add_u32 s98, s98, %d" % WS_PS)
    g.e("buffer_load_dwordx2 v[14:15], v12, %s, s98 offen sc1" % sr(SRD_WS, 4))
    g.e("v_lshlrev_b32 v13, 4, %s" % v(V_LANE))
    g.e("s_lshl_b32 s98, %s, 18" % sr(S_WAVE))
    g.e("s_lshl_b32 s99, %s, 11" % sr(S_H))
    g.e("s_add_u32 s98, s98, s99")
    g.e("s_lshr_b32 s99, %s, 1" % sr(S_J))
    g.e("s_lshl_b32 s99, s99, 10")
    g.e("s_add_u32 s98, s98, s99")
    g.e("s_add_u32 s98, s98, %d" % WS_PC)
    for i in range(8):
        g.e("buffer_load_dwordx4 %s, v13, %s, s98 offen sc1" % (v(64 + 4 * i, 4), sr(SRD_WS, 4)))
        g.e("s_add_u32 s98, s98, 32768")
    g.e("s_waitcnt vmcnt(8)")
    g.e("v_mov_b32 v12, v14")
    dpp_allreduce16(g, "v_max_f32", [12])
    cross_rows(g, "v_max_f32", 12, 13, both=False)
    g.e("v_sub_f32 v12, v14, v12")
    g.e("v_exp_f32 v12, v12")
    g.nop(0)
    g.e("v_mul_f32 v13, v12, v15")
    dpp_allreduce16(g, "v_add_f32", [13])
    cross_rows(g, "v_add_f32", 13, 14, both=False)
    g.e("v_rcp_f32 v13, v13")
    g.nop(0)
    g.e("v_mul_f32 v12, v12, v13")
    g.e("s_lshl_b32 s98, %s, 3" % sr(S_WAVE))
    g.nop(1)
    for i in range(8):
        g.e("v_readlane_b32 %s, v12, s98" % sr(S_O + i))
        g.e("s_add_u32 s98, s98, 1")
    for j in range(8):
        g.e("v_mov_b32 %s, 0" % v(32 + j))
    for i in range(8):
        g.e("s_waitcnt vmcnt(%d)" % (7 - i))
        for j in range(4):
            g.e("v_lshlrev_b32 v12, 16, %s" % v(64 + 4 * i + j))
            g.e("v_and_b32 v13, 0xffff0000, %s" % v(64 + 4 * i + j))
            g.e("v_fmac_f32 %s, %s, v12" % (v(32 + 2 * j), sr(S_O + i)))
            g.e("v_fmac_f32 %s, %s, v13" % (v(33 + 2 * j), sr(S_O + i)))
    skip = g.newlab("WOB0")
    g.e("s_cmp_lg_u32 %s, 0" % sr(S_WAVE))
    g.e("s_cbranch_scc1 %s" % skip)
    wo_b()
    g.lab(skip)
    g.e("s_and_b32 s98, %s, 3" % sr(S_WAVE))
    g.e("s_lshl_b32 s98, s98, 12")
    g.e("s_lshr_b32 s99, %s, 2" % sr(S_WAVE))
    g.e("s_lshl_b32 s99, s99, 11")
    g.e("s_add_u32 s98, s98, s99")
    g.e("s_add_u32 s98, s98, %d" % L_CX)
    g.e("v_lshlrev_b32 v13, 5, %s" % v(V_LANE))
    g.e("v_add_u32 v13, s98, v13")
    g.e("ds_write_b128 v13, %s" % v(32, 4))
    g.e("ds_write_b128 v13, %s offset:16" % v(36, 4))
    g.e("s_waitcnt lgkmcnt(0)")
    g.e("s_barrier")
    g.e("v_lshlrev_b32 v12, 3, v0")
    g.e("v_add_u32 v12, %d, v12" % L_CX)
    for x in range(4):
        g.e("ds_read_b64 %s, v12 offset:%d" % (v(32 + 2 * x, 2), x * 4096))
    g.e("s_waitcnt lgkmcnt(0)")
    g.e("v_add_f32 v32, v32, v34")
    g.e("v_add_f32 v33, v33, v35")
    g.e("v_add_f32 v36, v36, v38")
    g.e("v_add_f32 v37, v37, v39")
    g.e("v_add_f32 v32, v32, v36")
    g.e("v_add_f32 v33, v33, v37")
    g.e("v_cvt_pk_bf16_f32 v32, v32, v33")
    g.e("v_lshlrev_b32 v12, 2, v0")
    g.e("v_add_u32 v12, %d, v12" % L_CB)
    g.e("ds_write_b32 v12, v32")
    g.e("s_waitcnt lgkmcnt(0)")
    g.e("s_barrier")
    g.e("v_lshlrev_b32 v12, 5, %s" % v(V_G))
    g.e("s_lshl_b32 s98, %s, 7" % sr(S_WAVE))
    g.e("s_add_u32 s98, s98, %d" % L_CB)
    g.e("v_add_u32 v12, s98, v12")
    for b in range(2):
        g.e("ds_read_b128 %s, v12 offset:%d" % (v(64 + 8 * b, 4), b * 1024))
        g.e("ds_read_b128 %s, v12 offset:%d" % (v(68 + 8 * b, 4), b * 1024 + 16))
    for i in range(16):
        g.e("v_mov_b32 %s, 0" % v(32 + i))
    g.e("s_waitcnt lgkmcnt(0)")
    for k in range(8):
        r0, r1 = UV + 8 * k, UV + 8 * k + 4
        for j in range(4):
            g.e("v_perm_b32 %s, %s, %s, %s" % (v(100 + 2 * j), v(r1 + j), v(r0 + j), sr(S_PLO)))
            g.e("v_perm_b32 %s, %s, %s, %s" % (v(101 + 2 * j), v(r1 + j), v(r0 + j), sr(S_PHI)))
        for b in range(2):
            for e_ in range(8):
                g.e("v_dot2_f32_bf16 %s, %s, %s, %s" % (v(32 + 8 * b + e_), v(100 + e_), v(64 + 8 * b + k), v(32 + 8 * b + e_)))
    g.nop(3)
    transpose_reduce16(g, 32)
    g.e("v_lshrrev_b32 v12, 1, %s" % v(V_G))
    g.e("v_lshlrev_b32 v12, 9, v12")
    g.e("v_and_b32 v13, 1, %s" % v(V_G))
    g.e("v_lshl_add_u32 v12, v13, 4, v12")
    g.e("v_lshl_add_u32 v12, %s, 5, v12" % v(V_L16))
    g.e("s_lshl_b32 s98, %s, 10" % sr(S_WAVE))
    g.e("v_add_u32 v12, s98, v12")
    g.e("ds_write_b128 v12, %s offset:%d" % (v(32, 4), L_OX))
    g.e("s_waitcnt lgkmcnt(0)")
    g.e("s_barrier")
    skip = g.newlab("OBS")
    g.e("s_cmp_ge_u32 %s, 4" % sr(S_WAVE))
    g.e("s_cbranch_scc1 %s" % skip)
    g.e("v_lshlrev_b32 v12, 2, v0")
    for w in range(8):
        g.e("ds_read_b32 %s, v12 offset:%d" % (v(32 + w), L_OX + w * 1024))
    g.e("s_waitcnt lgkmcnt(0)")
    for w in range(1, 8):
        g.e("v_add_f32 v32, v32, %s" % v(32 + w))
    g.e("v_cvt_pk_bf16_f32 v32, v32, v32")
    g.e("v_lshlrev_b32 v12, 1, v0")
    g.e("ds_write_b16 v12, v32 offset:%d" % L_OB)
    g.lab(skip)
    g.e("s_waitcnt lgkmcnt(0)")
    g.e("s_barrier")
    g.e("s_waitcnt vmcnt(0)")
    preperm(g, 128, 16)
    out_gemv(g, 128, 16, L_OB, 256, 48, 32)
    stamp(g, 7, 15)

    g.e("s_sub_u32 %s, %s, 128" % (sr(S_YI), sr(S_CU)))
    g.lab("L_YPUB")
    g.nop(3)
    g.e("s_mul_i32 s98, %s, 3584" % sr(S_WAVE))
    g.e("s_add_u32 s98, s98, %d" % L_YX)
    g.e("v_lshlrev_b32 v12, 5, %s" % v(V_LANE))
    g.e("v_add_u32 v12, s98, v12")
    g.e("s_mov_b32 exec_hi, 0x00ffffff")
    for b in range(2):
        for hh in range(2):
            g.e("ds_write_b128 v12, %s offset:%d" % (v(48 + b * 8 + hh * 4, 4), b * 1792 + hh * 16))
    g.e("s_mov_b32 exec_hi, -1")
    g.e("s_waitcnt lgkmcnt(0)")
    g.e("s_barrier")
    skip = g.newlab("YS")
    g.e("v_cmp_gt_u32 vcc, 224, v0")
    g.e("s_and_saveexec_b64 %s, vcc" % sr(S_EX, 2))
    g.e("s_cbranch_execz %s" % skip)
    g.e("v_lshlrev_b32 v12, 4, v0")
    g.e("v_add_u32 v13, %d, v12" % L_YX)
    for wv in range(8):
        g.e("ds_read_b128 %s, v13 offset:%d" % (v(64 + wv * 4, 4), wv * 3584))
    g.e("s_waitcnt lgkmcnt(0)")
    for wv in range(1, 8):
        for j in range(4):
            g.e("v_add_f32 %s, %s, %s" % (v(64 + j), v(64 + j), v(64 + wv * 4 + j)))
    g.e("s_mul_i32 s98, %s, 7168" % sr(S_YI))
    g.e("s_add_u32 s98, s98, %d" % WS_Y)
    g.e("v_lshlrev_b32 v12, 5, v0")
    for j in range(4):
        g.e("v_mov_b32 %s, %s" % (v(72 + 2 * j), v(64 + j)))
        g.e("v_mov_b32 %s, %s" % (v(73 + 2 * j), sr(S_TAG)))
    g.e("buffer_store_dwordx4 v[72:75], v12, %s, s98 offen sc1" % sr(SRD_WS, 4))
    g.e("buffer_store_dwordx4 v[76:79], v12, %s, s98 offen offset:16 sc1" % sr(SRD_WS, 4))
    g.lab(skip)
    g.e("s_mov_b64 exec, %s" % sr(S_EX, 2))
    flag_store(g, WS_YF, S_YI, 0)
    stamp(g, 9, 15)
    g.e("s_branch L_END")

    g.lab("L_FINAL")
    g.c("---- FINAL ----")
    g.e("s_lshl_b32 %s, %s, 2" % (sr(S_YI), sr(S_H)))
    g.e("s_add_u32 %s, %s, %s" % (sr(S_YI), sr(S_YI), sr(S_J)))
    g.e("s_sub_u32 %s, %s, 4" % (sr(S_YI), sr(S_YI)))
    g.e("s_cmp_ge_u32 %s, 56" % sr(S_YI))
    g.e("s_cbranch_scc1 L_END")
    poll_flags(g, WS_YF, 128, sleep=1)
    stamp(g, 10, 15)
    g.e("s_mov_b32 s98, %s" % sr(S_YI))
    g.e("s_cmp_ge_u32 s98, 28")
    g.e("s_cselect_b32 s99, 1, 0")
    g.e("s_mul_i32 s100, s99, 28")
    g.e("s_sub_u32 s98, s98, s100")
    g.e("s_mul_i32 s100, s99, 3584")
    g.e("s_lshl_b32 s101, s98, 7")
    g.e("s_add_u32 s100, s100, s101")
    g.e("s_add_u32 s100, s100, %d" % WS_Y)
    g.e("v_lshrrev_b32 v12, 3, v0")
    g.e("v_bfe_u32 v13, v0, 2, 1")
    g.e("v_lshl_add_u32 v12, v13, 6, v12")
    g.e("s_movk_i32 s101, 7168")
    g.e("v_mul_lo_u32 v12, v12, s101")
    g.e("v_and_b32 v13, 3, v0")
    g.e("v_lshl_add_u32 v12, v13, 5, v12")
    lp = g.newlab("FL"); ok = g.newlab("FOK")
    g.e("s_mov_b32 %s, 0" % sr(S_SPIN))
    g.lab(lp)
    g.e("buffer_load_dwordx4 v[40:43], v12, %s, s100 offen sc1" % sr(SRD_WS, 4))
    g.e("buffer_load_dwordx4 v[44:47], v12, %s, s100 offen offset:16 sc1" % sr(SRD_WS, 4))
    g.e("s_waitcnt vmcnt(0)")
    g.e("v_xor_b32 v13, %s, v41" % sr(S_TAG))
    for r_ in (43, 45, 47):
        g.e("v_xor_b32 v14, %s, %s" % (sr(S_TAG), v(r_)))
        g.e("v_or_b32 v13, v13, v14")
    g.e("v_cmp_eq_u32 vcc, 0, v13")
    g.e("s_cmp_eq_u64 vcc, exec")
    g.e("s_cbranch_scc1 %s" % ok)
    g.e("s_add_u32 %s, %s, 1" % (sr(S_SPIN), sr(S_SPIN)))
    g.e("s_cmp_gt_u32 %s, %d" % (sr(S_SPIN), SPIN_MAX))
    g.e("s_cbranch_scc0 %s" % lp)
    g.lab(ok)
    for j in range(4):
        g.e("v_mov_b32 %s, %s" % (v(32 + j), v(40 + 2 * j)))
    g.nop(1)
    for r_ in range(32, 36):
        g.e("v_add_f32_dpp %s, %s, %s row_ror:8 row_mask:0xf bank_mask:0xf" % (v(r_), v(r_), v(r_)))
    for r_ in range(32, 36):
        cross_rows(g, "v_add_f32", r_, 13)
    g.e("v_lshlrev_b32 v12, 4, %s" % v(V_LANE))
    g.e("s_lshl_b32 s101, %s, 7" % sr(S_WAVE))
    g.e("s_add_u32 s101, s101, %d" % L_FX)
    g.e("v_add_u32 v12, s101, v12")
    g.e("s_mov_b64 exec, 0xff")
    g.e("ds_write_b128 v12, v[32:35]")
    g.e("s_mov_b64 exec, -1")
    g.e("s_waitcnt lgkmcnt(0)")
    g.e("s_barrier")
    g.e("s_cmp_lg_u32 %s, 0" % sr(S_WAVE))
    g.e("s_cbranch_scc1 L_END")
    g.e("v_and_b32 v12, 31, %s" % v(V_LANE))
    g.e("v_lshlrev_b32 v12, 2, v12")
    for wv in range(8):
        g.e("ds_read_b32 %s, v12 offset:%d" % (v(32 + wv), L_FX + wv * 128))
    g.e("s_waitcnt lgkmcnt(0)")
    for wv in range(1, 8):
        g.e("v_add_f32 v32, v32, %s" % v(32 + wv))
    g.e("v_cvt_pk_bf16_f32 v32, v32, v32")
    g.e("s_movk_i32 s101, 896")
    g.e("v_mul_lo_u32 v12, %s, s101" % v(V_G))
    g.e("v_lshl_add_u32 v12, %s, 1, v12" % v(V_L16))
    g.e("s_mul_i32 s100, s99, 1792")
    g.e("s_lshl_b32 s101, s98, 5")
    g.e("s_add_u32 s100, s100, s101")
    g.e("s_mov_b32 exec_lo, -1")
    g.e("s_mov_b32 exec_hi, 0")
    g.e("buffer_store_short v32, v12, %s, s100 offen" % sr(SRD_OUT, 4))
    g.e("s_mov_b64 exec, -1")
    stamp(g, 11, 15)
    g.e("s_cmp_lg_u32 %s, 0" % sr(S_YI))
    g.e("s_cbranch_scc1 L_END")
    g.e("v_mov_b32 v13, %s" % sr(S_TAG))
    g.e("s_mov_b64 exec, 1")
    g.e("buffer_store_dword v13, off, %s, 0 sc1" % sr(SRD_WS, 4))
    g.lab("L_END")
    g.e("s_endpgm")
    g.lines += [
        '.section .rodata,"a"',
        ".p2align 6",
        ".amdhsa_kernel %s" % KN,
        "  .amdhsa_next_free_vgpr 256",
        "  .amdhsa_next_free_sgpr 102",
        "  .amdhsa_accum_offset 256",
        "  .amdhsa_group_segment_fixed_size 0",
        "  .amdhsa_kernarg_size 112",
        "  .amdhsa_user_sgpr_count 2",
        "  .amdhsa_user_sgpr_kernarg_segment_ptr 1",
        "  .amdhsa_system_sgpr_workgroup_id_x 1",
        ".end_amdhsa_kernel",
    ]
    return "\n".join(g.lines) + "\n"

if __name__ == "__main__":
    out = sys.argv[1] if len(sys.argv) > 1 and not sys.argv[1].startswith("--") else "cdna_kernels/%s.s" % NAME
    open(out, "w").write(gen())
    print("wrote", out)
```

```python
import sys

NAME = "concat_heads__mha_block_cached__compressed_kv_cla__decode"
KN = NAME + "_kernel"

def opt(name, default):
    for a in sys.argv:
        if a.startswith("--%s=" % name):
            return int(a.split("=")[1])
    return default

WS_NONCE = 0
WS_AP = 0x600000
WS_QH = 0xA0000
WS_QL = 0xB0000
WS_QF = 0xC0000
WS_PF = 0xC1000
WS_YF = 0xC2000
WS_AF = 0xC3000
WS_PS = 0xC4000
WS_Y = 0xD0000
WS_QP = 0x10000
WS_QPF = 0xC5000
WS_PC = 0x200000
WS_SIZE = 0x10000000
WS_STAMP = 0x800000

L_TILE0 = 0
L_TILE1 = 65536
L_SX = 131072
L_QX = 139264
L_QB = 147456
L_CNT = 149504
LDS_BYTES = 149504 + 1024
L_AO = 0
L_AM = 8192
L_OX = 0
L_OB = 8192
L_OA = 8704
L_CX = 16384
L_CB = 12288
L_FX = 28672
L_YX = 32768

SPIN_MAX = opt("SPIN", 400000)
STAMPS = "--stamps" in sys.argv
D = opt("D", 6)
PRE = opt("PRE", 6)
SH = opt("SH", 64)
WS_CT = 0xC8000

class G:
    def __init__(s):
        s.lines = []
        s.q = []
        s.uid = 0
    def e(s, t):
        s.lines.append("    " + t)
    def c(s, t):
        s.lines.append("    ; " + t)
    def lab(s, n):
        s.lines.append(n + ":")
    def newlab(s, p="L"):
        s.uid += 1
        return "%s_%d" % (p, s.uid)
    def vm(s, tag, t):
        s.e(t)
        s.q.append(tag)
    def wait(s, tag):
        if tag not in s.q:
            return
        idx = max(i for i, x in enumerate(s.q) if x == tag)
        n = len(s.q) - 1 - idx
        s.e("s_waitcnt vmcnt(%d)" % min(n, 63))
        s.q = s.q[idx + 1:]
    def waitall(s):
        s.e("s_waitcnt vmcnt(0)")
        s.q = []
    def nop(s, n):
        s.e("s_nop %d" % n)

def v(i, n=1):
    return "v%d" % i if n == 1 else "v[%d:%d]" % (i, i + n - 1)
def sr(i, n=1):
    return "s%d" % i if n == 1 else "s[%d:%d]" % (i, i + n - 1)

S_WAVE, S_TAG, S_H, S_J, S_CU = 3, 4, 5, 6, 7
S_T = [8, 9, 10, 11, 12, 13, 14, 15]
S_ROLE = 16
S_CUR, S_NXT, S_UEND, S_SLAB, S_FIRST, S_VALID, S_NU = 17, 18, 19, 20, 21, 22, 23
S_BB, S_KR, S_DH, S_CKV, S_LW, S_SC = 24, 25, 26, 27, 28, 29
S_MAT, S_JMAT, S_YI = 30, 31, 32
S_QN, S_QU, S_QV = 33, 34, 35
S_SIX, S_CTR, S_MODE = 25, 26, 27
SRD_X, SRD_WQ, SRD_WO, SRD_K, SRD_V, SRD_WUV, SRD_WS, SRD_OUT, SRD_WOA = 36, 40, 44, 48, 52, 56, 60, 64, 68
S_PLO, S_PHI, S_L2E, S_SPIN = 72, 73, 74, 75
S_MK, S_M2, S_EX = 76, 78, 80
S_O = 82
V_LANE, V_L16, V_G = 1, 2, 3
RING = 192


def dpp_allreduce16(g, op, regs):
    for st in (8, 4, 2, 1):
        if len(regs) < 3:
            g.nop(1)
        for r in regs:
            g.e("%s_dpp %s, %s, %s row_ror:%d row_mask:0xf bank_mask:0xf" % (op, v(r), v(r), v(r), st))

def cross_rows(g, op, r, t, both=True):
    g.e("v_mov_b32 %s, %s" % (v(t), v(r)))
    g.nop(1)
    g.e("v_permlane16_swap_b32 %s, %s" % (v(t), v(r)))
    g.nop(1)
    g.e("%s %s, %s, %s" % (op, v(r), v(r), v(t)))
    if both:
        g.e("v_mov_b32 %s, %s" % (v(t), v(r)))
        g.nop(1)
        g.e("v_permlane32_swap_b32 %s, %s" % (v(t), v(r)))
        g.nop(1)
        g.e("%s %s, %s, %s" % (op, v(r), v(r), v(t)))

def transpose_reduce16(g, a):
    g.nop(1)
    for k in range(8):
        g.e("v_permlane32_swap_b32 %s, %s" % (v(a + k), v(a + k + 8)))
    g.nop(1)
    for k in range(8):
        g.e("v_add_f32 %s, %s, %s" % (v(a + k), v(a + k), v(a + k + 8)))
    g.nop(1)
    for k in range(4):
        g.e("v_permlane16_swap_b32 %s, %s" % (v(a + k), v(a + k + 4)))
    g.nop(1)
    for k in range(4):
        g.e("v_add_f32 %s, %s, %s" % (v(a + k), v(a + k), v(a + k + 4)))

DBGS = "--dbgstamps" in sys.argv
def stamp(g, idx, vt):
    if DBGS:
        if idx > 11:
            return
        g.e("s_memrealtime s[100:101]")
        g.e("s_lshl_b32 s98, %s, 2" % sr(S_ROLE))
        g.e("s_waitcnt lgkmcnt(0)")
        g.e("v_mov_b32 %s, s100" % v(vt))
        amap = {0: 0, 1: 1, 2: 2, 3: 3, 4: 4, 9: 5, 10: 6, 11: 7, 5: -1}
        bmap = {0: 8, 2: 9, 3: 10, 4: 11, 5: 12, 6: 13, 7: 14, 9: 15}
        a_, b_ = amap.get(idx, -1), bmap.get(idx, -1)
        g.e("s_cmp_eq_u32 %s, 1" % sr(S_ROLE))
        g.e("s_cselect_b32 s98, %d, %d" % (a_ * 4 if a_ >= 0 else 252, b_ * 4 if b_ >= 0 else 252))
        g.e("s_mov_b64 exec, 1")
        g.e("buffer_atomic_umax %s, off, s[92:95], s98 sc1" % v(vt))
        g.e("s_mov_b64 exec, -1")
        return
    if not STAMPS:
        return
    g.e("s_memrealtime s[100:101]")
    g.e("s_lshl_b32 s98, %s, 3" % sr(S_CU))
    g.e("s_add_u32 s98, s98, %s" % sr(S_WAVE))
    g.e("s_lshl_b32 s98, s98, 7")
    g.e("s_add_u32 s98, s98, %d" % (WS_STAMP + idx * 4))
    g.e("s_waitcnt lgkmcnt(0)")
    g.e("v_mov_b32 %s, s100" % v(vt))
    g.e("s_mov_b64 exec, 1")
    g.e("buffer_store_dword %s, off, %s, s98" % (v(vt), sr(SRD_WS, 4)))
    g.e("s_mov_b64 exec, -1")

def q_job(g, gather):
    ACC, PT, XR, W = 32, 48, 56, 128
    g.c("---- Q job ----")
    g.e("s_mul_i32 %s, %s, 224" % (sr(S_T[4]), sr(S_T[0])))
    g.e("s_add_u32 %s, %s, 896" % (sr(S_T[5]), sr(S_T[4])))
    g.e("s_mul_i32 %s, %s, %d" % (sr(S_T[2]), sr(S_T[0]), 112 * 8192))
    g.e("s_lshl_b32 %s, %s, 9" % (sr(S_T[3]), sr(S_H)))
    g.e("s_add_u32 %s, %s, %s" % (sr(S_T[2]), sr(S_T[2]), sr(S_T[3])))
    g.e("s_lshl_b32 %s, %s, 8" % (sr(S_T[3]), sr(S_T[1])))
    g.e("s_add_u32 %s, %s, %s" % (sr(S_T[2]), sr(S_T[2]), sr(S_T[3])))
    g.e("s_mov_b32 %s, %d" % (sr(S_T[6]), 28 * 8192))
    g.e("v_mul_lo_u32 v12, %s, %s" % (v(V_G), sr(S_T[6])))
    g.e("v_lshl_add_u32 v12, %s, 4, v12" % v(V_L16))
    g.e("v_mul_u32_u24 v13, 56, %s" % v(V_G))
    for b in range(2):
        sb = sr(S_T[4 + b])
        g.e("buffer_load_dwordx4 %s, v13, %s, %s offen" % (v(XR + b * 14, 4), sr(SRD_X, 4), sb))
        g.e("buffer_load_dwordx4 %s, v13, %s, %s offen offset:16" % (v(XR + b * 14 + 4, 4), sr(SRD_X, 4), sb))
        g.e("buffer_load_dwordx4 %s, v13, %s, %s offen offset:32" % (v(XR + b * 14 + 8, 4), sr(SRD_X, 4), sb))
        g.e("buffer_load_dwordx2 %s, v13, %s, %s offen offset:48" % (v(XR + b * 14 + 12, 2), sr(SRD_X, 4), sb))
    for n in range(28):
        g.e("buffer_load_dwordx4 %s, v12, %s, %s offen nt" % (v(W + 4 * n, 4), sr(SRD_WQ, 4), sr(S_T[2])))
        g.e("s_add_u32 %s, %s, 8192" % (sr(S_T[2]), sr(S_T[2])))
    QB = opt("QB", 14)
    if QB == 0:
        g.e("s_barrier")
    for i in range(16):
        g.e("v_mov_b32 %s, 0" % v(ACC + i))
    for k in range(14):
        g.e("s_waitcnt vmcnt(%d)" % (26 - 2 * k))
        if QB and k == QB - 1:
            g.e("s_barrier")
        r0 = W + 8 * k
        r1 = r0 + 4
        for j in range(4):
            g.e("v_perm_b32 %s, %s, %s, %s" % (v(PT + 2 * j), v(r1 + j), v(r0 + j), sr(S_PLO)))
            g.e("v_perm_b32 %s, %s, %s, %s" % (v(PT + 2 * j + 1), v(r1 + j), v(r0 + j), sr(S_PHI)))
        for b in range(2):
            for e_ in range(8):
                g.e("v_dot2_f32_bf16 %s, %s, %s, %s" % (v(ACC + b * 8 + e_), v(PT + e_), v(XR + b * 14 + k), v(ACC + b * 8 + e_)))
    stamp(g, 12, 15)
    g.e("v_readfirstlane_b32 %s, v127" % sr(S_TAG))
    g.e("s_add_u32 %s, %s, 1" % (sr(S_TAG), sr(S_TAG)))
    g.nop(1)
    transpose_reduce16(g, ACC)
    done = g.newlab("QDONE")
    g.e("v_lshrrev_b32 v12, 1, %s" % v(V_G))
    g.e("v_lshlrev_b32 v12, 11, v12")
    g.e("v_and_b32 v13, 1, %s" % v(V_G))
    g.e("v_lshl_add_u32 v12, v13, 5, v12")
    g.e("v_lshl_add_u32 v12, %s, 6, v12" % v(V_L16))
    g.e("s_lshl_b32 s98, %s, 1" % sr(S_H))
    g.e("s_add_u32 s98, s98, %s" % sr(S_JMAT))
    g.e("s_lshl_b32 s99, s98, 5")
    g.e("s_lshl_b32 s98, s98, 2")
    g.e("s_add_u32 s98, s98, %s" % sr(S_T[0]))
    g.e("s_lshl_b32 s98, s98, 12")
    g.e("s_lshl_b32 s100, %s, 10" % sr(S_T[1]))
    g.e("s_add_u32 s98, s98, s100")
    g.e("s_add_u32 s98, s98, %d" % WS_QP)
    g.e("v_mov_b32 v40, v32")
    g.e("v_mov_b32 v41, %s" % sr(S_TAG))
    g.e("v_mov_b32 v42, v33")
    g.e("v_mov_b32 v43, %s" % sr(S_TAG))
    g.e("v_mov_b32 v44, v34")
    g.e("v_mov_b32 v45, %s" % sr(S_TAG))
    g.e("v_mov_b32 v46, v35")
    g.e("v_mov_b32 v47, %s" % sr(S_TAG))
    g.e("buffer_store_dwordx4 v[40:43], v12, %s, s98 offen sc1" % sr(SRD_WS, 4))
    g.e("buffer_store_dwordx4 v[44:47], v12, %s, s98 offen offset:16 sc1" % sr(SRD_WS, 4))
    g.e("s_lshl_b32 s100, %s, 1" % sr(S_T[0]))
    g.e("s_add_u32 s100, s100, %s" % sr(S_T[1]))
    g.e("s_lshl_b32 s100, s100, 2")
    g.e("s_add_u32 s99, s99, s100")
    g.e("s_add_u32 s99, s99, %d" % WS_QPF)
    g.e("s_mov_b64 exec, 1")
    g.e("buffer_store_dword v41, off, %s, s99 sc1" % sr(SRD_WS, 4))
    g.e("s_mov_b64 exec, -1")
    stamp(g, 13, 15)
    if gather:
        g.e("s_mov_b32 %s, 0" % sr(S_SPIN))
        g.e("v_and_b32 v15, 15, %s" % v(V_LANE))
        g.e("v_lshlrev_b32 v15, 2, v15")
        g.e("s_lshl_b32 s99, %s, 6" % sr(S_H))
        g.e("s_add_u32 s99, s99, %d" % WS_QPF)
        lp0 = g.newlab("QH"); ok0 = g.newlab("QHOK")
        g.lab(lp0)
        g.e("buffer_load_dword v11, v15, %s, s99 offen sc1" % sr(SRD_WS, 4))
        g.e("s_waitcnt vmcnt(0)")
        g.e("v_cmp_eq_u32 vcc, %s, v11" % sr(S_TAG))
        g.e("s_cmp_eq_u64 vcc, exec")
        g.e("s_cbranch_scc1 %s" % ok0)
        g.e("s_add_u32 %s, %s, 1" % (sr(S_SPIN), sr(S_SPIN)))
        g.e("s_sleep 1")
        g.e("s_cmp_gt_u32 %s, %d" % (sr(S_SPIN), SPIN_MAX))
        g.e("s_cbranch_scc0 %s" % lp0)
        g.lab(ok0)
        g.e("s_mov_b32 %s, 1" % sr(S_T[7]))
        lp = g.newlab("QG"); ok = g.newlab("QGOK")
        g.e("v_lshlrev_b32 v12, 4, %s" % v(V_LANE))
        g.lab(lp)
        g.e("s_lshl_b32 s99, %s, 6" % sr(S_H))
        g.e("s_add_u32 s99, s99, %d" % WS_QPF)
        g.e("buffer_load_dword v11, v15, %s, s99 offen sc1" % sr(SRD_WS, 4))
        g.e("s_lshl_b32 s98, %s, 15" % sr(S_H))
        g.e("s_add_u32 s98, s98, %d" % WS_QP)
        g.e("s_lshl_b32 s99, %s, 11" % sr(S_BB))
        g.e("s_add_u32 s99, s99, s98")
        for rq in range(4):
            for p in range(2):
                g.e("buffer_load_dwordx4 %s, v12, %s, s99 offen offset:%d sc1" % (v(32 + rq * 8 + p * 4, 4), sr(SRD_WS, 4), p * 1024))
            g.e("s_add_u32 s99, s99, 4096")
        g.e("s_add_u32 s99, s98, 16384")
        for rq in range(4):
            for z in (1, 2):
                for p in range(2):
                    g.e("buffer_load_dwordx4 %s, v12, %s, s99 offen offset:%d sc1" % (v(32 + z * 32 + rq * 8 + p * 4, 4), sr(SRD_WS, 4), (z - 1) * 2048 + p * 1024))
            g.e("s_add_u32 s99, s99, 4096")
        sk = g.newlab("QREL")
        g.e("s_cmp_eq_u32 %s, 0" % sr(S_T[7]))
        g.e("s_cbranch_scc1 %s" % sk)
        g.e("s_barrier")
        g.e("s_mov_b32 %s, 0" % sr(S_T[7]))
        g.lab(sk)
        g.e("s_waitcnt vmcnt(0)")
        g.e("v_xor_b32 v13, %s, v11" % sr(S_TAG))
        for r_ in range(33, 128, 2):
            g.e("v_xor_b32 v14, %s, %s" % (sr(S_TAG), v(r_)))
            g.e("v_or_b32 v13, v13, v14")
        g.e("v_cmp_eq_u32 vcc, 0, v13")
        g.e("s_cmp_eq_u64 vcc, exec")
        g.e("s_cbranch_scc1 %s" % ok)
        g.e("s_add_u32 %s, %s, 1" % (sr(S_SPIN), sr(S_SPIN)))
        g.e("s_cmp_gt_u32 %s, %d" % (sr(S_SPIN), SPIN_MAX))
        g.e("s_cbranch_scc0 %s" % lp)
        g.lab(ok)
        stamp(g, 14, 15)
        g.e("v_lshlrev_b32 v12, 2, %s" % v(V_LANE))
        g.e("v_add_u32 v13, %d, v12" % L_QB)
        g.e("s_lshl_b32 s99, %s, 9" % sr(S_BB))
        g.e("v_add_u32 v12, s99, v13")
        for z in range(3):
            for p in range(2):
                a = 32 + z * 32 + p * 4
                for o_ in (0, 2):
                    g.e("v_add_f32 %s, %s, %s" % (v(a + o_), v(a + o_), v(a + 8 + o_)))
                    g.e("v_add_f32 %s, %s, %s" % (v(a + 16 + o_), v(a + 16 + o_), v(a + 24 + o_)))
                    g.e("v_add_f32 %s, %s, %s" % (v(a + o_), v(a + o_), v(a + 16 + o_)))
                g.e("v_cvt_pk_bf16_f32 %s, %s, %s" % (v(a + 1), v(a), v(a + 2)))
                if z == 0:
                    g.e("ds_write_b32 v12, %s offset:%d" % (v(a + 1), p * 256))
                else:
                    g.e("ds_write_b32 v13, %s offset:%d" % (v(a + 1), 1024 + (z - 1) * 512 + p * 256))
        g.e("s_waitcnt lgkmcnt(0)")
    g.lab(done)

def load_rows896(g, srd, rowbase_sgpr, nrows, wreg):
    g.e("s_mul_i32 %s, %s, %d" % (sr(S_T[0]), sr(S_WAVE), nrows))
    g.e("s_add_u32 %s, %s, %s" % (sr(S_T[0]), sr(S_T[0]), sr(rowbase_sgpr)))
    g.e("s_mul_i32 %s, %s, 896" % (sr(S_T[0]), sr(S_T[0])))
    g.e("v_lshlrev_b32 v12, 4, %s" % v(V_LANE))
    g.e("s_mov_b32 exec_hi, 0x00ffffff")
    for n in range(nrows):
        if n % 4 == 0 and n > 0:
            g.e("s_add_u32 %s, %s, 3584" % (sr(S_T[0]), sr(S_T[0])))
        g.e("buffer_load_dwordx4 %s, v12, %s, %s offen offset:%d" % (v(wreg + n * 4, 4), sr(srd, 4), sr(S_T[0]), (n % 4) * 896))
    g.e("s_mov_b32 exec_hi, -1")

def preperm(g, wreg, nrows):
    for k in range(nrows // 2):
        r0 = wreg + (2 * k) * 4
        r1 = r0 + 4
        for j in range(4):
            g.e("v_perm_b32 v12, %s, %s, %s" % (v(r1 + j), v(r0 + j), sr(S_PLO)))
            g.e("v_perm_b32 %s, %s, %s, %s" % (v(r1 + j), v(r1 + j), v(r0 + j), sr(S_PHI)))
            g.e("v_mov_b32 %s, v12" % v(r0 + j))

def out_gemv(g, wreg, nrows, lds_base, bstride, Y, OP):
    g.e("s_mul_i32 %s, %s, %d" % (sr(S_T[0]), sr(S_WAVE), nrows * 2))
    g.e("s_add_u32 %s, %s, %d" % (sr(S_T[0]), sr(S_T[0]), lds_base))
    g.e("v_mov_b32 v12, %s" % sr(S_T[0]))
    npk = nrows // 2
    for b in range(2):
        for x in range(npk // 4):
            g.e("ds_read_b128 %s, v12 offset:%d" % (v(OP + b * npk + 4 * x, 4), b * bstride + 16 * x))
    for i in range(16):
        g.e("v_mov_b32 %s, 0" % v(Y + i))
    g.e("s_waitcnt lgkmcnt(0)")
    for k in range(npk):
        r0 = wreg + (2 * k) * 4
        r1 = r0 + 4
        for b in range(2):
            for j in range(4):
                g.e("v_dot2_f32_bf16 %s, %s, %s, %s" % (v(Y + b * 8 + 2 * j), v(r0 + j), v(OP + b * npk + k), v(Y + b * 8 + 2 * j)))
                g.e("v_dot2_f32_bf16 %s, %s, %s, %s" % (v(Y + b * 8 + 2 * j + 1), v(r1 + j), v(OP + b * npk + k), v(Y + b * 8 + 2 * j + 1)))

def flag_store(g, base_const, idx_sgpr, sub):
    skip = g.newlab("FLAG")
    g.e("s_cmp_lg_u32 %s, 0" % sr(S_WAVE))
    g.e("s_cbranch_scc1 %s" % skip)
    g.e("s_sub_u32 s98, %s, %d" % (sr(idx_sgpr), sub))
    g.e("s_lshl_b32 s98, s98, 2")
    g.e("s_add_u32 s98, s98, %d" % base_const)
    g.e("v_mov_b32 v13, %s" % sr(S_TAG))
    g.e("s_mov_b64 exec, 1")
    g.e("buffer_store_dword v13, off, %s, s98 sc1" % sr(SRD_WS, 4))
    g.e("s_mov_b64 exec, -1")
    g.lab(skip)

def poll_flags(g, base_sgpr_or_const, nflags, pw=0, sleep=4):
    lp = g.newlab("POLL"); ok = g.newlab("POLLOK")
    g.e("s_cmp_lg_u32 %s, %d" % (sr(S_WAVE), pw))
    g.e("s_cbranch_scc1 %s" % ok)
    wide = nflags > 64
    g.e("v_lshlrev_b32 v12, %d, %s" % (4 if wide else 2, v(V_LANE)))
    if wide:
        nflags //= 4
    if isinstance(base_sgpr_or_const, int):
        g.e("s_mov_b32 s98, %d" % base_sgpr_or_const)
    else:
        g.e("s_mov_b32 s98, %s" % base_sgpr_or_const)
    if nflags < 64:
        m = (1 << nflags) - 1
        g.e("s_mov_b32 exec_lo, 0x%x" % (m & 0xffffffff))
        g.e("s_mov_b32 exec_hi, 0x%x" % (m >> 32))
    g.e("s_mov_b32 %s, 0" % sr(S_SPIN))
    g.lab(lp)
    if wide:
        g.e("buffer_load_dwordx4 v[88:91], v12, %s, s98 offen sc1" % sr(SRD_WS, 4))
        g.e("s_waitcnt vmcnt(0)")
        g.e("v_cmp_eq_u32 vcc, %s, v88" % sr(S_TAG))
        for i in range(1, 4):
            g.e("v_cmp_eq_u32 %s, %s, %s" % (sr(S_M2, 2), sr(S_TAG), v(88 + i)))
            g.e("s_and_b64 vcc, vcc, %s" % sr(S_M2, 2))
    else:
        g.e("buffer_load_dword v13, v12, %s, s98 offen sc1" % sr(SRD_WS, 4))
        g.e("s_waitcnt vmcnt(0)")
        g.e("v_cmp_eq_u32 vcc, %s, v13" % sr(S_TAG))
    g.e("s_cmp_eq_u64 vcc, exec")
    g.e("s_cbranch_scc1 %s" % ok)
    g.e("s_add_u32 %s, %s, 1" % (sr(S_SPIN), sr(S_SPIN)))
    g.e("s_cmp_gt_u32 %s, %d" % (sr(S_SPIN), SPIN_MAX))
    g.e("s_cbranch_scc1 %s" % ok)
    g.e("s_sleep %d" % sleep)
    g.e("s_branch %s" % lp)
    g.lab(ok)
    g.e("s_mov_b64 exec, -1")
    g.e("s_barrier")


def gen():
    g = G()
    g.lines.append("; @launch grid=(256,1,1) block=(512,1,1) lds=%d" % LDS_BYTES)
    g.lines.append('.amdgcn_target "amdgcn-amd-amdhsa--gfx950"')
    g.lines.append(".text")
    g.lines.append(".globl %s" % KN)
    g.lines.append(".p2align 8")
    g.lines.append(".type %s,@function" % KN)
    g.lab(KN)
    g.e("s_cmp_ge_u32 s2, 256")
    g.e("s_cbranch_scc1 L_END")
    if "--noxmap" not in sys.argv:
        g.e("s_and_b32 s96, s2, 7")
        g.e("s_lshr_b32 s97, s2, 3")
        XM = opt("XM", 1)
        if XM == 1:
            g.e("s_mul_i32 s98, s96, 24")
            g.e("s_add_u32 s98, s98, s97")
        else:
            sh = {2: 1, 4: 2}[XM]
            g.e("s_lshr_b32 s98, s96, %d" % sh)
            g.e("s_mul_i32 s98, s98, %d" % (24 * XM))
            g.e("s_and_b32 s99, s96, %d" % (XM - 1))
            g.e("s_add_u32 s98, s98, s99")
            g.e("s_lshl_b32 s99, s97, %d" % sh)
            g.e("s_add_u32 s98, s98, s99")
        g.e("s_lshl_b32 s99, s96, 3")
        g.e("s_add_u32 s99, s99, s97")
        g.e("s_add_u32 s99, s99, 168")
        g.e("s_cmp_lt_u32 s97, 24")
        g.e("s_cselect_b32 s2, s98, s99")
    g.e("s_load_dwordx16 s[8:23], s[0:1], 0")
    g.e("s_load_dwordx8 s[24:31], s[0:1], 64")
    g.e("s_load_dwordx4 s[32:35], s[0:1], 96")
    g.e("v_and_b32 %s, 63, v0" % v(V_LANE))
    g.e("v_lshrrev_b32 v12, 6, v0")
    g.e("v_and_b32 %s, 15, v0" % v(V_L16))
    g.e("v_bfe_u32 %s, v0, 4, 2" % v(V_G))
    g.e("v_readfirstlane_b32 %s, v12" % sr(S_WAVE))
    g.e("v_mov_b32 v4, 0")
    g.e("v_mov_b32 v5, 0")
    g.e("s_mov_b32 %s, 0x05040100" % sr(S_PLO))
    g.e("s_mov_b32 %s, 0x07060302" % sr(S_PHI))
    g.e("s_mov_b32 %s, 0x3fb8aa3b" % sr(S_L2E))
    g.e("s_mov_b32 %s, 0x00010001" % sr(S_MK))
    g.e("s_mov_b32 %s, 0x00010001" % sr(S_MK + 1))
    g.e("s_mul_i32 s96, s2, 43691")
    g.e("s_lshr_b32 s96, s96, 19")
    g.e("s_mul_i32 s97, s96, 12")
    g.e("s_sub_u32 s97, s2, s97")
    g.e("s_cmp_ge_u32 s97, 8")
    g.e("s_cselect_b32 s99, 1, 0")
    g.e("s_cmp_ge_u32 s2, 192")
    g.e("s_cselect_b32 s99, 1, s99")
    g.e("s_cmp_eq_u32 s99, 0")
    g.e("s_waitcnt lgkmcnt(0)")
    def srd(d, a, b, na, nb):
        g.e("s_cselect_b32 %s, %s, %s" % (sr(d), sr(a), sr(b)))
        g.e("s_cselect_b32 %s, %s, %s" % (sr(d + 1), sr(a + 1), sr(b + 1)))
        if na == nb:
            g.e("s_mov_b32 %s, %d" % (sr(d + 2), na))
        else:
            g.e("s_mov_b32 s98, %d" % na)
            g.e("s_cselect_b32 %s, s98, %d" % (sr(d + 2), nb))
        g.e("s_mov_b32 %s, 0x00020000" % sr(d + 3))
    srd(SRD_X, 8, 18, 1792, 1792)
    srd(SRD_WQ, 14, 22, 448 * 8192, 448 * 8192)
    g.e("s_cmp_lt_u32 s2, 192")
    srd(SRD_WO, 24, 28, 1 << 23, 4096 * 896)
    srd(SRD_K, 10, 20, 1 << 26, 1 << 24)
    srd(SRD_V, 12, 26, 1 << 26, 1 << 23)
    srd(SRD_WS, 34, 34, WS_SIZE, WS_SIZE)
    srd(SRD_OUT, 30, 30, 3584, 3584)
    srd(SRD_WOA, 16, 16, 4096 * 896, 4096 * 896)
    if DBGS:
        srd(92, 32, 32, 256, 256)
    g.e("s_cselect_b32 %s, 1, 0" % sr(S_ROLE))
    g.e("s_cselect_b32 %s, 0, 1" % sr(S_MAT))
    g.e("s_mov_b32 %s, s99" % sr(S_JMAT))
    g.e("buffer_load_dword v127, off, %s, 0 sc1" % sr(SRD_WS, 4))
    g.e("s_cbranch_scc0 L_ROLE_B0")

    g.c("==== ROLE A setup ====")
    if "--noA" in sys.argv:
        g.e("s_branch L_END")
    g.e("s_mov_b32 %s, s97" % sr(S_J))
    g.e("s_mov_b32 %s, s96" % sr(S_H))
    g.e("s_mov_b32 %s, s2" % sr(S_CU))
    g.e("s_cmp_ge_u32 %s, 6" % sr(S_J))
    g.e("s_cselect_b32 %s, 1, 0" % sr(S_BB))
    g.e("s_mul_i32 s99, %s, 6" % sr(S_BB))
    g.e("s_sub_u32 s98, %s, s99" % sr(S_J))
    g.e("s_mov_b32 %s, s98" % sr(S_SIX))
    g.e("s_mul_i32 s99, s98, %d" % (((512 - SH) // 2) * 43691))
    g.e("s_lshr_b32 s99, s99, 17")
    g.e("s_add_u32 s98, s98, 1")
    g.e("s_mul_i32 s98, s98, %d" % (((512 - SH) // 2) * 43691))
    g.e("s_lshr_b32 %s, s98, 17" % sr(S_UEND))
    g.e("s_lshl_b32 s98, %s, 4" % sr(S_BB))
    g.e("s_add_u32 s98, s98, %s" % sr(S_H))
    g.e("s_lshl_b32 %s, s98, 8" % sr(S_CTR))
    g.e("s_add_u32 %s, %s, %d" % (sr(S_CTR), sr(S_CTR), WS_CT))
    g.e("s_lshl_b32 %s, s98, 21" % sr(S_SLAB))
    g.e("s_add_u32 s100, s99, %s" % sr(S_WAVE))
    g.e("s_lshl_b32 s100, s100, 12")
    g.e("s_add_u32 %s, %s, s100" % (sr(S_CUR), sr(S_SLAB)))
    g.e("v_lshlrev_b32 v4, 10, %s" % v(V_G))
    g.e("v_lshl_add_u32 v4, %s, 4, v4" % v(V_L16))
    g.e("s_add_u32 s99, s99, 8")
    g.e("v_mov_b32 v5, %d" % L_CNT)
    g.e("v_mov_b32 v6, s99")
    g.e("v_mov_b32 v7, 0")
    g.e("ds_write_b64 v5, v[6:7]")
    stamp(g, 0, 15)
    g.e("s_and_b32 %s, %s, 3" % (sr(S_T[0]), sr(S_J)))
    g.e("s_cmp_ge_u32 %s, 4" % sr(S_J))
    g.e("s_cselect_b32 %s, 1, 0" % sr(S_T[1]))
    g.e("s_cmp_ge_u32 %s, 8" % sr(S_J))
    g.e("s_cselect_b32 %s, 0, %s" % (sr(S_T[1]), sr(S_T[1])))
    skip = g.newlab("NOQ"); skip2 = g.newlab("NOQ")
    g.e("s_cmp_ge_u32 %s, 1" % sr(S_WAVE))
    g.e("s_cbranch_scc1 %s" % skip)
    sk3 = g.newlab("NOZ")
    g.e("s_cmp_lg_u32 %s, 0" % sr(S_SIX))
    g.e("s_cbranch_scc1 %s" % sk3)
    g.e("s_mov_b64 exec, 1")
    g.e("buffer_store_dword v7, off, %s, %s sc1" % (sr(SRD_WS, 4), sr(S_CTR)))
    g.e("s_mov_b64 exec, -1")
    g.lab(sk3)
    q_job(g, True)
    g.e("s_branch %s" % skip2)
    g.lab(skip)
    g.e("s_barrier")
    g.lab(skip2)
    VOFF = [0, 512, 256, 768]
    def a_issue(slot, base):
        p = slot & 7
        if p < 4:
            g.e("buffer_load_dwordx4 %s, v4, %s, %s offen offset:%d nt" % (v(RING + 4 * slot, 4), sr(SRD_K, 4), sr(base), p * 256))
        else:
            g.e("buffer_load_dwordx4 %s, v4, %s, %s offen offset:%d nt" % (v(RING + 4 * slot, 4), sr(SRD_V, 4), sr(base), VOFF[p - 4]))
    g.e("s_mul_i32 s98, %s, %d" % (sr(S_J), 16 * 43691))
    g.e("s_lshr_b32 s98, s98, 17")
    g.e("s_add_u32 s99, %s, 1" % sr(S_J))
    g.e("s_mul_i32 s99, s99, %d" % (16 * 43691))
    g.e("s_lshr_b32 s99, s99, 17")
    g.e("s_sub_u32 %s, s99, s98" % sr(S_QN))
    g.e("s_add_u32 s98, s98, %s" % sr(S_WAVE))
    g.e("s_sub_u32 %s, s98, 2" % sr(S_QU))
    g.e("s_cmp_lt_u32 %s, 2" % sr(S_WAVE))
    g.e("s_cselect_b32 %s, 0, 1" % sr(S_QV))
    g.e("s_cmp_ge_u32 %s, s99" % sr(S_QU))
    g.e("s_cselect_b32 %s, 0, %s" % (sr(S_QV), sr(S_QV)))
    LATE = opt("LATE", 6)
    def uk_loads():
        skip = g.newlab("NOUK")
        g.e("s_cmp_eq_u32 %s, 0" % sr(S_QV))
        g.e("s_cbranch_scc1 %s" % skip)
        g.e("v_lshlrev_b32 v12, 15, %s" % v(V_G))
        g.e("v_lshl_add_u32 v12, %s, 4, v12" % v(V_L16))
        g.e("s_lshl_b32 s98, %s, 17" % sr(S_QU))
        g.e("s_lshl_b32 s99, %s, 9" % sr(S_H))
        g.e("s_add_u32 s98, s98, s99")
        for i in range(4):
            for hf in range(2):
                g.e("buffer_load_dwordx4 %s, v12, %s, s98 offen offset:%d nt" % (v(128 + 4 * (2 * i + hf), 4), sr(SRD_WO, 4), hf * 256))
            g.e("s_add_u32 s98, s98, 8192")
        g.lab(skip)
    def wo_loads():
        skip = g.newlab("NOWO")
        g.e("s_cmp_ge_u32 %s, 4" % sr(S_J))
        g.e("s_cbranch_scc1 %s" % skip)
        g.e("s_lshl_b32 %s, %s, 8" % (sr(S_T[1]), sr(S_H)))
        g.e("s_lshl_b32 %s, %s, 6" % (sr(S_T[2]), sr(S_J)))
        g.e("s_add_u32 %s, %s, %s" % (sr(S_T[1]), sr(S_T[1]), sr(S_T[2])))
        load_rows896(g, SRD_WOA, S_T[1], 8, 160)
        g.lab(skip)
    def pre_loads():
        for p in range(PRE):
            a_issue(p, S_CUR)
    uk_loads()
    sk = g.newlab("W0")
    g.e("s_cmp_eq_u32 %s, 0" % sr(S_WAVE))
    g.e("s_cbranch_scc1 %s" % sk)
    g.e("s_barrier")
    g.lab(sk)
    pre_loads()
    g.e("s_waitcnt lgkmcnt(0)")
    g.e("s_barrier")
    g.e("v_lshlrev_b32 v12, 4, %s" % v(V_L16))
    g.e("s_lshl_b32 s98, %s, 9" % sr(S_BB))
    g.e("s_add_u32 s98, s98, %d" % L_QB)
    g.e("v_add_u32 v13, s98, v12")
    g.e("ds_read_b128 v[16:19], v13")
    g.e("ds_read_b128 v[20:23], v13 offset:256")
    g.e("s_waitcnt vmcnt(%d)" % PRE)
    sk = g.newlab("TAGOK")
    g.e("s_cmp_lt_u32 %s, 1" % sr(S_WAVE))
    g.e("s_cbranch_scc1 %s" % sk)
    g.e("v_readfirstlane_b32 %s, v127" % sr(S_TAG))
    g.e("s_add_u32 %s, %s, 1" % (sr(S_TAG), sr(S_TAG)))
    g.lab(sk)
    stamp(g, 1, 15)
    skipq = g.newlab("NOQABS")
    g.e("s_cmp_eq_u32 %s, 0" % sr(S_QV))
    g.e("s_cbranch_scc1 %s" % skipq)
    g.c("---- QABS on A CUs ----")
    g.e("v_add_u32 v13, %d, v12" % (L_QB + 1024))
    for b in range(2):
        for hf in range(2):
            g.e("ds_read_b128 %s, v13 offset:%d" % (v(64 + b * 8 + hf * 4, 4), b * 512 + hf * 256))
    g.e("s_waitcnt lgkmcnt(0)")
    for i in range(4):
        ra = 128 + 8 * i
        for b in range(2):
            d = 32 + b * 4 + i
            Q = 64 + b * 8
            g.e("v_dot2_f32_bf16 %s, %s, %s, 0" % (v(d), v(ra), v(Q)))
            for j in range(1, 8):
                g.e("v_dot2_f32_bf16 %s, %s, %s, %s" % (v(d), v(ra + j), v(Q + j), v(d)))
    g.nop(2)
    dpp_allreduce16(g, "v_add_f32", list(range(32, 40)))
    for i in range(1, 4):
        g.e("s_lshl_b64 %s, %s, %d" % (sr(S_M2, 2), sr(S_MK, 2), i))
        g.e("v_cndmask_b32 v32, v32, %s, %s" % (v(32 + i), sr(S_M2, 2)))
        g.e("v_cndmask_b32 v36, v36, %s, %s" % (v(36 + i), sr(S_M2, 2)))
    g.e("v_lshl_add_u32 v14, %s, 2, %s" % (v(V_G), v(V_L16)))
    g.e("s_lshl_b32 s99, %s, 4" % sr(S_QU))
    g.e("s_and_b32 s98, s99, 255")
    g.e("v_add_u32 v14, s98, v14")
    g.e("v_and_b32 v40, 7, v14")
    g.e("v_lshlrev_b32 v40, 1, v40")
    g.e("v_bfe_u32 v41, v14, 3, 1")
    g.e("v_lshrrev_b32 v42, 6, v14")
    g.e("v_lshl_add_u32 v41, v42, 1, v41")
    g.e("v_lshl_add_u32 v40, v41, 11, v40")
    g.e("v_bfe_u32 v41, v14, 4, 2")
    g.e("v_lshl_add_u32 v14, v41, 8, v40")
    g.e("s_lshr_b32 s98, s99, 8")
    g.e("s_lshl_b32 s98, s98, 14")
    g.e("s_lshl_b32 s99, %s, 4" % sr(S_H))
    g.e("s_add_u32 s98, s98, s99")
    for b in range(2):
        x = 32 + 4 * b
        g.e("v_cvt_pk_bf16_f32 %s, %s, %s" % (v(40 + 2 * b), v(x), v(x)))
        g.e("v_lshlrev_b32 %s, 16, %s" % (v(41 + 2 * b), v(40 + 2 * b)))
        g.e("v_sub_f32 %s, %s, %s" % (v(41 + 2 * b), v(x), v(41 + 2 * b)))
        g.e("v_cvt_pk_bf16_f32 %s, %s, %s" % (v(41 + 2 * b), v(41 + 2 * b), v(41 + 2 * b)))
        g.e("s_add_u32 s99, s98, %d" % (WS_QH + b * 65536))
        g.e("s_add_u32 s100, s98, %d" % (WS_QH + b * 65536 + 1024))
        g.e("s_mov_b32 exec_lo, 0x000f000f")
        g.e("s_mov_b32 exec_hi, 0x000f000f")
        g.e("buffer_store_short %s, v14, %s, s99 offen sc1" % (v(40 + 2 * b), sr(SRD_WS, 4)))
        g.e("buffer_store_short %s, v14, %s, s100 offen sc1" % (v(41 + 2 * b), sr(SRD_WS, 4)))
        g.e("s_mov_b64 exec, -1")
    g.e("v_mov_b32 v7, 1")
    g.e("s_waitcnt vmcnt(0)")
    g.e("s_mov_b64 exec, 1")
    g.e("ds_add_rtn_u32 v6, v5, v7 offset:4")
    g.e("s_waitcnt lgkmcnt(0)")
    g.e("v_readfirstlane_b32 s98, v6")
    g.e("s_add_u32 s98, s98, 1")
    g.e("s_cmp_lg_u32 s98, %s" % sr(S_QN))
    sk2 = g.newlab("QAF")
    g.e("s_cbranch_scc1 %s" % sk2)
    g.e("s_lshl_b32 s98, %s, 2" % sr(S_CU))
    g.e("s_add_u32 s98, s98, %d" % WS_QF)
    g.e("v_mov_b32 v13, %s" % sr(S_TAG))
    g.e("buffer_store_dword v13, off, %s, s98 sc1" % sr(SRD_WS, 4))
    g.lab(sk2)
    g.e("s_mov_b64 exec, -1")
    stamp(g, 5, 15)
    g.lab(skipq)
    wo_loads()
    g.e("s_waitcnt lgkmcnt(0)")
    g.e("s_branch L_A_MAIN")

    g.lab("L_ROLE_B0")
    g.q = []
    g.c("==== ROLE B setup ====")
    g.e("s_sub_u32 s99, s2, 192")
    g.e("s_lshr_b32 %s, s99, 2" % sr(S_H))
    g.e("s_and_b32 %s, s99, 3" % sr(S_J))
    g.e("s_mov_b32 %s, s2" % sr(S_CU))
    g.e("s_lshr_b32 %s, s99, 5" % sr(S_BB))
    g.e("s_and_b32 %s, s99, 31" % sr(S_KR))
    g.e("s_and_b32 %s, %s, 1" % (sr(S_DH), sr(S_J)))
    stamp(g, 0, 15)
    g.e("s_mov_b32 %s, %s" % (sr(S_T[0]), sr(S_J)))
    g.e("s_mov_b32 %s, 1" % sr(S_T[1]))
    skip = g.newlab("NOQB"); skip2 = g.newlab("NOQB")
    g.e("s_cmp_ge_u32 %s, 1" % sr(S_WAVE))
    g.e("s_cbranch_scc1 %s" % skip)
    q_job(g, False)
    g.e("s_branch %s" % skip2)
    g.lab(skip)
    g.e("s_barrier")
    g.lab(skip2)
    g.e("s_branch L_ROLE_B")

    g.lab("L_A_MAIN")
    g.c("================ ROLE A main ================")
    for i in range(16):
        g.e("v_mov_b32 %s, 0" % v(32 + i))
    g.e("v_mov_b32 v8, 0xff800000")
    g.e("v_mov_b32 v9, 0")
    g.e("v_mov_b32 v7, 1")
    g.e("s_mov_b32 %s, %d" % (sr(S_FIRST), (PRE - D) // 2))
    g.e("s_mov_b32 %s, 1" % sr(S_VALID))
    g.e("s_mov_b32 %s, 0" % sr(S_MODE))
    g.e("s_mov_b32 %s, 0x3db8aa3b" % sr(S_SC))
    Q = 16
    assert D <= 6 and PRE <= 8
    def unit_body(s0):
        o0 = 8 - s0
        sk = g.newlab("GR"); sk2 = g.newlab("GR")
        g.e("s_mov_b64 exec, 1")
        g.e("s_cmp_lg_u32 %s, 0" % sr(S_MODE))
        g.e("s_cbranch_scc1 %s" % sk)
        g.e("ds_add_rtn_u32 v6, v5, v7")
        g.e("s_branch %s" % sk2)
        g.lab(sk)
        g.e("v_mov_b32 v6, 1")
        g.e("buffer_atomic_add v6, off, %s, %s sc0 sc1" % (sr(SRD_WS, 4), sr(S_CTR)))
        g.lab(sk2)
        g.e("s_mov_b64 exec, -1")
        def resolve():
            gl = g.newlab("RG"); fin = g.newlab("RF"); loc = g.newlab("RL")
            g.e("s_waitcnt vmcnt(2) lgkmcnt(0)")
            g.e("v_readfirstlane_b32 %s, v6" % sr(S_NU))
            g.e("s_cmp_lg_u32 %s, 0" % sr(S_MODE))
            g.e("s_cbranch_scc1 %s" % gl)
            g.e("s_add_u32 s98, %s, 8" % sr(S_NU))
            g.e("s_cmp_ge_u32 s98, %s" % sr(S_UEND))
            g.e("s_cselect_b32 %s, 1, 0" % sr(S_MODE))
            g.e("s_cmp_lt_u32 %s, %s" % (sr(S_NU), sr(S_UEND)))
            g.e("s_cbranch_scc1 %s" % fin)
            g.e("s_mov_b64 exec, 1")
            g.e("v_mov_b32 v6, 1")
            g.e("buffer_atomic_add v6, off, %s, %s sc0 sc1" % (sr(SRD_WS, 4), sr(S_CTR)))
            g.e("s_mov_b64 exec, -1")
            g.e("s_waitcnt vmcnt(0)")
            g.e("v_readfirstlane_b32 %s, v6" % sr(S_NU))
            g.lab(gl)
            g.e("s_min_u32 %s, %s, 4096" % (sr(S_NU), sr(S_NU)))
            g.e("s_add_u32 %s, %s, %d" % (sr(S_NU), sr(S_NU), 512 - SH))
            g.e("s_cmp_lt_u32 %s, 512" % sr(S_NU))
            g.e("s_cselect_b32 %s, 1, 0" % sr(S_VALID))
            g.lab(fin)
            g.e("s_lshl_b32 %s, %s, 12" % (sr(S_NXT), sr(S_NU)))
            g.e("s_add_u32 %s, %s, %s" % (sr(S_NXT), sr(S_NXT), sr(S_SLAB)))
        def step_wait(c):
            g.e("s_waitcnt vmcnt(%d)" % (D - 2))
            if 2 * c + D - 1 >= 8:
                sk = g.newlab("W")
                g.e("s_cmp_lg_u32 %s, 0" % sr(S_VALID))
                g.e("s_cbranch_scc1 %s" % sk)
                g.e("s_waitcnt vmcnt(%d)" % min(D - 2, 6 - 2 * c))
                g.lab(sk)
        def step_issue(c):
            p = 2 * c + D
            sk = g.newlab("I"); sk2 = g.newlab("I")
            g.e("s_cmp_eq_u32 %s, 0" % sr(S_FIRST))
            g.e("s_cbranch_scc1 %s" % sk2)
            g.e("s_sub_u32 %s, %s, 1" % (sr(S_FIRST), sr(S_FIRST)))
            g.e("s_branch %s" % sk)
            g.lab(sk2)
            if p < 8:
                a_issue(s0 + p, S_CUR); a_issue(s0 + p + 1, S_CUR)
            else:
                g.e("s_cmp_eq_u32 %s, 0" % sr(S_VALID))
                g.e("s_cbranch_scc1 %s" % sk)
                a_issue(o0 + p - 8, S_NXT); a_issue(o0 + p - 7, S_NXT)
            g.lab(sk)
        for c in range(2):
            step_wait(c)
            ra, rb_ = RING + 4 * s0 + 8 * c, RING + 4 * s0 + 8 * c + 4
            g.e("v_dot2_f32_bf16 %s, %s, %s, 0" % (v(108 + c), v(ra), v(Q)))
            g.e("v_dot2_f32_bf16 %s, %s, %s, 0" % (v(112 + c), v(rb_), v(Q + 4)))
            for j in range(1, 4):
                g.e("v_dot2_f32_bf16 %s, %s, %s, %s" % (v(108 + c), v(ra + j), v(Q + j), v(108 + c)))
                g.e("v_dot2_f32_bf16 %s, %s, %s, %s" % (v(112 + c), v(rb_ + j), v(Q + 4 + j), v(112 + c)))
            if c == 1:
                resolve()
            step_issue(c)
        g.nop(2)
        g.e("v_add_f32 v108, v108, v112")
        g.e("v_add_f32 v109, v109, v113")
        dpp_allreduce16(g, "v_add_f32", [108, 109])
        g.e("v_cvt_pk_bf16_f32 v112, v108, v109")
        g.e("v_lshlrev_b32 v108, 16, v112")
        g.e("v_and_b32 v109, 0xffff0000, v112")
        g.e("v_mul_f32 v108, %s, v108" % sr(S_SC))
        g.e("v_mul_f32 v109, %s, v109" % sr(S_SC))
        g.e("v_max3_f32 v10, v108, v109, v8")
        g.e("v_cmp_gt_f32 vcc, v10, v8")
        g.e("v_sub_f32 v108, v108, v10")
        g.e("v_sub_f32 v109, v109, v10")
        g.e("v_exp_f32 v108, v108")
        g.e("v_exp_f32 v109, v109")
        sk = g.newlab("NORS")
        g.e("s_cbranch_vccz %s" % sk)
        g.e("v_sub_f32 v11, v8, v10")
        g.e("v_exp_f32 v11, v11")
        g.e("v_mov_b32 v8, v10")
        g.e("v_mul_f32 v9, v9, v11")
        for i in range(16):
            g.e("v_mul_f32 %s, %s, v11" % (v(32 + i), v(32 + i)))
        g.lab(sk)
        g.e("v_cvt_pk_bf16_f32 v96, v108, v109")
        g.e("v_add_f32 v9, v9, v108")
        g.e("v_add_f32 v9, v9, v109")
        for c in range(2, 4):
            step_wait(c)
            r0, r1 = RING + 4 * s0 + 8 * c, RING + 4 * s0 + 8 * c + 4
            hf = c - 2
            for j in range(4):
                g.e("v_perm_b32 %s, %s, %s, %s" % (v(100 + 2 * j), v(r1 + j), v(r0 + j), sr(S_PLO)))
                g.e("v_perm_b32 %s, %s, %s, %s" % (v(101 + 2 * j), v(r1 + j), v(r0 + j), sr(S_PHI)))
            step_issue(c)
            for e_ in range(8):
                g.e("v_dot2_f32_bf16 %s, %s, v96, %s" % (v(32 + 8 * hf + e_), v(100 + e_), v(32 + 8 * hf + e_)))
        g.e("s_cmp_eq_u32 %s, 0" % sr(S_VALID))
        g.e("s_cbranch_scc1 A_DONE")
        g.e("s_mov_b32 %s, %s" % (sr(S_CUR), sr(S_NXT)))
    g.lab("A_LOOP")
    unit_body(0)
    unit_body(8)
    g.e("s_branch A_LOOP")
    g.lab("A_DONE")
    g.e("s_waitcnt lgkmcnt(0)")
    stamp(g, 2, 15)
    g.e("v_mov_b32 v10, v8")
    cross_rows(g, "v_max_f32", 10, 12)
    g.e("v_sub_f32 v11, v8, v10")
    g.e("v_exp_f32 v11, v11")
    g.nop(0)
    g.e("v_mul_f32 v9, v9, v11")
    for i in range(16):
        g.e("v_mul_f32 %s, %s, v11" % (v(32 + i), v(32 + i)))
    g.e("v_mov_b32 v11, v9")
    cross_rows(g, "v_add_f32", 11, 12)
    transpose_reduce16(g, 32)
    g.e("v_lshrrev_b32 v12, 1, %s" % v(V_G))
    g.e("v_lshlrev_b32 v12, 9, v12")
    g.e("v_and_b32 v13, 1, %s" % v(V_G))
    g.e("v_lshl_add_u32 v12, v13, 4, v12")
    g.e("v_lshl_add_u32 v12, %s, 5, v12" % v(V_L16))
    g.e("s_lshl_b32 s98, %s, 10" % sr(S_WAVE))
    g.e("v_add_u32 v12, s98, v12")
    g.e("ds_write_b128 v12, %s offset:%d" % (v(32, 4), L_AO))
    g.e("s_lshl_b32 s98, %s, 3" % sr(S_WAVE))
    g.e("v_mov_b32 v12, s98")
    g.e("s_mov_b64 exec, 1")
    g.e("ds_write_b64 v12, v[10:11] offset:%d" % L_AM)
    g.e("s_mov_b64 exec, -1")
    g.e("s_waitcnt lgkmcnt(0)")
    g.e("s_barrier")
    skip = g.newlab("ACOMB")
    g.e("s_cmp_ge_u32 %s, 4" % sr(S_WAVE))
    g.e("s_cbranch_scc1 %s" % skip)
    g.e("v_lshlrev_b32 v12, 2, v0")
    g.e("v_mov_b32 v13, 0")
    for w in range(8):
        g.e("ds_read_b32 %s, v12 offset:%d" % (v(32 + w), L_AO + w * 1024))
    for x in range(4):
        g.e("ds_read_b128 %s, v13 offset:%d" % (v(48 + 4 * x, 4), L_AM + 16 * x))
    g.e("s_waitcnt lgkmcnt(0)")
    g.e("v_max3_f32 v10, v48, v50, v52")
    g.e("v_max3_f32 v10, v10, v54, v56")
    g.e("v_max3_f32 v10, v10, v58, v60")
    g.e("v_max_f32 v10, v10, v62")
    for w in range(8):
        g.e("v_sub_f32 %s, %s, v10" % (v(48 + 2 * w), v(48 + 2 * w)))
    for w in range(8):
        g.e("v_exp_f32 %s, %s" % (v(48 + 2 * w), v(48 + 2 * w)))
    g.nop(0)
    g.e("v_mul_f32 v14, v32, v48")
    g.e("v_mul_f32 v11, v49, v48")
    for w in range(1, 8):
        g.e("v_fmac_f32 v14, %s, %s" % (v(32 + w), v(48 + 2 * w)))
        g.e("v_fmac_f32 v11, %s, %s" % (v(49 + 2 * w), v(48 + 2 * w)))
    g.e("s_lshl_b32 s98, %s, 12" % sr(S_CU))
    g.e("s_add_u32 s98, s98, %d" % WS_AP)
    g.e("v_mov_b32 v15, %s" % sr(S_TAG))
    g.e("v_lshlrev_b32 v12, 3, v0")
    g.e("buffer_store_dwordx2 v[14:15], v12, %s, s98 offen sc1" % sr(SRD_WS, 4))
    g.e("s_cmp_lg_u32 %s, 0" % sr(S_WAVE))
    g.e("s_cbranch_scc1 %s" % skip)
    g.e("v_mov_b32 v32, v10")
    g.e("v_mov_b32 v33, %s" % sr(S_TAG))
    g.e("v_mov_b32 v34, v11")
    g.e("v_mov_b32 v35, %s" % sr(S_TAG))
    g.e("s_mov_b64 exec, 1")
    g.e("buffer_store_dwordx4 v[32:35], off, %s, s98 offset:2048 sc1" % sr(SRD_WS, 4))
    g.e("s_mov_b64 exec, -1")
    g.lab(skip)
    flag_store(g, WS_AF, S_CU, 0)
    stamp(g, 3, 15)
    g.e("s_cmp_ge_u32 %s, 8" % sr(S_J))
    g.e("s_cbranch_scc1 L_END")
    g.e("s_cmp_ge_u32 %s, 4" % sr(S_J))
    g.e("s_cbranch_scc1 L_FINAL")
    g.c("---- A combine (CUs j<4): rows h*256+64j ----")
    preperm(g, 160, 8)
    g.e("s_mul_i32 s99, %s, 48" % sr(S_H))
    g.e("s_add_u32 s99, s99, %d" % WS_AF)
    poll_flags(g, "s99", 12, sleep=1)
    stamp(g, 4, 15)
    skip = g.newlab("ACB")
    g.e("s_cmp_ge_u32 %s, 2" % sr(S_WAVE))
    g.e("s_cbranch_scc1 %s" % skip)
    lp = g.newlab("ACL"); ok = g.newlab("ACOK")
    g.e("s_mov_b32 %s, 0" % sr(S_SPIN))
    g.e("s_lshl_b32 s99, %s, 9" % sr(S_J))
    g.e("v_lshlrev_b32 v12, 3, %s" % v(V_LANE))
    g.e("v_add_u32 v12, s99, v12")
    g.lab(lp)
    g.e("s_mul_i32 s98, %s, 12" % sr(S_H))
    g.e("s_mul_i32 s99, %s, 6" % sr(S_WAVE))
    g.e("s_add_u32 s98, s98, s99")
    g.e("s_lshl_b32 s98, s98, 12")
    g.e("s_add_u32 s98, s98, %d" % WS_AP)
    for s_ in range(6):
        g.e("buffer_load_dwordx2 %s, v12, %s, s98 offen sc1" % (v(32 + 2 * s_, 2), sr(SRD_WS, 4)))
        g.e("buffer_load_dwordx4 %s, off, %s, s98 offset:2048 sc1" % (v(80 + 4 * s_, 4), sr(SRD_WS, 4)))
        g.e("s_add_u32 s98, s98, 4096")
    g.e("s_waitcnt vmcnt(0)")
    g.e("v_xor_b32 v13, %s, v33" % sr(S_TAG))
    for r_ in list(range(35, 44, 2)) + list(range(81, 104, 2)):
        g.e("v_xor_b32 v14, %s, %s" % (sr(S_TAG), v(r_)))
        g.e("v_or_b32 v13, v13, v14")
    g.e("v_cmp_eq_u32 vcc, 0, v13")
    g.e("s_cmp_eq_u64 vcc, exec")
    g.e("s_cbranch_scc1 %s" % ok)
    g.e("s_add_u32 %s, %s, 1" % (sr(S_SPIN), sr(S_SPIN)))
    g.e("s_cmp_gt_u32 %s, %d" % (sr(S_SPIN), SPIN_MAX))
    g.e("s_cbranch_scc0 %s" % lp)
    g.lab(ok)
    g.e("v_max3_f32 v10, v80, v84, v88")
    g.e("v_max3_f32 v10, v10, v92, v96")
    g.e("v_max_f32 v10, v10, v100")
    for s_ in range(6):
        g.e("v_sub_f32 %s, %s, v10" % (v(80 + 4 * s_), v(80 + 4 * s_)))
    for s_ in range(6):
        g.e("v_exp_f32 %s, %s" % (v(80 + 4 * s_), v(80 + 4 * s_)))
    g.nop(0)
    g.e("v_mul_f32 v14, v32, v80")
    g.e("v_mul_f32 v11, v82, v80")
    for s_ in range(1, 6):
        g.e("v_fmac_f32 v14, %s, %s" % (v(32 + 2 * s_), v(80 + 4 * s_)))
        g.e("v_fmac_f32 v11, %s, %s" % (v(82 + 4 * s_), v(80 + 4 * s_)))
    g.e("v_rcp_f32 v11, v11")
    g.nop(0)
    g.e("v_mul_f32 v14, v14, v11")
    g.e("v_cvt_pk_bf16_f32 v14, v14, v14")
    g.e("v_lshlrev_b32 v12, 1, v0")
    g.e("ds_write_b16 v12, v14 offset:%d" % L_OA)
    g.lab(skip)
    g.e("s_waitcnt lgkmcnt(0)")
    g.e("s_barrier")
    out_gemv(g, 160, 8, L_OA, 128, 48, 32)
    g.e("s_lshl_b32 %s, %s, 2" % (sr(S_YI), sr(S_H)))
    g.e("s_add_u32 %s, %s, %s" % (sr(S_YI), sr(S_YI), sr(S_J)))
    g.e("s_branch L_YPUB")

    g.lab("L_ROLE_B")
    g.c("================ ROLE B main ================")
    if "--noB" in sys.argv:
        g.e("s_branch L_END")
    for i in range(4):
        g.e("s_lshl_b32 s98, %s, 2" % sr(S_WAVE))
        g.e("s_add_u32 s98, s98, %d" % i)
        g.e("s_and_b32 s98, s98, 15")
        g.e("s_and_b32 s99, s98, 7")
        g.e("s_lshl_b32 s99, s99, 1")
        g.e("s_lshr_b32 s98, s98, 3")
        g.e("s_or_b32 s98, s98, s99")
        g.e("v_xor_b32 %s, s98, %s" % (v(8 + i), v(V_LANE)))
        g.e("v_lshlrev_b32 %s, 4, %s" % (v(8 + i), v(8 + i)))
    g.e("s_lshl_b32 s98, %s, 12" % sr(S_BB))
    g.e("s_lshl_b32 s99, %s, 7" % sr(S_KR))
    g.e("s_add_u32 s98, s98, s99")
    g.e("s_lshl_b32 s99, %s, 2" % sr(S_WAVE))
    g.e("s_add_u32 s98, s98, s99")
    g.e("s_lshl_b32 %s, s98, 11" % sr(S_CKV))
    g.e("s_lshl_b32 %s, %s, 13" % (sr(S_LW), sr(S_WAVE)))
    def dma_tile(t):
        buf = L_TILE0 if t % 2 == 0 else L_TILE1
        for i in range(4):
            for hf in range(2):
                g.e("s_add_u32 s98, %s, %d" % (sr(S_LW), buf + i * 2048 + hf * 1024))
                g.e("s_mov_b32 m0, s98")
                g.e("s_add_u32 s99, %s, %d" % (sr(S_CKV), t * 65536 + i * 2048 + hf * 1024))
                g.vm("dma%d" % t, "buffer_load_dwordx4 %s, %s, s99 offen nt lds" % (v(8 + i), sr(SRD_K, 4)))
    dma_tile(0)
    dma_tile(1)
    for t in (2, 3):
        for i in range(4):
            for hf in range(2):
                g.e("s_add_u32 s99, %s, %d" % (sr(S_CKV), t * 65536 + i * 2048 + hf * 1024))
                g.vm("rt%d" % t, "buffer_load_dwordx4 %s, %s, %s, s99 offen nt" % (v(192 + 32 * (t - 2) + 4 * (2 * i + hf), 4), v(8 + i), sr(SRD_K, 4)))
    g.e("v_lshlrev_b32 v31, 4, %s" % v(V_LANE))
    g.e("v_add_u32 v31, %s, v31" % sr(S_LW))
    UV = 192
    uvn = [0]
    def uv_setup():
        g.e("v_lshlrev_b32 v30, 17, %s" % v(V_G))
        g.e("v_lshl_add_u32 v30, %s, 4, v30" % v(V_L16))
        g.e("s_lshr_b32 s98, %s, 1" % sr(S_J))
        g.e("s_lshl_b32 s98, s98, 9")
        g.e("s_lshl_b32 s99, %s, 6" % sr(S_WAVE))
        g.e("s_add_u32 s98, s98, s99")
        g.e("s_lshl_b32 s98, s98, 13")
        g.e("s_lshl_b32 s99, %s, 9" % sr(S_H))
        g.e("s_add_u32 s98, s98, s99")
        g.e("s_lshl_b32 s99, %s, 8" % sr(S_DH))
        g.e("s_add_u32 %s, s98, s99" % sr(S_QU))
    def uv_some(k):
        for _ in range(k):
            n = uvn[0]
            if n >= 16:
                return
            g.e("buffer_load_dwordx4 %s, v30, %s, %s offen nt" % (v(UV + 4 * n, 4), sr(SRD_V, 4), sr(S_QU)))
            g.e("s_add_u32 %s, %s, 8192" % (sr(S_QU), sr(S_QU)))
            uvn[0] += 1
    uv_setup()
    g.e("v_and_b32 v12, 7, %s" % v(V_L16))
    g.e("v_lshlrev_b32 v12, 1, v12")
    g.e("v_lshrrev_b32 v13, 3, %s" % v(V_L16))
    g.e("v_or_b32 v12, v12, v13")
    g.e("v_lshlrev_b32 v13, 1, %s" % v(V_G))
    g.e("v_xor_b32 v12, v12, v13")
    g.e("s_lshr_b32 s98, %s, 2" % sr(S_WAVE))
    g.e("s_lshl_b32 s98, s98, 15")
    g.e("s_and_b32 s99, %s, 3" % sr(S_WAVE))
    g.e("s_lshl_b32 s99, s99, 9")
    g.e("s_add_u32 s98, s98, s99")
    g.e("v_lshlrev_b32 v13, 11, %s" % v(V_L16))
    g.e("v_add_u32 v13, s98, v13")
    for x, X in enumerate((0, 1, 8, 9)):
        g.e("v_xor_b32 v14, %d, v12" % X)
        g.e("v_lshl_add_u32 %s, v14, 4, v13" % v(4 + x))
    g.e("v_lshrrev_b32 v12, 2, %s" % v(V_L16))
    g.e("v_lshl_add_u32 v12, %s, 2, v12" % v(V_G))
    g.e("v_and_b32 v13, 7, v12")
    g.e("v_lshlrev_b32 v13, 1, v13")
    g.e("v_lshrrev_b32 v14, 3, v12")
    g.e("v_or_b32 v13, v13, v14")
    g.e("v_bfe_u32 v14, %s, 1, 1" % v(V_L16))
    g.e("v_xor_b32 v13, v13, v14")
    g.e("v_lshlrev_b32 v12, 11, v12")
    g.e("v_and_b32 v14, 1, %s" % v(V_L16))
    g.e("v_lshl_add_u32 v12, v14, 3, v12")
    g.e("s_lshl_b32 s98, %s, 8" % sr(S_WAVE))
    g.e("v_add_u32 v12, s98, v12")
    for ct in range(8):
        g.e("v_xor_b32 v14, %d, v13" % (2 * ct))
        g.e("v_lshl_add_u32 %s, v14, 4, v12" % v(16 + ct))
    g.e("v_lshlrev_b32 v29, 4, %s" % v(V_LANE))
    g.e("v_add_u32 v29, %d, v29" % L_SX)
    g.e("s_lshl_b32 s98, %s, 10" % sr(S_WAVE))
    g.e("v_add_u32 v28, s98, v29")
    ACC = 32
    for i in range(32):
        g.e("v_mov_b32 %s, 0" % v(ACC + i))
    g.e("v_mov_b32 v124, 0xff800000")
    g.e("v_mov_b32 v125, 0")
    g.e("s_mov_b32 %s, 0x3db8aa3b" % sr(S_SC))
    g.e("s_waitcnt vmcnt(32)")
    g.e("v_readfirstlane_b32 %s, v127" % sr(S_TAG))
    g.e("s_add_u32 %s, %s, 1" % (sr(S_TAG), sr(S_TAG)))
    stamp(g, 2, 15)
    if "--ckvtest" in sys.argv:
        g.e("s_waitcnt vmcnt(16)")
        stamp(g, 3, 15)
        g.e("s_waitcnt vmcnt(0)")
        stamp(g, 4, 15)
        g.e("s_branch L_END")
    poll_flags(g, WS_QF, 192, pw=4)
    stamp(g, 3, 15)

    QF = 128
    g.c("---- ATT B ----")
    g.e("v_lshlrev_b32 v12, 4, %s" % v(V_LANE))
    g.e("s_and_b32 s98, %s, 3" % sr(S_WAVE))
    g.e("s_lshl_b32 s98, s98, 14")
    g.e("s_lshl_b32 s99, %s, 16" % sr(S_BB))
    g.e("s_add_u32 s98, s98, s99")
    g.e("s_add_u32 s98, s98, %d" % WS_QH)
    for ks in range(8):
        g.vm("qf", "buffer_load_dwordx4 %s, v12, %s, s98 offen offset:%d sc1" % (v(QF + 8 * ks, 4), sr(SRD_WS, 4), (ks & 1) * 2048))
        g.vm("qf", "buffer_load_dwordx4 %s, v12, %s, s98 offen offset:%d sc1" % (v(QF + 8 * ks + 4, 4), sr(SRD_WS, 4), (ks & 1) * 2048 + 1024))
        if ks & 1:
            g.e("s_add_u32 s98, s98, 4096")
    g.wait("qf")
    stamp(g, 16, 15)
    for t in range(4):
        g.c("tile %d" % t)
        if t: stamp(g, 16 + 3 * t, 15)
        g.e("s_waitcnt lgkmcnt(0)")
        g.e("s_barrier")
        if t >= 1 and t + 1 < 4:
            if t == 2:
                g.e("v_add_u32 v31, 0x10000, v31")
            for x in range(8):
                g.e("ds_write_b128 v31, %s offset:%d" % (v(192 + 32 * (t - 1) + 4 * x, 4), x * 1024))
        if t >= 1:
            op = "v_add_u32" if t % 2 == 1 else "v_subrev_u32"
            for r_ in list(range(4, 8)) + list(range(16, 24)):
                g.e("%s %s, 0x10000, %s" % (op, v(r_), v(r_)))
        if t >= 2: uv_some(2)
        for i in range(8):
            g.e("v_mov_b32 %s, 0" % v(80 + i))
        for ks in range(8):
            g.e("ds_read_b128 %s, %s offset:%d" % (v(88 + 4 * ks, 4), v(4 + (ks & 3)), (ks >> 2) * 256))
        for ks in range(8):
            g.e("s_waitcnt lgkmcnt(%d)" % (7 - ks))
            g.e("v_mfma_f32_16x16x32_bf16 %s, %s, %s, %s" % (v(80, 4), v(88 + 4 * ks, 4), v(QF + 8 * ks, 4), v(80, 4)))
            g.e("v_mfma_f32_16x16x32_bf16 %s, %s, %s, %s" % (v(84, 4), v(88 + 4 * ks, 4), v(QF + 8 * ks + 4, 4), v(84, 4)))
        g.nop(7)
        g.nop(1)
        for i in range(4):
            g.e("v_add_f32 %s, %s, %s" % (v(80 + i), v(80 + i), v(84 + i)))
        g.e("ds_write_b128 v28, %s" % v(80, 4))
        if t >= 2: uv_some(2)
        g.e("s_waitcnt lgkmcnt(0)")
        stamp(g, 17 + 3 * t, 15)
        g.e("s_barrier")
        stamp(g, 18 + 3 * t, 15)
        for x in range(8):
            g.e("ds_read_b128 %s, v29 offset:%d" % (v(88 + 4 * x, 4), x * 1024))
        g.e("s_waitcnt lgkmcnt(0)")
        for st in range(2):
            for i in range(4):
                a = 88 + 16 * st + i
                g.e("v_add_f32 %s, %s, %s" % (v(a), v(a), v(a + 4)))
                g.e("v_add_f32 %s, %s, %s" % (v(a + 8), v(a + 8), v(a + 12)))
                g.e("v_add_f32 %s, %s, %s" % (v(a), v(a), v(a + 8)))
                g.e("v_mul_f32 %s, %s, %s" % (v(80 + 4 * st + i), sr(S_SC), v(a)))
        if t >= 2: uv_some(2)
        g.e("v_max3_f32 v12, v80, v81, v82")
        g.e("v_max3_f32 v12, v12, v83, v84")
        g.e("v_max3_f32 v12, v12, v85, v86")
        g.e("v_max3_f32 v12, v12, v87, v124")
        cross_rows(g, "v_max_f32", 12, 13)
        g.e("v_sub_f32 v126, v124, v12")
        g.e("v_exp_f32 v126, v126")
        g.e("v_mov_b32 v124, v12")
        for i in range(8):
            g.e("v_sub_f32 %s, %s, v12" % (v(80 + i), v(80 + i)))
        for i in range(8):
            g.e("v_exp_f32 %s, %s" % (v(80 + i), v(80 + i)))
        g.e("v_mul_f32 v125, v125, v126")
        for i in range(8):
            g.e("v_add_f32 v125, v125, %s" % v(80 + i))
        for k in range(4):
            g.e("v_cvt_pk_bf16_f32 %s, %s, %s" % (v(120 + k), v(80 + 2 * k), v(81 + 2 * k)))
        for ct in range(8):
            g.e("ds_read_b64_tr_b16 %s, %s" % (v(88 + 4 * ct, 2), v(16 + ct)))
            g.e("ds_read_b64_tr_b16 %s, %s offset:32768" % (v(90 + 4 * ct, 2), v(16 + ct)))
        if t >= 2: uv_some(2)
        for i in range(32):
            g.e("v_mul_f32 %s, %s, v126" % (v(ACC + i), v(ACC + i)))
        for ct in range(8):
            g.e("s_waitcnt lgkmcnt(%d)" % (14 - 2 * ct))
            g.e("v_mfma_f32_16x16x32_bf16 %s, %s, %s, %s" % (v(ACC + 4 * ct, 4), v(88 + 4 * ct, 4), v(120, 4), v(ACC + 4 * ct, 4)))
    g.nop(7)
    g.nop(1)
    stamp(g, 4, 15)
    g.e("s_mul_i32 s98, %s, 4352" % sr(S_WAVE))
    g.e("s_movk_i32 s99, 272")
    g.e("v_mul_lo_u32 v12, %s, s99" % v(V_L16))
    g.e("v_lshl_add_u32 v12, %s, 3, v12" % v(V_G))
    g.e("v_add_u32 v12, s98, v12")
    for ct in range(8):
        g.e("v_cvt_pk_bf16_f32 %s, %s, %s" % (v(88 + 2 * ct), v(ACC + 4 * ct), v(ACC + 4 * ct + 1)))
        g.e("v_cvt_pk_bf16_f32 %s, %s, %s" % (v(89 + 2 * ct), v(ACC + 4 * ct + 2), v(ACC + 4 * ct + 3)))
        g.e("ds_write_b64 v12, %s offset:%d" % (v(88 + 2 * ct, 2), ct * 32))
    g.e("v_mul_lo_u32 v12, %s, s99" % v(V_G))
    g.e("v_lshl_add_u32 v12, %s, 4, v12" % v(V_L16))
    g.e("v_add_u32 v12, s98, v12")
    g.e("s_waitcnt lgkmcnt(0)")
    for x in range(4):
        g.e("ds_read_b128 %s, v12 offset:%d" % (v(88 + 4 * x, 4), x * 4 * 272))
    g.e("v_lshlrev_b32 v12, 11, %s" % v(V_G))
    g.e("v_lshl_add_u32 v12, %s, 4, v12" % v(V_L16))
    g.e("s_sub_u32 s98, %s, 192" % sr(S_CU))
    g.e("s_lshl_b32 s98, s98, 15")
    g.e("s_lshl_b32 s99, %s, 8" % sr(S_WAVE))
    g.e("s_add_u32 s98, s98, s99")
    g.e("s_add_u32 s98, s98, %d" % WS_PC)
    for x in range(4):
        g.e("s_waitcnt lgkmcnt(%d)" % (3 - x))
        g.e("buffer_store_dwordx4 %s, v12, %s, s98 offen sc1" % (v(88 + 4 * x, 4), sr(SRD_WS, 4)))
        g.e("s_add_u32 s98, s98, 8192")
    cross_rows(g, "v_add_f32", 125, 13)
    skip = g.newlab("PST")
    g.e("s_cmp_lg_u32 %s, 0" % sr(S_WAVE))
    g.e("s_cbranch_scc1 %s" % skip)
    g.e("v_lshlrev_b32 v12, 9, %s" % v(V_L16))
    g.e("s_sub_u32 s98, %s, 192" % sr(S_CU))
    g.e("s_lshl_b32 s98, s98, 3")
    g.e("s_add_u32 s98, s98, %d" % WS_PS)
    g.e("s_mov_b64 exec, 0xffff")
    g.e("buffer_store_dwordx2 %s, v12, %s, s98 offen sc1" % (v(124, 2), sr(SRD_WS, 4)))
    g.e("s_mov_b64 exec, -1")
    g.lab(skip)
    g.waitall()
    g.e("s_barrier")
    flag_store(g, WS_PF, S_CU, 192)
    stamp(g, 5, 15)
    def wo_b():
        g.e("s_lshl_b32 %s, %s, 8" % (sr(S_T[1]), sr(S_H)))
        g.e("s_lshl_b32 %s, %s, 7" % (sr(S_T[2]), sr(S_DH)))
        g.e("s_add_u32 %s, %s, %s" % (sr(S_T[1]), sr(S_T[1]), sr(S_T[2])))
        load_rows896(g, SRD_WO, S_T[1], 16, 128)
    skip = g.newlab("WOB")
    g.e("s_cmp_eq_u32 %s, 0" % sr(S_WAVE))
    g.e("s_cbranch_scc1 %s" % skip)
    wo_b()
    g.lab(skip)
    g.c("---- CTX ----")
    poll_flags(g, WS_PF, 64)
    stamp(g, 6, 15)
    g.q = []
    g.e("v_lshlrev_b32 v12, 3, %s" % v(V_LANE))
    g.e("s_lshl_b32 s98, %s, 9" % sr(S_H))
    g.e("s_add_u32 s98, s98, %d" % WS_PS)
    g.e("buffer_load_dwordx2 v[14:15], v12, %s, s98 offen sc1" % sr(SRD_WS, 4))
    g.e("v_lshlrev_b32 v13, 4, %s" % v(V_LANE))
    g.e("s_lshl_b32 s98, %s, 18" % sr(S_WAVE))
    g.e("s_lshl_b32 s99, %s, 11" % sr(S_H))
    g.e("s_add_u32 s98, s98, s99")
    g.e("s_lshr_b32 s99, %s, 1" % sr(S_J))
    g.e("s_lshl_b32 s99, s99, 10")
    g.e("s_add_u32 s98, s98, s99")
    g.e("s_add_u32 s98, s98, %d" % WS_PC)
    for i in range(8):
        g.e("buffer_load_dwordx4 %s, v13, %s, s98 offen sc1" % (v(64 + 4 * i, 4), sr(SRD_WS, 4)))
        g.e("s_add_u32 s98, s98, 32768")
    g.e("s_waitcnt vmcnt(8)")
    g.e("v_mov_b32 v12, v14")
    dpp_allreduce16(g, "v_max_f32", [12])
    cross_rows(g, "v_max_f32", 12, 13, both=False)
    g.e("v_sub_f32 v12, v14, v12")
    g.e("v_exp_f32 v12, v12")
    g.nop(0)
    g.e("v_mul_f32 v13, v12, v15")
    dpp_allreduce16(g, "v_add_f32", [13])
    cross_rows(g, "v_add_f32", 13, 14, both=False)
    g.e("v_rcp_f32 v13, v13")
    g.nop(0)
    g.e("v_mul_f32 v12, v12, v13")
    g.e("s_lshl_b32 s98, %s, 3" % sr(S_WAVE))
    g.nop(1)
    for i in range(8):
        g.e("v_readlane_b32 %s, v12, s98" % sr(S_O + i))
        g.e("s_add_u32 s98, s98, 1")
    for j in range(8):
        g.e("v_mov_b32 %s, 0" % v(32 + j))
    for i in range(8):
        g.e("s_waitcnt vmcnt(%d)" % (7 - i))
        for j in range(4):
            g.e("v_lshlrev_b32 v12, 16, %s" % v(64 + 4 * i + j))
            g.e("v_and_b32 v13, 0xffff0000, %s" % v(64 + 4 * i + j))
            g.e("v_fmac_f32 %s, %s, v12" % (v(32 + 2 * j), sr(S_O + i)))
            g.e("v_fmac_f32 %s, %s, v13" % (v(33 + 2 * j), sr(S_O + i)))
    skip = g.newlab("WOB0")
    g.e("s_cmp_lg_u32 %s, 0" % sr(S_WAVE))
    g.e("s_cbranch_scc1 %s" % skip)
    wo_b()
    g.lab(skip)
    g.e("s_and_b32 s98, %s, 3" % sr(S_WAVE))
    g.e("s_lshl_b32 s98, s98, 12")
    g.e("s_lshr_b32 s99, %s, 2" % sr(S_WAVE))
    g.e("s_lshl_b32 s99, s99, 11")
    g.e("s_add_u32 s98, s98, s99")
    g.e("s_add_u32 s98, s98, %d" % L_CX)
    g.e("v_lshlrev_b32 v13, 5, %s" % v(V_LANE))
    g.e("v_add_u32 v13, s98, v13")
    g.e("ds_write_b128 v13, %s" % v(32, 4))
    g.e("ds_write_b128 v13, %s offset:16" % v(36, 4))
    g.e("s_waitcnt lgkmcnt(0)")
    g.e("s_barrier")
    g.e("v_lshlrev_b32 v12, 3, v0")
    g.e("v_add_u32 v12, %d, v12" % L_CX)
    for x in range(4):
        g.e("ds_read_b64 %s, v12 offset:%d" % (v(32 + 2 * x, 2), x * 4096))
    g.e("s_waitcnt lgkmcnt(0)")
    g.e("v_add_f32 v32, v32, v34")
    g.e("v_add_f32 v33, v33, v35")
    g.e("v_add_f32 v36, v36, v38")
    g.e("v_add_f32 v37, v37, v39")
    g.e("v_add_f32 v32, v32, v36")
    g.e("v_add_f32 v33, v33, v37")
    g.e("v_cvt_pk_bf16_f32 v32, v32, v33")
    g.e("v_lshlrev_b32 v12, 2, v0")
    g.e("v_add_u32 v12, %d, v12" % L_CB)
    g.e("ds_write_b32 v12, v32")
    g.e("s_waitcnt lgkmcnt(0)")
    g.e("s_barrier")
    g.e("v_lshlrev_b32 v12, 5, %s" % v(V_G))
    g.e("s_lshl_b32 s98, %s, 7" % sr(S_WAVE))
    g.e("s_add_u32 s98, s98, %d" % L_CB)
    g.e("v_add_u32 v12, s98, v12")
    for b in range(2):
        g.e("ds_read_b128 %s, v12 offset:%d" % (v(64 + 8 * b, 4), b * 1024))
        g.e("ds_read_b128 %s, v12 offset:%d" % (v(68 + 8 * b, 4), b * 1024 + 16))
    for i in range(16):
        g.e("v_mov_b32 %s, 0" % v(32 + i))
    g.e("s_waitcnt lgkmcnt(0)")
    for k in range(8):
        r0, r1 = UV + 8 * k, UV + 8 * k + 4
        for j in range(4):
            g.e("v_perm_b32 %s, %s, %s, %s" % (v(100 + 2 * j), v(r1 + j), v(r0 + j), sr(S_PLO)))
            g.e("v_perm_b32 %s, %s, %s, %s" % (v(101 + 2 * j), v(r1 + j), v(r0 + j), sr(S_PHI)))
        for b in range(2):
            for e_ in range(8):
                g.e("v_dot2_f32_bf16 %s, %s, %s, %s" % (v(32 + 8 * b + e_), v(100 + e_), v(64 + 8 * b + k), v(32 + 8 * b + e_)))
    g.nop(3)
    transpose_reduce16(g, 32)
    g.e("v_lshrrev_b32 v12, 1, %s" % v(V_G))
    g.e("v_lshlrev_b32 v12, 9, v12")
    g.e("v_and_b32 v13, 1, %s" % v(V_G))
    g.e("v_lshl_add_u32 v12, v13, 4, v12")
    g.e("v_lshl_add_u32 v12, %s, 5, v12" % v(V_L16))
    g.e("s_lshl_b32 s98, %s, 10" % sr(S_WAVE))
    g.e("v_add_u32 v12, s98, v12")
    g.e("ds_write_b128 v12, %s offset:%d" % (v(32, 4), L_OX))
    g.e("s_waitcnt lgkmcnt(0)")
    g.e("s_barrier")
    skip = g.newlab("OBS")
    g.e("s_cmp_ge_u32 %s, 4" % sr(S_WAVE))
    g.e("s_cbranch_scc1 %s" % skip)
    g.e("v_lshlrev_b32 v12, 2, v0")
    for w in range(8):
        g.e("ds_read_b32 %s, v12 offset:%d" % (v(32 + w), L_OX + w * 1024))
    g.e("s_waitcnt lgkmcnt(0)")
    for w in range(1, 8):
        g.e("v_add_f32 v32, v32, %s" % v(32 + w))
    g.e("v_cvt_pk_bf16_f32 v32, v32, v32")
    g.e("v_lshlrev_b32 v12, 1, v0")
    g.e("ds_write_b16 v12, v32 offset:%d" % L_OB)
    g.lab(skip)
    g.e("s_waitcnt lgkmcnt(0)")
    g.e("s_barrier")
    g.e("s_waitcnt vmcnt(0)")
    preperm(g, 128, 16)
    out_gemv(g, 128, 16, L_OB, 256, 48, 32)
    stamp(g, 7, 15)

    g.e("s_sub_u32 %s, %s, 128" % (sr(S_YI), sr(S_CU)))
    g.lab("L_YPUB")
    g.nop(3)
    g.e("s_mul_i32 s98, %s, 3584" % sr(S_WAVE))
    g.e("s_add_u32 s98, s98, %d" % L_YX)
    g.e("v_lshlrev_b32 v12, 5, %s" % v(V_LANE))
    g.e("v_add_u32 v12, s98, v12")
    g.e("s_mov_b32 exec_hi, 0x00ffffff")
    for b in range(2):
        for hh in range(2):
            g.e("ds_write_b128 v12, %s offset:%d" % (v(48 + b * 8 + hh * 4, 4), b * 1792 + hh * 16))
    g.e("s_mov_b32 exec_hi, -1")
    g.e("s_waitcnt lgkmcnt(0)")
    g.e("s_barrier")
    skip = g.newlab("YS")
    g.e("v_cmp_gt_u32 vcc, 224, v0")
    g.e("s_and_saveexec_b64 %s, vcc" % sr(S_EX, 2))
    g.e("s_cbranch_execz %s" % skip)
    g.e("v_lshlrev_b32 v12, 4, v0")
    g.e("v_add_u32 v13, %d, v12" % L_YX)
    for wv in range(8):
        g.e("ds_read_b128 %s, v13 offset:%d" % (v(64 + wv * 4, 4), wv * 3584))
    g.e("s_waitcnt lgkmcnt(0)")
    for wv in range(1, 8):
        for j in range(4):
            g.e("v_add_f32 %s, %s, %s" % (v(64 + j), v(64 + j), v(64 + wv * 4 + j)))
    g.e("s_mul_i32 s98, %s, 7168" % sr(S_YI))
    g.e("s_add_u32 s98, s98, %d" % WS_Y)
    g.e("v_lshlrev_b32 v12, 5, v0")
    for j in range(4):
        g.e("v_mov_b32 %s, %s" % (v(72 + 2 * j), v(64 + j)))
        g.e("v_mov_b32 %s, %s" % (v(73 + 2 * j), sr(S_TAG)))
    g.e("buffer_store_dwordx4 v[72:75], v12, %s, s98 offen sc1" % sr(SRD_WS, 4))
    g.e("buffer_store_dwordx4 v[76:79], v12, %s, s98 offen offset:16 sc1" % sr(SRD_WS, 4))
    g.lab(skip)
    g.e("s_mov_b64 exec, %s" % sr(S_EX, 2))
    flag_store(g, WS_YF, S_YI, 0)
    stamp(g, 9, 15)
    g.e("s_branch L_END")

    g.lab("L_FINAL")
    g.c("---- FINAL ----")
    g.e("s_lshl_b32 %s, %s, 2" % (sr(S_YI), sr(S_H)))
    g.e("s_add_u32 %s, %s, %s" % (sr(S_YI), sr(S_YI), sr(S_J)))
    g.e("s_sub_u32 %s, %s, 4" % (sr(S_YI), sr(S_YI)))
    g.e("s_cmp_ge_u32 %s, 56" % sr(S_YI))
    g.e("s_cbranch_scc1 L_END")
    poll_flags(g, WS_YF, 128, sleep=1)
    stamp(g, 10, 15)
    g.e("s_mov_b32 s98, %s" % sr(S_YI))
    g.e("s_cmp_ge_u32 s98, 28")
    g.e("s_cselect_b32 s99, 1, 0")
    g.e("s_mul_i32 s100, s99, 28")
    g.e("s_sub_u32 s98, s98, s100")
    g.e("s_mul_i32 s100, s99, 3584")
    g.e("s_lshl_b32 s101, s98, 7")
    g.e("s_add_u32 s100, s100, s101")
    g.e("s_add_u32 s100, s100, %d" % WS_Y)
    g.e("v_lshrrev_b32 v12, 3, v0")
    g.e("v_bfe_u32 v13, v0, 2, 1")
    g.e("v_lshl_add_u32 v12, v13, 6, v12")
    g.e("s_movk_i32 s101, 7168")
    g.e("v_mul_lo_u32 v12, v12, s101")
    g.e("v_and_b32 v13, 3, v0")
    g.e("v_lshl_add_u32 v12, v13, 5, v12")
    lp = g.newlab("FL"); ok = g.newlab("FOK")
    g.e("s_mov_b32 %s, 0" % sr(S_SPIN))
    g.lab(lp)
    g.e("buffer_load_dwordx4 v[40:43], v12, %s, s100 offen sc1" % sr(SRD_WS, 4))
    g.e("buffer_load_dwordx4 v[44:47], v12, %s, s100 offen offset:16 sc1" % sr(SRD_WS, 4))
    g.e("s_waitcnt vmcnt(0)")
    g.e("v_xor_b32 v13, %s, v41" % sr(S_TAG))
    for r_ in (43, 45, 47):
        g.e("v_xor_b32 v14, %s, %s" % (sr(S_TAG), v(r_)))
        g.e("v_or_b32 v13, v13, v14")
    g.e("v_cmp_eq_u32 vcc, 0, v13")
    g.e("s_cmp_eq_u64 vcc, exec")
    g.e("s_cbranch_scc1 %s" % ok)
    g.e("s_add_u32 %s, %s, 1" % (sr(S_SPIN), sr(S_SPIN)))
    g.e("s_cmp_gt_u32 %s, %d" % (sr(S_SPIN), SPIN_MAX))
    g.e("s_cbranch_scc0 %s" % lp)
    g.lab(ok)
    for j in range(4):
        g.e("v_mov_b32 %s, %s" % (v(32 + j), v(40 + 2 * j)))
    g.nop(1)
    for r_ in range(32, 36):
        g.e("v_add_f32_dpp %s, %s, %s row_ror:8 row_mask:0xf bank_mask:0xf" % (v(r_), v(r_), v(r_)))
    for r_ in range(32, 36):
        cross_rows(g, "v_add_f32", r_, 13)
    g.e("v_lshlrev_b32 v12, 4, %s" % v(V_LANE))
    g.e("s_lshl_b32 s101, %s, 7" % sr(S_WAVE))
    g.e("s_add_u32 s101, s101, %d" % L_FX)
    g.e("v_add_u32 v12, s101, v12")
    g.e("s_mov_b64 exec, 0xff")
    g.e("ds_write_b128 v12, v[32:35]")
    g.e("s_mov_b64 exec, -1")
    g.e("s_waitcnt lgkmcnt(0)")
    g.e("s_barrier")
    g.e("s_cmp_lg_u32 %s, 0" % sr(S_WAVE))
    g.e("s_cbranch_scc1 L_END")
    g.e("v_and_b32 v12, 31, %s" % v(V_LANE))
    g.e("v_lshlrev_b32 v12, 2, v12")
    for wv in range(8):
        g.e("ds_read_b32 %s, v12 offset:%d" % (v(32 + wv), L_FX + wv * 128))
    g.e("s_waitcnt lgkmcnt(0)")
    for wv in range(1, 8):
        g.e("v_add_f32 v32, v32, %s" % v(32 + wv))
    g.e("v_cvt_pk_bf16_f32 v32, v32, v32")
    g.e("s_movk_i32 s101, 896")
    g.e("v_mul_lo_u32 v12, %s, s101" % v(V_G))
    g.e("v_lshl_add_u32 v12, %s, 1, v12" % v(V_L16))
    g.e("s_mul_i32 s100, s99, 1792")
    g.e("s_lshl_b32 s101, s98, 5")
    g.e("s_add_u32 s100, s100, s101")
    g.e("s_mov_b32 exec_lo, -1")
    g.e("s_mov_b32 exec_hi, 0")
    g.e("buffer_store_short v32, v12, %s, s100 offen" % sr(SRD_OUT, 4))
    g.e("s_mov_b64 exec, -1")
    stamp(g, 11, 15)
    g.e("s_cmp_lg_u32 %s, 0" % sr(S_YI))
    g.e("s_cbranch_scc1 L_END")
    g.e("v_mov_b32 v13, %s" % sr(S_TAG))
    g.e("s_mov_b64 exec, 1")
    g.e("buffer_store_dword v13, off, %s, 0 sc1" % sr(SRD_WS, 4))
    g.lab("L_END")
    g.e("s_endpgm")
    g.lines += [
        '.section .rodata,"a"',
        ".p2align 6",
        ".amdhsa_kernel %s" % KN,
        "  .amdhsa_next_free_vgpr 256",
        "  .amdhsa_next_free_sgpr 102",
        "  .amdhsa_accum_offset 256",
        "  .amdhsa_group_segment_fixed_size 0",
        "  .amdhsa_kernarg_size 112",
        "  .amdhsa_user_sgpr_count 2",
        "  .amdhsa_user_sgpr_kernarg_segment_ptr 1",
        "  .amdhsa_system_sgpr_workgroup_id_x 1",
        ".end_amdhsa_kernel",
    ]
    return "\n".join(g.lines) + "\n"

if __name__ == "__main__":
    out = sys.argv[1] if len(sys.argv) > 1 and not sys.argv[1].startswith("--") else "cdna_kernels/%s.s" % NAME
    open(out, "w").write(gen())
    print("wrote", out)
```

```python
import sys

NAME = "concat_heads__mha_block_cached__compressed_kv_cla__decode"
KN = NAME + "_kernel"

def opt(name, default):
    for a in sys.argv:
        if a.startswith("--%s=" % name):
            return int(a.split("=")[1])
    return default

WS_NONCE = 0
WS_AP = 0x600000
WS_QH = 0xA0000
WS_QL = 0xB0000
WS_QF = 0xC0000
WS_PF = 0xC1000
WS_YF = 0xC2000
WS_AF = 0xC3000
WS_PS = 0xC4000
WS_Y = 0xD0000
WS_QP = 0x10000
WS_QPF = 0xC5000
WS_PC = 0x200000
WS_SIZE = 0x10000000
WS_STAMP = 0x800000

L_TILE0 = 0
L_TILE1 = 65536
L_SX = 131072
L_QX = 139264
L_QB = 147456
L_CNT = 149504
LDS_BYTES = 149504 + 1024
L_AO = 0
L_AM = 8192
L_OX = 0
L_OB = 8192
L_OA = 8704
L_CX = 16384
L_CB = 12288
L_FX = 28672
L_YX = 32768

SPIN_MAX = opt("SPIN", 400000)
STAMPS = "--stamps" in sys.argv
D = opt("D", 6)
PRE = opt("PRE", 6)
SH = opt("SH", 64)
WS_CT = 0xC8000

class G:
    def __init__(s):
        s.lines = []
        s.q = []
        s.uid = 0
    def e(s, t):
        s.lines.append("    " + t)
    def c(s, t):
        s.lines.append("    ; " + t)
    def lab(s, n):
        s.lines.append(n + ":")
    def newlab(s, p="L"):
        s.uid += 1
        return "%s_%d" % (p, s.uid)
    def vm(s, tag, t):
        s.e(t)
        s.q.append(tag)
    def wait(s, tag):
        if tag not in s.q:
            return
        idx = max(i for i, x in enumerate(s.q) if x == tag)
        n = len(s.q) - 1 - idx
        s.e("s_waitcnt vmcnt(%d)" % min(n, 63))
        s.q = s.q[idx + 1:]
    def waitall(s):
        s.e("s_waitcnt vmcnt(0)")
        s.q = []
    def nop(s, n):
        s.e("s_nop %d" % n)

def v(i, n=1):
    return "v%d" % i if n == 1 else "v[%d:%d]" % (i, i + n - 1)
def sr(i, n=1):
    return "s%d" % i if n == 1 else "s[%d:%d]" % (i, i + n - 1)

S_WAVE, S_TAG, S_H, S_J, S_CU = 3, 4, 5, 6, 7
S_T = [8, 9, 10, 11, 12, 13, 14, 15]
S_ROLE = 16
S_CUR, S_NXT, S_UEND, S_SLAB, S_FIRST, S_VALID, S_NU = 17, 18, 19, 20, 21, 22, 23
S_BB, S_KR, S_DH, S_CKV, S_LW, S_SC = 24, 25, 26, 27, 28, 29
S_MAT, S_JMAT, S_YI = 30, 31, 32
S_QN, S_QU, S_QV = 33, 34, 35
S_SIX, S_CTR, S_MODE = 25, 26, 27
SRD_X, SRD_WQ, SRD_WO, SRD_K, SRD_V, SRD_WUV, SRD_WS, SRD_OUT, SRD_WOA = 36, 40, 44, 48, 52, 56, 60, 64, 68
S_PLO, S_PHI, S_L2E, S_SPIN = 72, 73, 74, 75
S_MK, S_M2, S_EX = 76, 78, 80
S_O = 82
V_LANE, V_L16, V_G = 1, 2, 3
RING = 192


def dpp_allreduce16(g, op, regs):
    for st in (8, 4, 2, 1):
        if len(regs) < 3:
            g.nop(1)
        for r in regs:
            g.e("%s_dpp %s, %s, %s row_ror:%d row_mask:0xf bank_mask:0xf" % (op, v(r), v(r), v(r), st))

def cross_rows(g, op, r, t, both=True):
    g.e("v_mov_b32 %s, %s" % (v(t), v(r)))
    g.nop(1)
    g.e("v_permlane16_swap_b32 %s, %s" % (v(t), v(r)))
    g.nop(1)
    g.e("%s %s, %s, %s" % (op, v(r), v(r), v(t)))
    if both:
        g.e("v_mov_b32 %s, %s" % (v(t), v(r)))
        g.nop(1)
        g.e("v_permlane32_swap_b32 %s, %s" % (v(t), v(r)))
        g.nop(1)
        g.e("%s %s, %s, %s" % (op, v(r), v(r), v(t)))

def transpose_reduce16(g, a):
    g.nop(1)
    for k in range(8):
        g.e("v_permlane32_swap_b32 %s, %s" % (v(a + k), v(a + k + 8)))
    g.nop(1)
    for k in range(8):
        g.e("v_add_f32 %s, %s, %s" % (v(a + k), v(a + k), v(a + k + 8)))
    g.nop(1)
    for k in range(4):
        g.e("v_permlane16_swap_b32 %s, %s" % (v(a + k), v(a + k + 4)))
    g.nop(1)
    for k in range(4):
        g.e("v_add_f32 %s, %s, %s" % (v(a + k), v(a + k), v(a + k + 4)))

DBGS = "--dbgstamps" in sys.argv
def stamp(g, idx, vt):
    if DBGS:
        if idx > 11:
            return
        g.e("s_memrealtime s[100:101]")
        g.e("s_lshl_b32 s98, %s, 2" % sr(S_ROLE))
        g.e("s_waitcnt lgkmcnt(0)")
        g.e("v_mov_b32 %s, s100" % v(vt))
        amap = {0: 0, 1: 1, 2: 2, 3: 3, 4: 4, 9: 5, 10: 6, 11: 7, 5: -1}
        bmap = {0: 8, 2: 9, 3: 10, 4: 11, 5: 12, 6: 13, 7: 14, 9: 15}
        a_, b_ = amap.get(idx, -1), bmap.get(idx, -1)
        g.e("s_cmp_eq_u32 %s, 1" % sr(S_ROLE))
        g.e("s_cselect_b32 s98, %d, %d" % (a_ * 4 if a_ >= 0 else 252, b_ * 4 if b_ >= 0 else 252))
        sk = g.newlab("DB")
        g.e("s_cmp_lg_u32 %s, 0" % sr(S_WAVE))
        g.e("s_cbranch_scc1 %s" % sk)
        g.e("s_and_b32 s99, %s, 0x3b" % sr(S_CU) if False else "s_mov_b32 s99, %s" % sr(S_CU))
        if idx in (10, 11):
            g.e("s_cmp_lg_u32 s99, 4")
        else:
            g.e("s_cmp_eq_u32 s99, 192")
            g.e("s_cselect_b32 s99, 0, s99")
            g.e("s_cmp_lg_u32 s99, 0")
        g.e("s_cbranch_scc1 %s" % sk)
        g.e("s_mov_b64 exec, 1")
        g.e("buffer_store_dword %s, off, s[92:95], s98" % v(vt))
        g.e("s_mov_b64 exec, -1")
        g.lab(sk)
        return
    if not STAMPS:
        return
    g.e("s_memrealtime s[100:101]")
    g.e("s_lshl_b32 s98, %s, 3" % sr(S_CU))
    g.e("s_add_u32 s98, s98, %s" % sr(S_WAVE))
    g.e("s_lshl_b32 s98, s98, 7")
    g.e("s_add_u32 s98, s98, %d" % (WS_STAMP + idx * 4))
    g.e("s_waitcnt lgkmcnt(0)")
    g.e("v_mov_b32 %s, s100" % v(vt))
    g.e("s_mov_b64 exec, 1")
    g.e("buffer_store_dword %s, off, %s, s98" % (v(vt), sr(SRD_WS, 4)))
    g.e("s_mov_b64 exec, -1")

def q_job(g, gather):
    ACC, PT, XR, W = 32, 48, 56, 128
    g.c("---- Q job ----")
    g.e("s_mul_i32 %s, %s, 224" % (sr(S_T[4]), sr(S_T[0])))
    g.e("s_add_u32 %s, %s, 896" % (sr(S_T[5]), sr(S_T[4])))
    g.e("s_mul_i32 %s, %s, %d" % (sr(S_T[2]), sr(S_T[0]), 112 * 8192))
    g.e("s_lshl_b32 %s, %s, 9" % (sr(S_T[3]), sr(S_H)))
    g.e("s_add_u32 %s, %s, %s" % (sr(S_T[2]), sr(S_T[2]), sr(S_T[3])))
    g.e("s_lshl_b32 %s, %s, 8" % (sr(S_T[3]), sr(S_T[1])))
    g.e("s_add_u32 %s, %s, %s" % (sr(S_T[2]), sr(S_T[2]), sr(S_T[3])))
    g.e("s_mov_b32 %s, %d" % (sr(S_T[6]), 28 * 8192))
    g.e("v_mul_lo_u32 v12, %s, %s" % (v(V_G), sr(S_T[6])))
    g.e("v_lshl_add_u32 v12, %s, 4, v12" % v(V_L16))
    g.e("v_mul_u32_u24 v13, 56, %s" % v(V_G))
    for b in range(2):
        sb = sr(S_T[4 + b])
        g.e("buffer_load_dwordx4 %s, v13, %s, %s offen" % (v(XR + b * 14, 4), sr(SRD_X, 4), sb))
        g.e("buffer_load_dwordx4 %s, v13, %s, %s offen offset:16" % (v(XR + b * 14 + 4, 4), sr(SRD_X, 4), sb))
        g.e("buffer_load_dwordx4 %s, v13, %s, %s offen offset:32" % (v(XR + b * 14 + 8, 4), sr(SRD_X, 4), sb))
        g.e("buffer_load_dwordx2 %s, v13, %s, %s offen offset:48" % (v(XR + b * 14 + 12, 2), sr(SRD_X, 4), sb))
    for n in range(28):
        g.e("buffer_load_dwordx4 %s, v12, %s, %s offen nt" % (v(W + 4 * n, 4), sr(SRD_WQ, 4), sr(S_T[2])))
        g.e("s_add_u32 %s, %s, 8192" % (sr(S_T[2]), sr(S_T[2])))
    QB = opt("QB", 14)
    if QB == 0:
        g.e("s_barrier")
    for i in range(16):
        g.e("v_mov_b32 %s, 0" % v(ACC + i))
    for k in range(14):
        g.e("s_waitcnt vmcnt(%d)" % (26 - 2 * k))
        if QB and k == QB - 1:
            g.e("s_barrier")
        r0 = W + 8 * k
        r1 = r0 + 4
        for j in range(4):
            g.e("v_perm_b32 %s, %s, %s, %s" % (v(PT + 2 * j), v(r1 + j), v(r0 + j), sr(S_PLO)))
            g.e("v_perm_b32 %s, %s, %s, %s" % (v(PT + 2 * j + 1), v(r1 + j), v(r0 + j), sr(S_PHI)))
        for b in range(2):
            for e_ in range(8):
                g.e("v_dot2_f32_bf16 %s, %s, %s, %s" % (v(ACC + b * 8 + e_), v(PT + e_), v(XR + b * 14 + k), v(ACC + b * 8 + e_)))
    stamp(g, 12, 15)
    g.e("v_readfirstlane_b32 %s, v127" % sr(S_TAG))
    g.e("s_add_u32 %s, %s, 1" % (sr(S_TAG), sr(S_TAG)))
    g.nop(1)
    transpose_reduce16(g, ACC)
    done = g.newlab("QDONE")
    g.e("v_lshrrev_b32 v12, 1, %s" % v(V_G))
    g.e("v_lshlrev_b32 v12, 11, v12")
    g.e("v_and_b32 v13, 1, %s" % v(V_G))
    g.e("v_lshl_add_u32 v12, v13, 5, v12")
    g.e("v_lshl_add_u32 v12, %s, 6, v12" % v(V_L16))
    g.e("s_lshl_b32 s98, %s, 1" % sr(S_H))
    g.e("s_add_u32 s98, s98, %s" % sr(S_JMAT))
    g.e("s_lshl_b32 s99, s98, 5")
    g.e("s_lshl_b32 s98, s98, 2")
    g.e("s_add_u32 s98, s98, %s" % sr(S_T[0]))
    g.e("s_lshl_b32 s98, s98, 12")
    g.e("s_lshl_b32 s100, %s, 10" % sr(S_T[1]))
    g.e("s_add_u32 s98, s98, s100")
    g.e("s_add_u32 s98, s98, %d" % WS_QP)
    g.e("v_mov_b32 v40, v32")
    g.e("v_mov_b32 v41, %s" % sr(S_TAG))
    g.e("v_mov_b32 v42, v33")
    g.e("v_mov_b32 v43, %s" % sr(S_TAG))
    g.e("v_mov_b32 v44, v34")
    g.e("v_mov_b32 v45, %s" % sr(S_TAG))
    g.e("v_mov_b32 v46, v35")
    g.e("v_mov_b32 v47, %s" % sr(S_TAG))
    g.e("buffer_store_dwordx4 v[40:43], v12, %s, s98 offen sc1" % sr(SRD_WS, 4))
    g.e("buffer_store_dwordx4 v[44:47], v12, %s, s98 offen offset:16 sc1" % sr(SRD_WS, 4))
    g.e("s_lshl_b32 s100, %s, 1" % sr(S_T[0]))
    g.e("s_add_u32 s100, s100, %s" % sr(S_T[1]))
    g.e("s_lshl_b32 s100, s100, 2")
    g.e("s_add_u32 s99, s99, s100")
    g.e("s_add_u32 s99, s99, %d" % WS_QPF)
    g.e("s_mov_b64 exec, 1")
    g.e("buffer_store_dword v41, off, %s, s99 sc1" % sr(SRD_WS, 4))
    g.e("s_mov_b64 exec, -1")
    stamp(g, 13, 15)
    if gather:
        g.e("s_mov_b32 %s, 0" % sr(S_SPIN))
        g.e("v_and_b32 v15, 15, %s" % v(V_LANE))
        g.e("v_lshlrev_b32 v15, 2, v15")
        g.e("s_lshl_b32 s99, %s, 6" % sr(S_H))
        g.e("s_add_u32 s99, s99, %d" % WS_QPF)
        lp0 = g.newlab("QH"); ok0 = g.newlab("QHOK")
        g.lab(lp0)
        g.e("buffer_load_dword v11, v15, %s, s99 offen sc1" % sr(SRD_WS, 4))
        g.e("s_waitcnt vmcnt(0)")
        g.e("v_cmp_eq_u32 vcc, %s, v11" % sr(S_TAG))
        g.e("s_cmp_eq_u64 vcc, exec")
        g.e("s_cbranch_scc1 %s" % ok0)
        g.e("s_add_u32 %s, %s, 1" % (sr(S_SPIN), sr(S_SPIN)))
        g.e("s_sleep 1")
        g.e("s_cmp_gt_u32 %s, %d" % (sr(S_SPIN), SPIN_MAX))
        g.e("s_cbranch_scc0 %s" % lp0)
        g.lab(ok0)
        g.e("s_mov_b32 %s, 1" % sr(S_T[7]))
        lp = g.newlab("QG"); ok = g.newlab("QGOK")
        g.e("v_lshlrev_b32 v12, 4, %s" % v(V_LANE))
        g.lab(lp)
        g.e("s_lshl_b32 s99, %s, 6" % sr(S_H))
        g.e("s_add_u32 s99, s99, %d" % WS_QPF)
        g.e("buffer_load_dword v11, v15, %s, s99 offen sc1" % sr(SRD_WS, 4))
        g.e("s_lshl_b32 s98, %s, 15" % sr(S_H))
        g.e("s_add_u32 s98, s98, %d" % WS_QP)
        g.e("s_lshl_b32 s99, %s, 11" % sr(S_BB))
        g.e("s_add_u32 s99, s99, s98")
        for rq in range(4):
            for p in range(2):
                g.e("buffer_load_dwordx4 %s, v12, %s, s99 offen offset:%d sc1" % (v(32 + rq * 8 + p * 4, 4), sr(SRD_WS, 4), p * 1024))
            g.e("s_add_u32 s99, s99, 4096")
        g.e("s_add_u32 s99, s98, 16384")
        for rq in range(4):
            for z in (1, 2):
                for p in range(2):
                    g.e("buffer_load_dwordx4 %s, v12, %s, s99 offen offset:%d sc1" % (v(32 + z * 32 + rq * 8 + p * 4, 4), sr(SRD_WS, 4), (z - 1) * 2048 + p * 1024))
            g.e("s_add_u32 s99, s99, 4096")
        sk = g.newlab("QREL")
        g.e("s_cmp_eq_u32 %s, 0" % sr(S_T[7]))
        g.e("s_cbranch_scc1 %s" % sk)
        g.e("s_barrier")
        g.e("s_mov_b32 %s, 0" % sr(S_T[7]))
        g.lab(sk)
        g.e("s_waitcnt vmcnt(0)")
        g.e("v_xor_b32 v13, %s, v11" % sr(S_TAG))
        for r_ in range(33, 128, 2):
            g.e("v_xor_b32 v14, %s, %s" % (sr(S_TAG), v(r_)))
            g.e("v_or_b32 v13, v13, v14")
        g.e("v_cmp_eq_u32 vcc, 0, v13")
        g.e("s_cmp_eq_u64 vcc, exec")
        g.e("s_cbranch_scc1 %s" % ok)
        g.e("s_add_u32 %s, %s, 1" % (sr(S_SPIN), sr(S_SPIN)))
        g.e("s_cmp_gt_u32 %s, %d" % (sr(S_SPIN), SPIN_MAX))
        g.e("s_cbranch_scc0 %s" % lp)
        g.lab(ok)
        stamp(g, 14, 15)
        g.e("v_lshlrev_b32 v12, 2, %s" % v(V_LANE))
        g.e("v_add_u32 v13, %d, v12" % L_QB)
        g.e("s_lshl_b32 s99, %s, 9" % sr(S_BB))
        g.e("v_add_u32 v12, s99, v13")
        for z in range(3):
            for p in range(2):
                a = 32 + z * 32 + p * 4
                for o_ in (0, 2):
                    g.e("v_add_f32 %s, %s, %s" % (v(a + o_), v(a + o_), v(a + 8 + o_)))
                    g.e("v_add_f32 %s, %s, %s" % (v(a + 16 + o_), v(a + 16 + o_), v(a + 24 + o_)))
                    g.e("v_add_f32 %s, %s, %s" % (v(a + o_), v(a + o_), v(a + 16 + o_)))
                g.e("v_cvt_pk_bf16_f32 %s, %s, %s" % (v(a + 1), v(a), v(a + 2)))
                if z == 0:
                    g.e("ds_write_b32 v12, %s offset:%d" % (v(a + 1), p * 256))
                else:
                    g.e("ds_write_b32 v13, %s offset:%d" % (v(a + 1), 1024 + (z - 1) * 512 + p * 256))
        g.e("s_waitcnt lgkmcnt(0)")
    g.lab(done)

def load_rows896(g, srd, rowbase_sgpr, nrows, wreg):
    g.e("s_mul_i32 %s, %s, %d" % (sr(S_T[0]), sr(S_WAVE), nrows))
    g.e("s_add_u32 %s, %s, %s" % (sr(S_T[0]), sr(S_T[0]), sr(rowbase_sgpr)))
    g.e("s_mul_i32 %s, %s, 896" % (sr(S_T[0]), sr(S_T[0])))
    g.e("v_lshlrev_b32 v12, 4, %s" % v(V_LANE))
    g.e("s_mov_b32 exec_hi, 0x00ffffff")
    for n in range(nrows):
        if n % 4 == 0 and n > 0:
            g.e("s_add_u32 %s, %s, 3584" % (sr(S_T[0]), sr(S_T[0])))
        g.e("buffer_load_dwordx4 %s, v12, %s, %s offen offset:%d" % (v(wreg + n * 4, 4), sr(srd, 4), sr(S_T[0]), (n % 4) * 896))
    g.e("s_mov_b32 exec_hi, -1")

def preperm(g, wreg, nrows):
    for k in range(nrows // 2):
        r0 = wreg + (2 * k) * 4
        r1 = r0 + 4
        for j in range(4):
            g.e("v_perm_b32 v12, %s, %s, %s" % (v(r1 + j), v(r0 + j), sr(S_PLO)))
            g.e("v_perm_b32 %s, %s, %s, %s" % (v(r1 + j), v(r1 + j), v(r0 + j), sr(S_PHI)))
            g.e("v_mov_b32 %s, v12" % v(r0 + j))

def out_gemv(g, wreg, nrows, lds_base, bstride, Y, OP):
    g.e("s_mul_i32 %s, %s, %d" % (sr(S_T[0]), sr(S_WAVE), nrows * 2))
    g.e("s_add_u32 %s, %s, %d" % (sr(S_T[0]), sr(S_T[0]), lds_base))
    g.e("v_mov_b32 v12, %s" % sr(S_T[0]))
    npk = nrows // 2
    for b in range(2):
        for x in range(npk // 4):
            g.e("ds_read_b128 %s, v12 offset:%d" % (v(OP + b * npk + 4 * x, 4), b * bstride + 16 * x))
    for i in range(16):
        g.e("v_mov_b32 %s, 0" % v(Y + i))
    g.e("s_waitcnt lgkmcnt(0)")
    for k in range(npk):
        r0 = wreg + (2 * k) * 4
        r1 = r0 + 4
        for b in range(2):
            for j in range(4):
                g.e("v_dot2_f32_bf16 %s, %s, %s, %s" % (v(Y + b * 8 + 2 * j), v(r0 + j), v(OP + b * npk + k), v(Y + b * 8 + 2 * j)))
                g.e("v_dot2_f32_bf16 %s, %s, %s, %s" % (v(Y + b * 8 + 2 * j + 1), v(r1 + j), v(OP + b * npk + k), v(Y + b * 8 + 2 * j + 1)))

def flag_store(g, base_const, idx_sgpr, sub):
    skip = g.newlab("FLAG")
    g.e("s_cmp_lg_u32 %s, 0" % sr(S_WAVE))
    g.e("s_cbranch_scc1 %s" % skip)
    g.e("s_sub_u32 s98, %s, %d" % (sr(idx_sgpr), sub))
    g.e("s_lshl_b32 s98, s98, 2")
    g.e("s_add_u32 s98, s98, %d" % base_const)
    g.e("v_mov_b32 v13, %s" % sr(S_TAG))
    g.e("s_mov_b64 exec, 1")
    g.e("buffer_store_dword v13, off, %s, s98 sc1" % sr(SRD_WS, 4))
    g.e("s_mov_b64 exec, -1")
    g.lab(skip)

def poll_flags(g, base_sgpr_or_const, nflags, pw=0, sleep=4):
    lp = g.newlab("POLL"); ok = g.newlab("POLLOK")
    g.e("s_cmp_lg_u32 %s, %d" % (sr(S_WAVE), pw))
    g.e("s_cbranch_scc1 %s" % ok)
    wide = nflags > 64
    g.e("v_lshlrev_b32 v12, %d, %s" % (4 if wide else 2, v(V_LANE)))
    if wide:
        nflags //= 4
    if isinstance(base_sgpr_or_const, int):
        g.e("s_mov_b32 s98, %d" % base_sgpr_or_const)
    else:
        g.e("s_mov_b32 s98, %s" % base_sgpr_or_const)
    if nflags < 64:
        m = (1 << nflags) - 1
        g.e("s_mov_b32 exec_lo, 0x%x" % (m & 0xffffffff))
        g.e("s_mov_b32 exec_hi, 0x%x" % (m >> 32))
    g.e("s_mov_b32 %s, 0" % sr(S_SPIN))
    g.lab(lp)
    if wide:
        g.e("buffer_load_dwordx4 v[88:91], v12, %s, s98 offen sc1" % sr(SRD_WS, 4))
        g.e("s_waitcnt vmcnt(0)")
        g.e("v_cmp_eq_u32 vcc, %s, v88" % sr(S_TAG))
        for i in range(1, 4):
            g.e("v_cmp_eq_u32 %s, %s, %s" % (sr(S_M2, 2), sr(S_TAG), v(88 + i)))
            g.e("s_and_b64 vcc, vcc, %s" % sr(S_M2, 2))
    else:
        g.e("buffer_load_dword v13, v12, %s, s98 offen sc1" % sr(SRD_WS, 4))
        g.e("s_waitcnt vmcnt(0)")
        g.e("v_cmp_eq_u32 vcc, %s, v13" % sr(S_TAG))
    g.e("s_cmp_eq_u64 vcc, exec")
    g.e("s_cbranch_scc1 %s" % ok)
    g.e("s_add_u32 %s, %s, 1" % (sr(S_SPIN), sr(S_SPIN)))
    g.e("s_cmp_gt_u32 %s, %d" % (sr(S_SPIN), SPIN_MAX))
    g.e("s_cbranch_scc1 %s" % ok)
    g.e("s_sleep %d" % sleep)
    g.e("s_branch %s" % lp)
    g.lab(ok)
    g.e("s_mov_b64 exec, -1")
    g.e("s_barrier")


def gen():
    g = G()
    g.lines.append("; @launch grid=(256,1,1) block=(512,1,1) lds=%d" % LDS_BYTES)
    g.lines.append('.amdgcn_target "amdgcn-amd-amdhsa--gfx950"')
    g.lines.append(".text")
    g.lines.append(".globl %s" % KN)
    g.lines.append(".p2align 8")
    g.lines.append(".type %s,@function" % KN)
    g.lab(KN)
    g.e("s_cmp_ge_u32 s2, 256")
    g.e("s_cbranch_scc1 L_END")
    if "--noxmap" not in sys.argv:
        g.e("s_and_b32 s96, s2, 7")
        g.e("s_lshr_b32 s97, s2, 3")
        XM = opt("XM", 1)
        if XM == 1:
            g.e("s_mul_i32 s98, s96, 24")
            g.e("s_add_u32 s98, s98, s97")
        else:
            sh = {2: 1, 4: 2}[XM]
            g.e("s_lshr_b32 s98, s96, %d" % sh)
            g.e("s_mul_i32 s98, s98, %d" % (24 * XM))
            g.e("s_and_b32 s99, s96, %d" % (XM - 1))
            g.e("s_add_u32 s98, s98, s99")
            g.e("s_lshl_b32 s99, s97, %d" % sh)
            g.e("s_add_u32 s98, s98, s99")
        g.e("s_lshl_b32 s99, s96, 3")
        g.e("s_add_u32 s99, s99, s97")
        g.e("s_add_u32 s99, s99, 168")
        g.e("s_cmp_lt_u32 s97, 24")
        g.e("s_cselect_b32 s2, s98, s99")
    g.e("s_load_dwordx16 s[8:23], s[0:1], 0")
    g.e("s_load_dwordx8 s[24:31], s[0:1], 64")
    g.e("s_load_dwordx4 s[32:35], s[0:1], 96")
    g.e("v_and_b32 %s, 63, v0" % v(V_LANE))
    g.e("v_lshrrev_b32 v12, 6, v0")
    g.e("v_and_b32 %s, 15, v0" % v(V_L16))
    g.e("v_bfe_u32 %s, v0, 4, 2" % v(V_G))
    g.e("v_readfirstlane_b32 %s, v12" % sr(S_WAVE))
    g.e("v_mov_b32 v4, 0")
    g.e("v_mov_b32 v5, 0")
    g.e("s_mov_b32 %s, 0x05040100" % sr(S_PLO))
    g.e("s_mov_b32 %s, 0x07060302" % sr(S_PHI))
    g.e("s_mov_b32 %s, 0x3fb8aa3b" % sr(S_L2E))
    g.e("s_mov_b32 %s, 0x00010001" % sr(S_MK))
    g.e("s_mov_b32 %s, 0x00010001" % sr(S_MK + 1))
    g.e("s_mul_i32 s96, s2, 43691")
    g.e("s_lshr_b32 s96, s96, 19")
    g.e("s_mul_i32 s97, s96, 12")
    g.e("s_sub_u32 s97, s2, s97")
    g.e("s_cmp_ge_u32 s97, 8")
    g.e("s_cselect_b32 s99, 1, 0")
    g.e("s_cmp_ge_u32 s2, 192")
    g.e("s_cselect_b32 s99, 1, s99")
    g.e("s_cmp_eq_u32 s99, 0")
    g.e("s_waitcnt lgkmcnt(0)")
    def srd(d, a, b, na, nb):
        g.e("s_cselect_b32 %s, %s, %s" % (sr(d), sr(a), sr(b)))
        g.e("s_cselect_b32 %s, %s, %s" % (sr(d + 1), sr(a + 1), sr(b + 1)))
        if na == nb:
            g.e("s_mov_b32 %s, %d" % (sr(d + 2), na))
        else:
            g.e("s_mov_b32 s98, %d" % na)
            g.e("s_cselect_b32 %s, s98, %d" % (sr(d + 2), nb))
        g.e("s_mov_b32 %s, 0x00020000" % sr(d + 3))
    srd(SRD_X, 8, 18, 1792, 1792)
    srd(SRD_WQ, 14, 22, 448 * 8192, 448 * 8192)
    g.e("s_cmp_lt_u32 s2, 192")
    srd(SRD_WO, 24, 28, 1 << 23, 4096 * 896)
    srd(SRD_K, 10, 20, 1 << 26, 1 << 24)
    srd(SRD_V, 12, 26, 1 << 26, 1 << 23)
    srd(SRD_WS, 34, 34, WS_SIZE, WS_SIZE)
    srd(SRD_OUT, 30, 30, 3584, 3584)
    srd(SRD_WOA, 16, 16, 4096 * 896, 4096 * 896)
    if DBGS:
        srd(92, 32, 32, 256, 256)
    g.e("s_cselect_b32 %s, 1, 0" % sr(S_ROLE))
    g.e("s_cselect_b32 %s, 0, 1" % sr(S_MAT))
    g.e("s_mov_b32 %s, s99" % sr(S_JMAT))
    g.e("buffer_load_dword v127, off, %s, 0 sc1" % sr(SRD_WS, 4))
    g.e("s_cbranch_scc0 L_ROLE_B0")

    g.c("==== ROLE A setup ====")
    if "--noA" in sys.argv:
        g.e("s_branch L_END")
    g.e("s_mov_b32 %s, s97" % sr(S_J))
    g.e("s_mov_b32 %s, s96" % sr(S_H))
    g.e("s_mov_b32 %s, s2" % sr(S_CU))
    g.e("s_cmp_ge_u32 %s, 6" % sr(S_J))
    g.e("s_cselect_b32 %s, 1, 0" % sr(S_BB))
    g.e("s_mul_i32 s99, %s, 6" % sr(S_BB))
    g.e("s_sub_u32 s98, %s, s99" % sr(S_J))
    g.e("s_mov_b32 %s, s98" % sr(S_SIX))
    g.e("s_mul_i32 s99, s98, %d" % (((512 - SH) // 2) * 43691))
    g.e("s_lshr_b32 s99, s99, 17")
    g.e("s_add_u32 s98, s98, 1")
    g.e("s_mul_i32 s98, s98, %d" % (((512 - SH) // 2) * 43691))
    g.e("s_lshr_b32 %s, s98, 17" % sr(S_UEND))
    g.e("s_lshl_b32 s98, %s, 4" % sr(S_BB))
    g.e("s_add_u32 s98, s98, %s" % sr(S_H))
    g.e("s_lshl_b32 %s, s98, 8" % sr(S_CTR))
    g.e("s_add_u32 %s, %s, %d" % (sr(S_CTR), sr(S_CTR), WS_CT))
    g.e("s_lshl_b32 %s, s98, 21" % sr(S_SLAB))
    g.e("s_add_u32 s100, s99, %s" % sr(S_WAVE))
    g.e("s_lshl_b32 s100, s100, 12")
    g.e("s_add_u32 %s, %s, s100" % (sr(S_CUR), sr(S_SLAB)))
    g.e("v_lshlrev_b32 v4, 10, %s" % v(V_G))
    g.e("v_lshl_add_u32 v4, %s, 4, v4" % v(V_L16))
    g.e("s_add_u32 s99, s99, 8")
    g.e("v_mov_b32 v5, %d" % L_CNT)
    g.e("v_mov_b32 v6, s99")
    g.e("v_mov_b32 v7, 0")
    g.e("ds_write_b64 v5, v[6:7]")
    stamp(g, 0, 15)
    g.e("s_and_b32 %s, %s, 3" % (sr(S_T[0]), sr(S_J)))
    g.e("s_cmp_ge_u32 %s, 4" % sr(S_J))
    g.e("s_cselect_b32 %s, 1, 0" % sr(S_T[1]))
    g.e("s_cmp_ge_u32 %s, 8" % sr(S_J))
    g.e("s_cselect_b32 %s, 0, %s" % (sr(S_T[1]), sr(S_T[1])))
    skip = g.newlab("NOQ"); skip2 = g.newlab("NOQ")
    g.e("s_cmp_ge_u32 %s, 1" % sr(S_WAVE))
    g.e("s_cbranch_scc1 %s" % skip)
    sk3 = g.newlab("NOZ")
    g.e("s_cmp_lg_u32 %s, 0" % sr(S_SIX))
    g.e("s_cbranch_scc1 %s" % sk3)
    g.e("s_mov_b64 exec, 1")
    g.e("buffer_store_dword v7, off, %s, %s sc1" % (sr(SRD_WS, 4), sr(S_CTR)))
    g.e("s_mov_b64 exec, -1")
    g.lab(sk3)
    q_job(g, True)
    g.e("s_branch %s" % skip2)
    g.lab(skip)
    g.e("s_barrier")
    g.lab(skip2)
    VOFF = [0, 512, 256, 768]
    def a_issue(slot, base):
        p = slot & 7
        if p < 4:
            g.e("buffer_load_dwordx4 %s, v4, %s, %s offen offset:%d nt" % (v(RING + 4 * slot, 4), sr(SRD_K, 4), sr(base), p * 256))
        else:
            g.e("buffer_load_dwordx4 %s, v4, %s, %s offen offset:%d nt" % (v(RING + 4 * slot, 4), sr(SRD_V, 4), sr(base), VOFF[p - 4]))
    g.e("s_mul_i32 s98, %s, %d" % (sr(S_J), 16 * 43691))
    g.e("s_lshr_b32 s98, s98, 17")
    g.e("s_add_u32 s99, %s, 1" % sr(S_J))
    g.e("s_mul_i32 s99, s99, %d" % (16 * 43691))
    g.e("s_lshr_b32 s99, s99, 17")
    g.e("s_sub_u32 %s, s99, s98" % sr(S_QN))
    g.e("s_add_u32 s98, s98, %s" % sr(S_WAVE))
    g.e("s_sub_u32 %s, s98, 2" % sr(S_QU))
    g.e("s_cmp_lt_u32 %s, 2" % sr(S_WAVE))
    g.e("s_cselect_b32 %s, 0, 1" % sr(S_QV))
    g.e("s_cmp_ge_u32 %s, s99" % sr(S_QU))
    g.e("s_cselect_b32 %s, 0, %s" % (sr(S_QV), sr(S_QV)))
    LATE = opt("LATE", 6)
    def uk_loads():
        skip = g.newlab("NOUK")
        g.e("s_cmp_eq_u32 %s, 0" % sr(S_QV))
        g.e("s_cbranch_scc1 %s" % skip)
        g.e("v_lshlrev_b32 v12, 15, %s" % v(V_G))
        g.e("v_lshl_add_u32 v12, %s, 4, v12" % v(V_L16))
        g.e("s_lshl_b32 s98, %s, 17" % sr(S_QU))
        g.e("s_lshl_b32 s99, %s, 9" % sr(S_H))
        g.e("s_add_u32 s98, s98, s99")
        for i in range(4):
            for hf in range(2):
                g.e("buffer_load_dwordx4 %s, v12, %s, s98 offen offset:%d nt" % (v(128 + 4 * (2 * i + hf), 4), sr(SRD_WO, 4), hf * 256))
            g.e("s_add_u32 s98, s98, 8192")
        g.lab(skip)
    def wo_loads():
        skip = g.newlab("NOWO")
        g.e("s_cmp_ge_u32 %s, 4" % sr(S_J))
        g.e("s_cbranch_scc1 %s" % skip)
        g.e("s_lshl_b32 %s, %s, 8" % (sr(S_T[1]), sr(S_H)))
        g.e("s_lshl_b32 %s, %s, 6" % (sr(S_T[2]), sr(S_J)))
        g.e("s_add_u32 %s, %s, %s" % (sr(S_T[1]), sr(S_T[1]), sr(S_T[2])))
        load_rows896(g, SRD_WOA, S_T[1], 8, 160)
        g.lab(skip)
    def pre_loads():
        for p in range(PRE):
            a_issue(p, S_CUR)
    uk_loads()
    sk = g.newlab("W0")
    g.e("s_cmp_eq_u32 %s, 0" % sr(S_WAVE))
    g.e("s_cbranch_scc1 %s" % sk)
    g.e("s_barrier")
    g.lab(sk)
    pre_loads()
    g.e("s_waitcnt lgkmcnt(0)")
    g.e("s_barrier")
    g.e("v_lshlrev_b32 v12, 4, %s" % v(V_L16))
    g.e("s_lshl_b32 s98, %s, 9" % sr(S_BB))
    g.e("s_add_u32 s98, s98, %d" % L_QB)
    g.e("v_add_u32 v13, s98, v12")
    g.e("ds_read_b128 v[16:19], v13")
    g.e("ds_read_b128 v[20:23], v13 offset:256")
    g.e("s_waitcnt vmcnt(%d)" % PRE)
    sk = g.newlab("TAGOK")
    g.e("s_cmp_lt_u32 %s, 1" % sr(S_WAVE))
    g.e("s_cbranch_scc1 %s" % sk)
    g.e("v_readfirstlane_b32 %s, v127" % sr(S_TAG))
    g.e("s_add_u32 %s, %s, 1" % (sr(S_TAG), sr(S_TAG)))
    g.lab(sk)
    stamp(g, 1, 15)
    skipq = g.newlab("NOQABS")
    g.e("s_cmp_eq_u32 %s, 0" % sr(S_QV))
    g.e("s_cbranch_scc1 %s" % skipq)
    g.c("---- QABS on A CUs ----")
    g.e("v_add_u32 v13, %d, v12" % (L_QB + 1024))
    for b in range(2):
        for hf in range(2):
            g.e("ds_read_b128 %s, v13 offset:%d" % (v(64 + b * 8 + hf * 4, 4), b * 512 + hf * 256))
    g.e("s_waitcnt lgkmcnt(0)")
    for i in range(4):
        ra = 128 + 8 * i
        for b in range(2):
            d = 32 + b * 4 + i
            Q = 64 + b * 8
            g.e("v_dot2_f32_bf16 %s, %s, %s, 0" % (v(d), v(ra), v(Q)))
            for j in range(1, 8):
                g.e("v_dot2_f32_bf16 %s, %s, %s, %s" % (v(d), v(ra + j), v(Q + j), v(d)))
    g.nop(2)
    dpp_allreduce16(g, "v_add_f32", list(range(32, 40)))
    for i in range(1, 4):
        g.e("s_lshl_b64 %s, %s, %d" % (sr(S_M2, 2), sr(S_MK, 2), i))
        g.e("v_cndmask_b32 v32, v32, %s, %s" % (v(32 + i), sr(S_M2, 2)))
        g.e("v_cndmask_b32 v36, v36, %s, %s" % (v(36 + i), sr(S_M2, 2)))
    g.e("v_lshl_add_u32 v14, %s, 2, %s" % (v(V_G), v(V_L16)))
    g.e("s_lshl_b32 s99, %s, 4" % sr(S_QU))
    g.e("s_and_b32 s98, s99, 255")
    g.e("v_add_u32 v14, s98, v14")
    g.e("v_and_b32 v40, 7, v14")
    g.e("v_lshlrev_b32 v40, 1, v40")
    g.e("v_bfe_u32 v41, v14, 3, 1")
    g.e("v_lshrrev_b32 v42, 6, v14")
    g.e("v_lshl_add_u32 v41, v42, 1, v41")
    g.e("v_lshl_add_u32 v40, v41, 11, v40")
    g.e("v_bfe_u32 v41, v14, 4, 2")
    g.e("v_lshl_add_u32 v14, v41, 8, v40")
    g.e("s_lshr_b32 s98, s99, 8")
    g.e("s_lshl_b32 s98, s98, 14")
    g.e("s_lshl_b32 s99, %s, 4" % sr(S_H))
    g.e("s_add_u32 s98, s98, s99")
    for b in range(2):
        x = 32 + 4 * b
        g.e("v_cvt_pk_bf16_f32 %s, %s, %s" % (v(40 + 2 * b), v(x), v(x)))
        g.e("v_lshlrev_b32 %s, 16, %s" % (v(41 + 2 * b), v(40 + 2 * b)))
        g.e("v_sub_f32 %s, %s, %s" % (v(41 + 2 * b), v(x), v(41 + 2 * b)))
        g.e("v_cvt_pk_bf16_f32 %s, %s, %s" % (v(41 + 2 * b), v(41 + 2 * b), v(41 + 2 * b)))
        g.e("s_add_u32 s99, s98, %d" % (WS_QH + b * 65536))
        g.e("s_add_u32 s100, s98, %d" % (WS_QH + b * 65536 + 1024))
        g.e("s_mov_b32 exec_lo, 0x000f000f")
        g.e("s_mov_b32 exec_hi, 0x000f000f")
        g.e("buffer_store_short %s, v14, %s, s99 offen sc1" % (v(40 + 2 * b), sr(SRD_WS, 4)))
        g.e("buffer_store_short %s, v14, %s, s100 offen sc1" % (v(41 + 2 * b), sr(SRD_WS, 4)))
        g.e("s_mov_b64 exec, -1")
    g.e("v_mov_b32 v7, 1")
    g.e("s_waitcnt vmcnt(0)")
    g.e("s_mov_b64 exec, 1")
    g.e("ds_add_rtn_u32 v6, v5, v7 offset:4")
    g.e("s_waitcnt lgkmcnt(0)")
    g.e("v_readfirstlane_b32 s98, v6")
    g.e("s_add_u32 s98, s98, 1")
    g.e("s_cmp_lg_u32 s98, %s" % sr(S_QN))
    sk2 = g.newlab("QAF")
    g.e("s_cbranch_scc1 %s" % sk2)
    g.e("s_lshl_b32 s98, %s, 2" % sr(S_CU))
    g.e("s_add_u32 s98, s98, %d" % WS_QF)
    g.e("v_mov_b32 v13, %s" % sr(S_TAG))
    g.e("buffer_store_dword v13, off, %s, s98 sc1" % sr(SRD_WS, 4))
    g.lab(sk2)
    g.e("s_mov_b64 exec, -1")
    stamp(g, 5, 15)
    g.lab(skipq)
    wo_loads()
    g.e("s_waitcnt lgkmcnt(0)")
    g.e("s_branch L_A_MAIN")

    g.lab("L_ROLE_B0")
    g.q = []
    g.c("==== ROLE B setup ====")
    g.e("s_sub_u32 s99, s2, 192")
    g.e("s_lshr_b32 %s, s99, 2" % sr(S_H))
    g.e("s_and_b32 %s, s99, 3" % sr(S_J))
    g.e("s_mov_b32 %s, s2" % sr(S_CU))
    g.e("s_lshr_b32 %s, s99, 5" % sr(S_BB))
    g.e("s_and_b32 %s, s99, 31" % sr(S_KR))
    g.e("s_and_b32 %s, %s, 1" % (sr(S_DH), sr(S_J)))
    stamp(g, 0, 15)
    g.e("s_mov_b32 %s, %s" % (sr(S_T[0]), sr(S_J)))
    g.e("s_mov_b32 %s, 1" % sr(S_T[1]))
    skip = g.newlab("NOQB"); skip2 = g.newlab("NOQB")
    g.e("s_cmp_ge_u32 %s, 1" % sr(S_WAVE))
    g.e("s_cbranch_scc1 %s" % skip)
    q_job(g, False)
    g.e("s_branch %s" % skip2)
    g.lab(skip)
    g.e("s_barrier")
    g.lab(skip2)
    g.e("s_branch L_ROLE_B")

    g.lab("L_A_MAIN")
    g.c("================ ROLE A main ================")
    for i in range(16):
        g.e("v_mov_b32 %s, 0" % v(32 + i))
    g.e("v_mov_b32 v8, 0xff800000")
    g.e("v_mov_b32 v9, 0")
    g.e("v_mov_b32 v7, 1")
    g.e("s_mov_b32 %s, %d" % (sr(S_FIRST), (PRE - D) // 2))
    g.e("s_mov_b32 %s, 1" % sr(S_VALID))
    g.e("s_mov_b32 %s, 0" % sr(S_MODE))
    g.e("s_mov_b32 %s, 0x3db8aa3b" % sr(S_SC))
    Q = 16
    assert D <= 6 and PRE <= 8
    def unit_body(s0):
        o0 = 8 - s0
        sk = g.newlab("GR"); sk2 = g.newlab("GR")
        g.e("s_mov_b64 exec, 1")
        g.e("s_cmp_lg_u32 %s, 0" % sr(S_MODE))
        g.e("s_cbranch_scc1 %s" % sk)
        g.e("ds_add_rtn_u32 v6, v5, v7")
        g.e("s_branch %s" % sk2)
        g.lab(sk)
        g.e("v_mov_b32 v6, 1")
        g.e("buffer_atomic_add v6, off, %s, %s sc0 sc1" % (sr(SRD_WS, 4), sr(S_CTR)))
        g.lab(sk2)
        g.e("s_mov_b64 exec, -1")
        def resolve():
            gl = g.newlab("RG"); fin = g.newlab("RF"); loc = g.newlab("RL")
            g.e("s_waitcnt vmcnt(2) lgkmcnt(0)")
            g.e("v_readfirstlane_b32 %s, v6" % sr(S_NU))
            g.e("s_cmp_lg_u32 %s, 0" % sr(S_MODE))
            g.e("s_cbranch_scc1 %s" % gl)
            g.e("s_add_u32 s98, %s, 8" % sr(S_NU))
            g.e("s_cmp_ge_u32 s98, %s" % sr(S_UEND))
            g.e("s_cselect_b32 %s, 1, 0" % sr(S_MODE))
            g.e("s_cmp_lt_u32 %s, %s" % (sr(S_NU), sr(S_UEND)))
            g.e("s_cbranch_scc1 %s" % fin)
            g.e("s_mov_b64 exec, 1")
            g.e("v_mov_b32 v6, 1")
            g.e("buffer_atomic_add v6, off, %s, %s sc0 sc1" % (sr(SRD_WS, 4), sr(S_CTR)))
            g.e("s_mov_b64 exec, -1")
            g.e("s_waitcnt vmcnt(0)")
            g.e("v_readfirstlane_b32 %s, v6" % sr(S_NU))
            g.lab(gl)
            g.e("s_min_u32 %s, %s, 4096" % (sr(S_NU), sr(S_NU)))
            g.e("s_add_u32 %s, %s, %d" % (sr(S_NU), sr(S_NU), 512 - SH))
            g.e("s_cmp_lt_u32 %s, 512" % sr(S_NU))
            g.e("s_cselect_b32 %s, 1, 0" % sr(S_VALID))
            g.lab(fin)
            g.e("s_lshl_b32 %s, %s, 12" % (sr(S_NXT), sr(S_NU)))
            g.e("s_add_u32 %s, %s, %s" % (sr(S_NXT), sr(S_NXT), sr(S_SLAB)))
        def step_wait(c):
            g.e("s_waitcnt vmcnt(%d)" % (D - 2))
            if 2 * c + D - 1 >= 8:
                sk = g.newlab("W")
                g.e("s_cmp_lg_u32 %s, 0" % sr(S_VALID))
                g.e("s_cbranch_scc1 %s" % sk)
                g.e("s_waitcnt vmcnt(%d)" % min(D - 2, 6 - 2 * c))
                g.lab(sk)
        def step_issue(c):
            p = 2 * c + D
            sk = g.newlab("I"); sk2 = g.newlab("I")
            g.e("s_cmp_eq_u32 %s, 0" % sr(S_FIRST))
            g.e("s_cbranch_scc1 %s" % sk2)
            g.e("s_sub_u32 %s, %s, 1" % (sr(S_FIRST), sr(S_FIRST)))
            g.e("s_branch %s" % sk)
            g.lab(sk2)
            if p < 8:
                a_issue(s0 + p, S_CUR); a_issue(s0 + p + 1, S_CUR)
            else:
                g.e("s_cmp_eq_u32 %s, 0" % sr(S_VALID))
                g.e("s_cbranch_scc1 %s" % sk)
                a_issue(o0 + p - 8, S_NXT); a_issue(o0 + p - 7, S_NXT)
            g.lab(sk)
        for c in range(2):
            step_wait(c)
            ra, rb_ = RING + 4 * s0 + 8 * c, RING + 4 * s0 + 8 * c + 4
            g.e("v_dot2_f32_bf16 %s, %s, %s, 0" % (v(108 + c), v(ra), v(Q)))
            g.e("v_dot2_f32_bf16 %s, %s, %s, 0" % (v(112 + c), v(rb_), v(Q + 4)))
            for j in range(1, 4):
                g.e("v_dot2_f32_bf16 %s, %s, %s, %s" % (v(108 + c), v(ra + j), v(Q + j), v(108 + c)))
                g.e("v_dot2_f32_bf16 %s, %s, %s, %s" % (v(112 + c), v(rb_ + j), v(Q + 4 + j), v(112 + c)))
            if c == 1:
                resolve()
            step_issue(c)
        g.nop(2)
        g.e("v_add_f32 v108, v108, v112")
        g.e("v_add_f32 v109, v109, v113")
        dpp_allreduce16(g, "v_add_f32", [108, 109])
        g.e("v_cvt_pk_bf16_f32 v112, v108, v109")
        g.e("v_lshlrev_b32 v108, 16, v112")
        g.e("v_and_b32 v109, 0xffff0000, v112")
        g.e("v_mul_f32 v108, %s, v108" % sr(S_SC))
        g.e("v_mul_f32 v109, %s, v109" % sr(S_SC))
        g.e("v_max3_f32 v10, v108, v109, v8")
        g.e("v_cmp_gt_f32 vcc, v10, v8")
        g.e("v_sub_f32 v108, v108, v10")
        g.e("v_sub_f32 v109, v109, v10")
        g.e("v_exp_f32 v108, v108")
        g.e("v_exp_f32 v109, v109")
        sk = g.newlab("NORS")
        g.e("s_cbranch_vccz %s" % sk)
        g.e("v_sub_f32 v11, v8, v10")
        g.e("v_exp_f32 v11, v11")
        g.e("v_mov_b32 v8, v10")
        g.e("v_mul_f32 v9, v9, v11")
        for i in range(16):
            g.e("v_mul_f32 %s, %s, v11" % (v(32 + i), v(32 + i)))
        g.lab(sk)
        g.e("v_cvt_pk_bf16_f32 v96, v108, v109")
        g.e("v_add_f32 v9, v9, v108")
        g.e("v_add_f32 v9, v9, v109")
        for c in range(2, 4):
            step_wait(c)
            r0, r1 = RING + 4 * s0 + 8 * c, RING + 4 * s0 + 8 * c + 4
            hf = c - 2
            for j in range(4):
                g.e("v_perm_b32 %s, %s, %s, %s" % (v(100 + 2 * j), v(r1 + j), v(r0 + j), sr(S_PLO)))
                g.e("v_perm_b32 %s, %s, %s, %s" % (v(101 + 2 * j), v(r1 + j), v(r0 + j), sr(S_PHI)))
            step_issue(c)
            for e_ in range(8):
                g.e("v_dot2_f32_bf16 %s, %s, v96, %s" % (v(32 + 8 * hf + e_), v(100 + e_), v(32 + 8 * hf + e_)))
        g.e("s_cmp_eq_u32 %s, 0" % sr(S_VALID))
        g.e("s_cbranch_scc1 A_DONE")
        g.e("s_mov_b32 %s, %s" % (sr(S_CUR), sr(S_NXT)))
    g.lab("A_LOOP")
    unit_body(0)
    unit_body(8)
    g.e("s_branch A_LOOP")
    g.lab("A_DONE")
    g.e("s_waitcnt lgkmcnt(0)")
    stamp(g, 2, 15)
    g.e("v_mov_b32 v10, v8")
    cross_rows(g, "v_max_f32", 10, 12)
    g.e("v_sub_f32 v11, v8, v10")
    g.e("v_exp_f32 v11, v11")
    g.nop(0)
    g.e("v_mul_f32 v9, v9, v11")
    for i in range(16):
        g.e("v_mul_f32 %s, %s, v11" % (v(32 + i), v(32 + i)))
    g.e("v_mov_b32 v11, v9")
    cross_rows(g, "v_add_f32", 11, 12)
    transpose_reduce16(g, 32)
    g.e("v_lshrrev_b32 v12, 1, %s" % v(V_G))
    g.e("v_lshlrev_b32 v12, 9, v12")
    g.e("v_and_b32 v13, 1, %s" % v(V_G))
    g.e("v_lshl_add_u32 v12, v13, 4, v12")
    g.e("v_lshl_add_u32 v12, %s, 5, v12" % v(V_L16))
    g.e("s_lshl_b32 s98, %s, 10" % sr(S_WAVE))
    g.e("v_add_u32 v12, s98, v12")
    g.e("ds_write_b128 v12, %s offset:%d" % (v(32, 4), L_AO))
    g.e("s_lshl_b32 s98, %s, 3" % sr(S_WAVE))
    g.e("v_mov_b32 v12, s98")
    g.e("s_mov_b64 exec, 1")
    g.e("ds_write_b64 v12, v[10:11] offset:%d" % L_AM)
    g.e("s_mov_b64 exec, -1")
    g.e("s_waitcnt lgkmcnt(0)")
    g.e("s_barrier")
    skip = g.newlab("ACOMB")
    g.e("s_cmp_ge_u32 %s, 4" % sr(S_WAVE))
    g.e("s_cbranch_scc1 %s" % skip)
    g.e("v_lshlrev_b32 v12, 2, v0")
    g.e("v_mov_b32 v13, 0")
    for w in range(8):
        g.e("ds_read_b32 %s, v12 offset:%d" % (v(32 + w), L_AO + w * 1024))
    for x in range(4):
        g.e("ds_read_b128 %s, v13 offset:%d" % (v(48 + 4 * x, 4), L_AM + 16 * x))
    g.e("s_waitcnt lgkmcnt(0)")
    g.e("v_max3_f32 v10, v48, v50, v52")
    g.e("v_max3_f32 v10, v10, v54, v56")
    g.e("v_max3_f32 v10, v10, v58, v60")
    g.e("v_max_f32 v10, v10, v62")
    for w in range(8):
        g.e("v_sub_f32 %s, %s, v10" % (v(48 + 2 * w), v(48 + 2 * w)))
    for w in range(8):
        g.e("v_exp_f32 %s, %s" % (v(48 + 2 * w), v(48 + 2 * w)))
    g.nop(0)
    g.e("v_mul_f32 v14, v32, v48")
    g.e("v_mul_f32 v11, v49, v48")
    for w in range(1, 8):
        g.e("v_fmac_f32 v14, %s, %s" % (v(32 + w), v(48 + 2 * w)))
        g.e("v_fmac_f32 v11, %s, %s" % (v(49 + 2 * w), v(48 + 2 * w)))
    g.e("s_lshl_b32 s98, %s, 12" % sr(S_CU))
    g.e("s_add_u32 s98, s98, %d" % WS_AP)
    g.e("v_mov_b32 v15, %s" % sr(S_TAG))
    g.e("v_lshlrev_b32 v12, 3, v0")
    g.e("buffer_store_dwordx2 v[14:15], v12, %s, s98 offen sc1" % sr(SRD_WS, 4))
    g.e("s_cmp_lg_u32 %s, 0" % sr(S_WAVE))
    g.e("s_cbranch_scc1 %s" % skip)
    g.e("v_mov_b32 v32, v10")
    g.e("v_mov_b32 v33, %s" % sr(S_TAG))
    g.e("v_mov_b32 v34, v11")
    g.e("v_mov_b32 v35, %s" % sr(S_TAG))
    g.e("s_mov_b64 exec, 1")
    g.e("buffer_store_dwordx4 v[32:35], off, %s, s98 offset:2048 sc1" % sr(SRD_WS, 4))
    g.e("s_mov_b64 exec, -1")
    g.lab(skip)
    flag_store(g, WS_AF, S_CU, 0)
    stamp(g, 3, 15)
    g.e("s_cmp_ge_u32 %s, 8" % sr(S_J))
    g.e("s_cbranch_scc1 L_END")
    g.e("s_cmp_ge_u32 %s, 4" % sr(S_J))
    g.e("s_cbranch_scc1 L_FINAL")
    g.c("---- A combine (CUs j<4): rows h*256+64j ----")
    preperm(g, 160, 8)
    g.e("s_mul_i32 s99, %s, 48" % sr(S_H))
    g.e("s_add_u32 s99, s99, %d" % WS_AF)
    poll_flags(g, "s99", 12, sleep=1)
    stamp(g, 4, 15)
    skip = g.newlab("ACB")
    g.e("s_cmp_ge_u32 %s, 2" % sr(S_WAVE))
    g.e("s_cbranch_scc1 %s" % skip)
    lp = g.newlab("ACL"); ok = g.newlab("ACOK")
    g.e("s_mov_b32 %s, 0" % sr(S_SPIN))
    g.e("s_lshl_b32 s99, %s, 9" % sr(S_J))
    g.e("v_lshlrev_b32 v12, 3, %s" % v(V_LANE))
    g.e("v_add_u32 v12, s99, v12")
    g.lab(lp)
    g.e("s_mul_i32 s98, %s, 12" % sr(S_H))
    g.e("s_mul_i32 s99, %s, 6" % sr(S_WAVE))
    g.e("s_add_u32 s98, s98, s99")
    g.e("s_lshl_b32 s98, s98, 12")
    g.e("s_add_u32 s98, s98, %d" % WS_AP)
    for s_ in range(6):
        g.e("buffer_load_dwordx2 %s, v12, %s, s98 offen sc1" % (v(32 + 2 * s_, 2), sr(SRD_WS, 4)))
        g.e("buffer_load_dwordx4 %s, off, %s, s98 offset:2048 sc1" % (v(80 + 4 * s_, 4), sr(SRD_WS, 4)))
        g.e("s_add_u32 s98, s98, 4096")
    g.e("s_waitcnt vmcnt(0)")
    g.e("v_xor_b32 v13, %s, v33" % sr(S_TAG))
    for r_ in list(range(35, 44, 2)) + list(range(81, 104, 2)):
        g.e("v_xor_b32 v14, %s, %s" % (sr(S_TAG), v(r_)))
        g.e("v_or_b32 v13, v13, v14")
    g.e("v_cmp_eq_u32 vcc, 0, v13")
    g.e("s_cmp_eq_u64 vcc, exec")
    g.e("s_cbranch_scc1 %s" % ok)
    g.e("s_add_u32 %s, %s, 1" % (sr(S_SPIN), sr(S_SPIN)))
    g.e("s_cmp_gt_u32 %s, %d" % (sr(S_SPIN), SPIN_MAX))
    g.e("s_cbranch_scc0 %s" % lp)
    g.lab(ok)
    g.e("v_max3_f32 v10, v80, v84, v88")
    g.e("v_max3_f32 v10, v10, v92, v96")
    g.e("v_max_f32 v10, v10, v100")
    for s_ in range(6):
        g.e("v_sub_f32 %s, %s, v10" % (v(80 + 4 * s_), v(80 + 4 * s_)))
    for s_ in range(6):
        g.e("v_exp_f32 %s, %s" % (v(80 + 4 * s_), v(80 + 4 * s_)))
    g.nop(0)
    g.e("v_mul_f32 v14, v32, v80")
    g.e("v_mul_f32 v11, v82, v80")
    for s_ in range(1, 6):
        g.e("v_fmac_f32 v14, %s, %s" % (v(32 + 2 * s_), v(80 + 4 * s_)))
        g.e("v_fmac_f32 v11, %s, %s" % (v(82 + 4 * s_), v(80 + 4 * s_)))
    g.e("v_rcp_f32 v11, v11")
    g.nop(0)
    g.e("v_mul_f32 v14, v14, v11")
    g.e("v_cvt_pk_bf16_f32 v14, v14, v14")
    g.e("v_lshlrev_b32 v12, 1, v0")
    g.e("ds_write_b16 v12, v14 offset:%d" % L_OA)
    g.lab(skip)
    g.e("s_waitcnt lgkmcnt(0)")
    g.e("s_barrier")
    out_gemv(g, 160, 8, L_OA, 128, 48, 32)
    g.e("s_lshl_b32 %s, %s, 2" % (sr(S_YI), sr(S_H)))
    g.e("s_add_u32 %s, %s, %s" % (sr(S_YI), sr(S_YI), sr(S_J)))
    g.e("s_branch L_YPUB")

    g.lab("L_ROLE_B")
    g.c("================ ROLE B main ================")
    if "--noB" in sys.argv:
        g.e("s_branch L_END")
    for i in range(4):
        g.e("s_lshl_b32 s98, %s, 2" % sr(S_WAVE))
        g.e("s_add_u32 s98, s98, %d" % i)
        g.e("s_and_b32 s98, s98, 15")
        g.e("s_and_b32 s99, s98, 7")
        g.e("s_lshl_b32 s99, s99, 1")
        g.e("s_lshr_b32 s98, s98, 3")
        g.e("s_or_b32 s98, s98, s99")
        g.e("v_xor_b32 %s, s98, %s" % (v(8 + i), v(V_LANE)))
        g.e("v_lshlrev_b32 %s, 4, %s" % (v(8 + i), v(8 + i)))
    g.e("s_lshl_b32 s98, %s, 12" % sr(S_BB))
    g.e("s_lshl_b32 s99, %s, 7" % sr(S_KR))
    g.e("s_add_u32 s98, s98, s99")
    g.e("s_lshl_b32 s99, %s, 2" % sr(S_WAVE))
    g.e("s_add_u32 s98, s98, s99")
    g.e("s_lshl_b32 %s, s98, 11" % sr(S_CKV))
    g.e("s_lshl_b32 %s, %s, 13" % (sr(S_LW), sr(S_WAVE)))
    def dma_tile(t):
        buf = L_TILE0 if t % 2 == 0 else L_TILE1
        for i in range(4):
            for hf in range(2):
                g.e("s_add_u32 s98, %s, %d" % (sr(S_LW), buf + i * 2048 + hf * 1024))
                g.e("s_mov_b32 m0, s98")
                g.e("s_add_u32 s99, %s, %d" % (sr(S_CKV), t * 65536 + i * 2048 + hf * 1024))
                g.vm("dma%d" % t, "buffer_load_dwordx4 %s, %s, s99 offen nt lds" % (v(8 + i), sr(SRD_K, 4)))
    dma_tile(0)
    dma_tile(1)
    for t in (2, 3):
        for i in range(4):
            for hf in range(2):
                g.e("s_add_u32 s99, %s, %d" % (sr(S_CKV), t * 65536 + i * 2048 + hf * 1024))
                g.vm("rt%d" % t, "buffer_load_dwordx4 %s, %s, %s, s99 offen nt" % (v(192 + 32 * (t - 2) + 4 * (2 * i + hf), 4), v(8 + i), sr(SRD_K, 4)))
    g.e("v_lshlrev_b32 v31, 4, %s" % v(V_LANE))
    g.e("v_add_u32 v31, %s, v31" % sr(S_LW))
    UV = 192
    uvn = [0]
    def uv_setup():
        g.e("v_lshlrev_b32 v30, 17, %s" % v(V_G))
        g.e("v_lshl_add_u32 v30, %s, 4, v30" % v(V_L16))
        g.e("s_lshr_b32 s98, %s, 1" % sr(S_J))
        g.e("s_lshl_b32 s98, s98, 9")
        g.e("s_lshl_b32 s99, %s, 6" % sr(S_WAVE))
        g.e("s_add_u32 s98, s98, s99")
        g.e("s_lshl_b32 s98, s98, 13")
        g.e("s_lshl_b32 s99, %s, 9" % sr(S_H))
        g.e("s_add_u32 s98, s98, s99")
        g.e("s_lshl_b32 s99, %s, 8" % sr(S_DH))
        g.e("s_add_u32 %s, s98, s99" % sr(S_QU))
    def uv_some(k):
        for _ in range(k):
            n = uvn[0]
            if n >= 16:
                return
            g.e("buffer_load_dwordx4 %s, v30, %s, %s offen nt" % (v(UV + 4 * n, 4), sr(SRD_V, 4), sr(S_QU)))
            g.e("s_add_u32 %s, %s, 8192" % (sr(S_QU), sr(S_QU)))
            uvn[0] += 1
    uv_setup()
    g.e("v_and_b32 v12, 7, %s" % v(V_L16))
    g.e("v_lshlrev_b32 v12, 1, v12")
    g.e("v_lshrrev_b32 v13, 3, %s" % v(V_L16))
    g.e("v_or_b32 v12, v12, v13")
    g.e("v_lshlrev_b32 v13, 1, %s" % v(V_G))
    g.e("v_xor_b32 v12, v12, v13")
    g.e("s_lshr_b32 s98, %s, 2" % sr(S_WAVE))
    g.e("s_lshl_b32 s98, s98, 15")
    g.e("s_and_b32 s99, %s, 3" % sr(S_WAVE))
    g.e("s_lshl_b32 s99, s99, 9")
    g.e("s_add_u32 s98, s98, s99")
    g.e("v_lshlrev_b32 v13, 11, %s" % v(V_L16))
    g.e("v_add_u32 v13, s98, v13")
    for x, X in enumerate((0, 1, 8, 9)):
        g.e("v_xor_b32 v14, %d, v12" % X)
        g.e("v_lshl_add_u32 %s, v14, 4, v13" % v(4 + x))
    g.e("v_lshrrev_b32 v12, 2, %s" % v(V_L16))
    g.e("v_lshl_add_u32 v12, %s, 2, v12" % v(V_G))
    g.e("v_and_b32 v13, 7, v12")
    g.e("v_lshlrev_b32 v13, 1, v13")
    g.e("v_lshrrev_b32 v14, 3, v12")
    g.e("v_or_b32 v13, v13, v14")
    g.e("v_bfe_u32 v14, %s, 1, 1" % v(V_L16))
    g.e("v_xor_b32 v13, v13, v14")
    g.e("v_lshlrev_b32 v12, 11, v12")
    g.e("v_and_b32 v14, 1, %s" % v(V_L16))
    g.e("v_lshl_add_u32 v12, v14, 3, v12")
    g.e("s_lshl_b32 s98, %s, 8" % sr(S_WAVE))
    g.e("v_add_u32 v12, s98, v12")
    for ct in range(8):
        g.e("v_xor_b32 v14, %d, v13" % (2 * ct))
        g.e("v_lshl_add_u32 %s, v14, 4, v12" % v(16 + ct))
    g.e("v_lshlrev_b32 v29, 4, %s" % v(V_LANE))
    g.e("v_add_u32 v29, %d, v29" % L_SX)
    g.e("s_lshl_b32 s98, %s, 10" % sr(S_WAVE))
    g.e("v_add_u32 v28, s98, v29")
    ACC = 32
    for i in range(32):
        g.e("v_mov_b32 %s, 0" % v(ACC + i))
    g.e("v_mov_b32 v124, 0xff800000")
    g.e("v_mov_b32 v125, 0")
    g.e("s_mov_b32 %s, 0x3db8aa3b" % sr(S_SC))
    g.e("s_waitcnt vmcnt(32)")
    g.e("v_readfirstlane_b32 %s, v127" % sr(S_TAG))
    g.e("s_add_u32 %s, %s, 1" % (sr(S_TAG), sr(S_TAG)))
    stamp(g, 2, 15)
    if "--ckvtest" in sys.argv:
        g.e("s_waitcnt vmcnt(16)")
        stamp(g, 3, 15)
        g.e("s_waitcnt vmcnt(0)")
        stamp(g, 4, 15)
        g.e("s_branch L_END")
    poll_flags(g, WS_QF, 192, pw=4)
    stamp(g, 3, 15)

    QF = 128
    g.c("---- ATT B ----")
    g.e("v_lshlrev_b32 v12, 4, %s" % v(V_LANE))
    g.e("s_and_b32 s98, %s, 3" % sr(S_WAVE))
    g.e("s_lshl_b32 s98, s98, 14")
    g.e("s_lshl_b32 s99, %s, 16" % sr(S_BB))
    g.e("s_add_u32 s98, s98, s99")
    g.e("s_add_u32 s98, s98, %d" % WS_QH)
    for ks in range(8):
        g.vm("qf", "buffer_load_dwordx4 %s, v12, %s, s98 offen offset:%d sc1" % (v(QF + 8 * ks, 4), sr(SRD_WS, 4), (ks & 1) * 2048))
        g.vm("qf", "buffer_load_dwordx4 %s, v12, %s, s98 offen offset:%d sc1" % (v(QF + 8 * ks + 4, 4), sr(SRD_WS, 4), (ks & 1) * 2048 + 1024))
        if ks & 1:
            g.e("s_add_u32 s98, s98, 4096")
    g.wait("qf")
    stamp(g, 16, 15)
    for t in range(4):
        g.c("tile %d" % t)
        if t: stamp(g, 16 + 3 * t, 15)
        g.e("s_waitcnt lgkmcnt(0)")
        g.e("s_barrier")
        if t >= 1 and t + 1 < 4:
            if t == 2:
                g.e("v_add_u32 v31, 0x10000, v31")
            for x in range(8):
                g.e("ds_write_b128 v31, %s offset:%d" % (v(192 + 32 * (t - 1) + 4 * x, 4), x * 1024))
        if t >= 1:
            op = "v_add_u32" if t % 2 == 1 else "v_subrev_u32"
            for r_ in list(range(4, 8)) + list(range(16, 24)):
                g.e("%s %s, 0x10000, %s" % (op, v(r_), v(r_)))
        if t >= 2: uv_some(2)
        for i in range(8):
            g.e("v_mov_b32 %s, 0" % v(80 + i))
        for ks in range(8):
            g.e("ds_read_b128 %s, %s offset:%d" % (v(88 + 4 * ks, 4), v(4 + (ks & 3)), (ks >> 2) * 256))
        for ks in range(8):
            g.e("s_waitcnt lgkmcnt(%d)" % (7 - ks))
            g.e("v_mfma_f32_16x16x32_bf16 %s, %s, %s, %s" % (v(80, 4), v(88 + 4 * ks, 4), v(QF + 8 * ks, 4), v(80, 4)))
            g.e("v_mfma_f32_16x16x32_bf16 %s, %s, %s, %s" % (v(84, 4), v(88 + 4 * ks, 4), v(QF + 8 * ks + 4, 4), v(84, 4)))
        g.nop(7)
        g.nop(1)
        for i in range(4):
            g.e("v_add_f32 %s, %s, %s" % (v(80 + i), v(80 + i), v(84 + i)))
        g.e("ds_write_b128 v28, %s" % v(80, 4))
        if t >= 2: uv_some(2)
        g.e("s_waitcnt lgkmcnt(0)")
        stamp(g, 17 + 3 * t, 15)
        g.e("s_barrier")
        stamp(g, 18 + 3 * t, 15)
        for x in range(8):
            g.e("ds_read_b128 %s, v29 offset:%d" % (v(88 + 4 * x, 4), x * 1024))
        g.e("s_waitcnt lgkmcnt(0)")
        for st in range(2):
            for i in range(4):
                a = 88 + 16 * st + i
                g.e("v_add_f32 %s, %s, %s" % (v(a), v(a), v(a + 4)))
                g.e("v_add_f32 %s, %s, %s" % (v(a + 8), v(a + 8), v(a + 12)))
                g.e("v_add_f32 %s, %s, %s" % (v(a), v(a), v(a + 8)))
                g.e("v_mul_f32 %s, %s, %s" % (v(80 + 4 * st + i), sr(S_SC), v(a)))
        if t >= 2: uv_some(2)
        g.e("v_max3_f32 v12, v80, v81, v82")
        g.e("v_max3_f32 v12, v12, v83, v84")
        g.e("v_max3_f32 v12, v12, v85, v86")
        g.e("v_max3_f32 v12, v12, v87, v124")
        cross_rows(g, "v_max_f32", 12, 13)
        g.e("v_sub_f32 v126, v124, v12")
        g.e("v_exp_f32 v126, v126")
        g.e("v_mov_b32 v124, v12")
        for i in range(8):
            g.e("v_sub_f32 %s, %s, v12" % (v(80 + i), v(80 + i)))
        for i in range(8):
            g.e("v_exp_f32 %s, %s" % (v(80 + i), v(80 + i)))
        g.e("v_mul_f32 v125, v125, v126")
        for i in range(8):
            g.e("v_add_f32 v125, v125, %s" % v(80 + i))
        for k in range(4):
            g.e("v_cvt_pk_bf16_f32 %s, %s, %s" % (v(120 + k), v(80 + 2 * k), v(81 + 2 * k)))
        for ct in range(8):
            g.e("ds_read_b64_tr_b16 %s, %s" % (v(88 + 4 * ct, 2), v(16 + ct)))
            g.e("ds_read_b64_tr_b16 %s, %s offset:32768" % (v(90 + 4 * ct, 2), v(16 + ct)))
        if t >= 2: uv_some(2)
        for i in range(32):
            g.e("v_mul_f32 %s, %s, v126" % (v(ACC + i), v(ACC + i)))
        for ct in range(8):
            g.e("s_waitcnt lgkmcnt(%d)" % (14 - 2 * ct))
            g.e("v_mfma_f32_16x16x32_bf16 %s, %s, %s, %s" % (v(ACC + 4 * ct, 4), v(88 + 4 * ct, 4), v(120, 4), v(ACC + 4 * ct, 4)))
    g.nop(7)
    g.nop(1)
    stamp(g, 4, 15)
    g.e("s_mul_i32 s98, %s, 4352" % sr(S_WAVE))
    g.e("s_movk_i32 s99, 272")
    g.e("v_mul_lo_u32 v12, %s, s99" % v(V_L16))
    g.e("v_lshl_add_u32 v12, %s, 3, v12" % v(V_G))
    g.e("v_add_u32 v12, s98, v12")
    for ct in range(8):
        g.e("v_cvt_pk_bf16_f32 %s, %s, %s" % (v(88 + 2 * ct), v(ACC + 4 * ct), v(ACC + 4 * ct + 1)))
        g.e("v_cvt_pk_bf16_f32 %s, %s, %s" % (v(89 + 2 * ct), v(ACC + 4 * ct + 2), v(ACC + 4 * ct + 3)))
        g.e("ds_write_b64 v12, %s offset:%d" % (v(88 + 2 * ct, 2), ct * 32))
    g.e("v_mul_lo_u32 v12, %s, s99" % v(V_G))
    g.e("v_lshl_add_u32 v12, %s, 4, v12" % v(V_L16))
    g.e("v_add_u32 v12, s98, v12")
    g.e("s_waitcnt lgkmcnt(0)")
    for x in range(4):
        g.e("ds_read_b128 %s, v12 offset:%d" % (v(88 + 4 * x, 4), x * 4 * 272))
    g.e("v_lshlrev_b32 v12, 11, %s" % v(V_G))
    g.e("v_lshl_add_u32 v12, %s, 4, v12" % v(V_L16))
    g.e("s_sub_u32 s98, %s, 192" % sr(S_CU))
    g.e("s_lshl_b32 s98, s98, 15")
    g.e("s_lshl_b32 s99, %s, 8" % sr(S_WAVE))
    g.e("s_add_u32 s98, s98, s99")
    g.e("s_add_u32 s98, s98, %d" % WS_PC)
    for x in range(4):
        g.e("s_waitcnt lgkmcnt(%d)" % (3 - x))
        g.e("buffer_store_dwordx4 %s, v12, %s, s98 offen sc1" % (v(88 + 4 * x, 4), sr(SRD_WS, 4)))
        g.e("s_add_u32 s98, s98, 8192")
    cross_rows(g, "v_add_f32", 125, 13)
    skip = g.newlab("PST")
    g.e("s_cmp_lg_u32 %s, 0" % sr(S_WAVE))
    g.e("s_cbranch_scc1 %s" % skip)
    g.e("v_lshlrev_b32 v12, 9, %s" % v(V_L16))
    g.e("s_sub_u32 s98, %s, 192" % sr(S_CU))
    g.e("s_lshl_b32 s98, s98, 3")
    g.e("s_add_u32 s98, s98, %d" % WS_PS)
    g.e("s_mov_b64 exec, 0xffff")
    g.e("buffer_store_dwordx2 %s, v12, %s, s98 offen sc1" % (v(124, 2), sr(SRD_WS, 4)))
    g.e("s_mov_b64 exec, -1")
    g.lab(skip)
    g.waitall()
    g.e("s_barrier")
    flag_store(g, WS_PF, S_CU, 192)
    stamp(g, 5, 15)
    def wo_b():
        g.e("s_lshl_b32 %s, %s, 8" % (sr(S_T[1]), sr(S_H)))
        g.e("s_lshl_b32 %s, %s, 7" % (sr(S_T[2]), sr(S_DH)))
        g.e("s_add_u32 %s, %s, %s" % (sr(S_T[1]), sr(S_T[1]), sr(S_T[2])))
        load_rows896(g, SRD_WO, S_T[1], 16, 128)
    skip = g.newlab("WOB")
    g.e("s_cmp_eq_u32 %s, 0" % sr(S_WAVE))
    g.e("s_cbranch_scc1 %s" % skip)
    wo_b()
    g.lab(skip)
    g.c("---- CTX ----")
    poll_flags(g, WS_PF, 64)
    stamp(g, 6, 15)
    g.q = []
    g.e("v_lshlrev_b32 v12, 3, %s" % v(V_LANE))
    g.e("s_lshl_b32 s98, %s, 9" % sr(S_H))
    g.e("s_add_u32 s98, s98, %d" % WS_PS)
    g.e("buffer_load_dwordx2 v[14:15], v12, %s, s98 offen sc1" % sr(SRD_WS, 4))
    g.e("v_lshlrev_b32 v13, 4, %s" % v(V_LANE))
    g.e("s_lshl_b32 s98, %s, 18" % sr(S_WAVE))
    g.e("s_lshl_b32 s99, %s, 11" % sr(S_H))
    g.e("s_add_u32 s98, s98, s99")
    g.e("s_lshr_b32 s99, %s, 1" % sr(S_J))
    g.e("s_lshl_b32 s99, s99, 10")
    g.e("s_add_u32 s98, s98, s99")
    g.e("s_add_u32 s98, s98, %d" % WS_PC)
    for i in range(8):
        g.e("buffer_load_dwordx4 %s, v13, %s, s98 offen sc1" % (v(64 + 4 * i, 4), sr(SRD_WS, 4)))
        g.e("s_add_u32 s98, s98, 32768")
    g.e("s_waitcnt vmcnt(8)")
    g.e("v_mov_b32 v12, v14")
    dpp_allreduce16(g, "v_max_f32", [12])
    cross_rows(g, "v_max_f32", 12, 13, both=False)
    g.e("v_sub_f32 v12, v14, v12")
    g.e("v_exp_f32 v12, v12")
    g.nop(0)
    g.e("v_mul_f32 v13, v12, v15")
    dpp_allreduce16(g, "v_add_f32", [13])
    cross_rows(g, "v_add_f32", 13, 14, both=False)
    g.e("v_rcp_f32 v13, v13")
    g.nop(0)
    g.e("v_mul_f32 v12, v12, v13")
    g.e("s_lshl_b32 s98, %s, 3" % sr(S_WAVE))
    g.nop(1)
    for i in range(8):
        g.e("v_readlane_b32 %s, v12, s98" % sr(S_O + i))
        g.e("s_add_u32 s98, s98, 1")
    for j in range(8):
        g.e("v_mov_b32 %s, 0" % v(32 + j))
    for i in range(8):
        g.e("s_waitcnt vmcnt(%d)" % (7 - i))
        for j in range(4):
            g.e("v_lshlrev_b32 v12, 16, %s" % v(64 + 4 * i + j))
            g.e("v_and_b32 v13, 0xffff0000, %s" % v(64 + 4 * i + j))
            g.e("v_fmac_f32 %s, %s, v12" % (v(32 + 2 * j), sr(S_O + i)))
            g.e("v_fmac_f32 %s, %s, v13" % (v(33 + 2 * j), sr(S_O + i)))
    skip = g.newlab("WOB0")
    g.e("s_cmp_lg_u32 %s, 0" % sr(S_WAVE))
    g.e("s_cbranch_scc1 %s" % skip)
    wo_b()
    g.lab(skip)
    g.e("s_and_b32 s98, %s, 3" % sr(S_WAVE))
    g.e("s_lshl_b32 s98, s98, 12")
    g.e("s_lshr_b32 s99, %s, 2" % sr(S_WAVE))
    g.e("s_lshl_b32 s99, s99, 11")
    g.e("s_add_u32 s98, s98, s99")
    g.e("s_add_u32 s98, s98, %d" % L_CX)
    g.e("v_lshlrev_b32 v13, 5, %s" % v(V_LANE))
    g.e("v_add_u32 v13, s98, v13")
    g.e("ds_write_b128 v13, %s" % v(32, 4))
    g.e("ds_write_b128 v13, %s offset:16" % v(36, 4))
    g.e("s_waitcnt lgkmcnt(0)")
    g.e("s_barrier")
    g.e("v_lshlrev_b32 v12, 3, v0")
    g.e("v_add_u32 v12, %d, v12" % L_CX)
    for x in range(4):
        g.e("ds_read_b64 %s, v12 offset:%d" % (v(32 + 2 * x, 2), x * 4096))
    g.e("s_waitcnt lgkmcnt(0)")
    g.e("v_add_f32 v32, v32, v34")
    g.e("v_add_f32 v33, v33, v35")
    g.e("v_add_f32 v36, v36, v38")
    g.e("v_add_f32 v37, v37, v39")
    g.e("v_add_f32 v32, v32, v36")
    g.e("v_add_f32 v33, v33, v37")
    g.e("v_cvt_pk_bf16_f32 v32, v32, v33")
    g.e("v_lshlrev_b32 v12, 2, v0")
    g.e("v_add_u32 v12, %d, v12" % L_CB)
    g.e("ds_write_b32 v12, v32")
    g.e("s_waitcnt lgkmcnt(0)")
    g.e("s_barrier")
    g.e("v_lshlrev_b32 v12, 5, %s" % v(V_G))
    g.e("s_lshl_b32 s98, %s, 7" % sr(S_WAVE))
    g.e("s_add_u32 s98, s98, %d" % L_CB)
    g.e("v_add_u32 v12, s98, v12")
    for b in range(2):
        g.e("ds_read_b128 %s, v12 offset:%d" % (v(64 + 8 * b, 4), b * 1024))
        g.e("ds_read_b128 %s, v12 offset:%d" % (v(68 + 8 * b, 4), b * 1024 + 16))
    for i in range(16):
        g.e("v_mov_b32 %s, 0" % v(32 + i))
    g.e("s_waitcnt lgkmcnt(0)")
    for k in range(8):
        r0, r1 = UV + 8 * k, UV + 8 * k + 4
        for j in range(4):
            g.e("v_perm_b32 %s, %s, %s, %s" % (v(100 + 2 * j), v(r1 + j), v(r0 + j), sr(S_PLO)))
            g.e("v_perm_b32 %s, %s, %s, %s" % (v(101 + 2 * j), v(r1 + j), v(r0 + j), sr(S_PHI)))
        for b in range(2):
            for e_ in range(8):
                g.e("v_dot2_f32_bf16 %s, %s, %s, %s" % (v(32 + 8 * b + e_), v(100 + e_), v(64 + 8 * b + k), v(32 + 8 * b + e_)))
    g.nop(3)
    transpose_reduce16(g, 32)
    g.e("v_lshrrev_b32 v12, 1, %s" % v(V_G))
    g.e("v_lshlrev_b32 v12, 9, v12")
    g.e("v_and_b32 v13, 1, %s" % v(V_G))
    g.e("v_lshl_add_u32 v12, v13, 4, v12")
    g.e("v_lshl_add_u32 v12, %s, 5, v12" % v(V_L16))
    g.e("s_lshl_b32 s98, %s, 10" % sr(S_WAVE))
    g.e("v_add_u32 v12, s98, v12")
    g.e("ds_write_b128 v12, %s offset:%d" % (v(32, 4), L_OX))
    g.e("s_waitcnt lgkmcnt(0)")
    g.e("s_barrier")
    skip = g.newlab("OBS")
    g.e("s_cmp_ge_u32 %s, 4" % sr(S_WAVE))
    g.e("s_cbranch_scc1 %s" % skip)
    g.e("v_lshlrev_b32 v12, 2, v0")
    for w in range(8):
        g.e("ds_read_b32 %s, v12 offset:%d" % (v(32 + w), L_OX + w * 1024))
    g.e("s_waitcnt lgkmcnt(0)")
    for w in range(1, 8):
        g.e("v_add_f32 v32, v32, %s" % v(32 + w))
    g.e("v_cvt_pk_bf16_f32 v32, v32, v32")
    g.e("v_lshlrev_b32 v12, 1, v0")
    g.e("ds_write_b16 v12, v32 offset:%d" % L_OB)
    g.lab(skip)
    g.e("s_waitcnt lgkmcnt(0)")
    g.e("s_barrier")
    g.e("s_waitcnt vmcnt(0)")
    preperm(g, 128, 16)
    out_gemv(g, 128, 16, L_OB, 256, 48, 32)
    stamp(g, 7, 15)

    g.e("s_sub_u32 %s, %s, 128" % (sr(S_YI), sr(S_CU)))
    g.lab("L_YPUB")
    g.nop(3)
    g.e("s_mul_i32 s98, %s, 3584" % sr(S_WAVE))
    g.e("s_add_u32 s98, s98, %d" % L_YX)
    g.e("v_lshlrev_b32 v12, 5, %s" % v(V_LANE))
    g.e("v_add_u32 v12, s98, v12")
    g.e("s_mov_b32 exec_hi, 0x00ffffff")
    for b in range(2):
        for hh in range(2):
            g.e("ds_write_b128 v12, %s offset:%d" % (v(48 + b * 8 + hh * 4, 4), b * 1792 + hh * 16))
    g.e("s_mov_b32 exec_hi, -1")
    g.e("s_waitcnt lgkmcnt(0)")
    g.e("s_barrier")
    skip = g.newlab("YS")
    g.e("v_cmp_gt_u32 vcc, 224, v0")
    g.e("s_and_saveexec_b64 %s, vcc" % sr(S_EX, 2))
    g.e("s_cbranch_execz %s" % skip)
    g.e("v_lshlrev_b32 v12, 4, v0")
    g.e("v_add_u32 v13, %d, v12" % L_YX)
    for wv in range(8):
        g.e("ds_read_b128 %s, v13 offset:%d" % (v(64 + wv * 4, 4), wv * 3584))
    g.e("s_waitcnt lgkmcnt(0)")
    for wv in range(1, 8):
        for j in range(4):
            g.e("v_add_f32 %s, %s, %s" % (v(64 + j), v(64 + j), v(64 + wv * 4 + j)))
    g.e("s_mul_i32 s98, %s, 7168" % sr(S_YI))
    g.e("s_add_u32 s98, s98, %d" % WS_Y)
    g.e("v_lshlrev_b32 v12, 5, v0")
    for j in range(4):
        g.e("v_mov_b32 %s, %s" % (v(72 + 2 * j), v(64 + j)))
        g.e("v_mov_b32 %s, %s" % (v(73 + 2 * j), sr(S_TAG)))
    g.e("buffer_store_dwordx4 v[72:75], v12, %s, s98 offen sc1" % sr(SRD_WS, 4))
    g.e("buffer_store_dwordx4 v[76:79], v12, %s, s98 offen offset:16 sc1" % sr(SRD_WS, 4))
    g.lab(skip)
    g.e("s_mov_b64 exec, %s" % sr(S_EX, 2))
    flag_store(g, WS_YF, S_YI, 0)
    stamp(g, 9, 15)
    g.e("s_branch L_END")

    g.lab("L_FINAL")
    g.c("---- FINAL ----")
    g.e("s_lshl_b32 %s, %s, 2" % (sr(S_YI), sr(S_H)))
    g.e("s_add_u32 %s, %s, %s" % (sr(S_YI), sr(S_YI), sr(S_J)))
    g.e("s_sub_u32 %s, %s, 4" % (sr(S_YI), sr(S_YI)))
    g.e("s_cmp_ge_u32 %s, 56" % sr(S_YI))
    g.e("s_cbranch_scc1 L_END")
    poll_flags(g, WS_YF, 128, sleep=1)
    stamp(g, 10, 15)
    g.e("s_mov_b32 s98, %s" % sr(S_YI))
    g.e("s_cmp_ge_u32 s98, 28")
    g.e("s_cselect_b32 s99, 1, 0")
    g.e("s_mul_i32 s100, s99, 28")
    g.e("s_sub_u32 s98, s98, s100")
    g.e("s_mul_i32 s100, s99, 3584")
    g.e("s_lshl_b32 s101, s98, 7")
    g.e("s_add_u32 s100, s100, s101")
    g.e("s_add_u32 s100, s100, %d" % WS_Y)
    g.e("v_lshrrev_b32 v12, 3, v0")
    g.e("v_bfe_u32 v13, v0, 2, 1")
    g.e("v_lshl_add_u32 v12, v13, 6, v12")
    g.e("s_movk_i32 s101, 7168")
    g.e("v_mul_lo_u32 v12, v12, s101")
    g.e("v_and_b32 v13, 3, v0")
    g.e("v_lshl_add_u32 v12, v13, 5, v12")
    lp = g.newlab("FL"); ok = g.newlab("FOK")
    g.e("s_mov_b32 %s, 0" % sr(S_SPIN))
    g.lab(lp)
    g.e("buffer_load_dwordx4 v[40:43], v12, %s, s100 offen sc1" % sr(SRD_WS, 4))
    g.e("buffer_load_dwordx4 v[44:47], v12, %s, s100 offen offset:16 sc1" % sr(SRD_WS, 4))
    g.e("s_waitcnt vmcnt(0)")
    g.e("v_xor_b32 v13, %s, v41" % sr(S_TAG))
    for r_ in (43, 45, 47):
        g.e("v_xor_b32 v14, %s, %s" % (sr(S_TAG), v(r_)))
        g.e("v_or_b32 v13, v13, v14")
    g.e("v_cmp_eq_u32 vcc, 0, v13")
    g.e("s_cmp_eq_u64 vcc, exec")
    g.e("s_cbranch_scc1 %s" % ok)
    g.e("s_add_u32 %s, %s, 1" % (sr(S_SPIN), sr(S_SPIN)))
    g.e("s_cmp_gt_u32 %s, %d" % (sr(S_SPIN), SPIN_MAX))
    g.e("s_cbranch_scc0 %s" % lp)
    g.lab(ok)
    for j in range(4):
        g.e("v_mov_b32 %s, %s" % (v(32 + j), v(40 + 2 * j)))
    g.nop(1)
    for r_ in range(32, 36):
        g.e("v_add_f32_dpp %s, %s, %s row_ror:8 row_mask:0xf bank_mask:0xf" % (v(r_), v(r_), v(r_)))
    for r_ in range(32, 36):
        cross_rows(g, "v_add_f32", r_, 13)
    g.e("v_lshlrev_b32 v12, 4, %s" % v(V_LANE))
    g.e("s_lshl_b32 s101, %s, 7" % sr(S_WAVE))
    g.e("s_add_u32 s101, s101, %d" % L_FX)
    g.e("v_add_u32 v12, s101, v12")
    g.e("s_mov_b64 exec, 0xff")
    g.e("ds_write_b128 v12, v[32:35]")
    g.e("s_mov_b64 exec, -1")
    g.e("s_waitcnt lgkmcnt(0)")
    g.e("s_barrier")
    g.e("s_cmp_lg_u32 %s, 0" % sr(S_WAVE))
    g.e("s_cbranch_scc1 L_END")
    g.e("v_and_b32 v12, 31, %s" % v(V_LANE))
    g.e("v_lshlrev_b32 v12, 2, v12")
    for wv in range(8):
        g.e("ds_read_b32 %s, v12 offset:%d" % (v(32 + wv), L_FX + wv * 128))
    g.e("s_waitcnt lgkmcnt(0)")
    for wv in range(1, 8):
        g.e("v_add_f32 v32, v32, %s" % v(32 + wv))
    g.e("v_cvt_pk_bf16_f32 v32, v32, v32")
    g.e("s_movk_i32 s101, 896")
    g.e("v_mul_lo_u32 v12, %s, s101" % v(V_G))
    g.e("v_lshl_add_u32 v12, %s, 1, v12" % v(V_L16))
    g.e("s_mul_i32 s100, s99, 1792")
    g.e("s_lshl_b32 s101, s98, 5")
    g.e("s_add_u32 s100, s100, s101")
    g.e("s_mov_b32 exec_lo, -1")
    g.e("s_mov_b32 exec_hi, 0")
    g.e("buffer_store_short v32, v12, %s, s100 offen" % sr(SRD_OUT, 4))
    g.e("s_mov_b64 exec, -1")
    stamp(g, 11, 15)
    g.e("s_cmp_lg_u32 %s, 0" % sr(S_YI))
    g.e("s_cbranch_scc1 L_END")
    g.e("v_mov_b32 v13, %s" % sr(S_TAG))
    g.e("s_mov_b64 exec, 1")
    g.e("buffer_store_dword v13, off, %s, 0 sc1" % sr(SRD_WS, 4))
    g.lab("L_END")
    g.e("s_endpgm")
    g.lines += [
        '.section .rodata,"a"',
        ".p2align 6",
        ".amdhsa_kernel %s" % KN,
        "  .amdhsa_next_free_vgpr 256",
        "  .amdhsa_next_free_sgpr 102",
        "  .amdhsa_accum_offset 256",
        "  .amdhsa_group_segment_fixed_size 0",
        "  .amdhsa_kernarg_size 112",
        "  .amdhsa_user_sgpr_count 2",
        "  .amdhsa_user_sgpr_kernarg_segment_ptr 1",
        "  .amdhsa_system_sgpr_workgroup_id_x 1",
        ".end_amdhsa_kernel",
    ]
    return "\n".join(g.lines) + "\n"

if __name__ == "__main__":
    out = sys.argv[1] if len(sys.argv) > 1 and not sys.argv[1].startswith("--") else "cdna_kernels/%s.s" % NAME
    open(out, "w").write(gen())
    print("wrote", out)
```

```python
import sys

NAME = "concat_heads__mha_block_cached__compressed_kv_cla__decode"
KN = NAME + "_kernel"

def opt(name, default):
    for a in sys.argv:
        if a.startswith("--%s=" % name):
            return int(a.split("=")[1])
    return default

WS_NONCE = 0
WS_AP = 0x600000
WS_QH = 0xA0000
WS_QL = 0xB0000
WS_QF = 0xC0000
WS_PF = 0xC1000
WS_YF = 0xC2000
WS_AF = 0xC3000
WS_PS = 0xC4000
WS_Y = 0xD0000
WS_QP = 0x10000
WS_QPF = 0xC5000
WS_PC = 0x200000
WS_SIZE = 0x10000000
WS_STAMP = 0x800000

L_TILE0 = 0
L_TILE1 = 65536
L_SX = 131072
L_QX = 139264
L_QB = 147456
L_CNT = 149504
LDS_BYTES = 149504 + 1024
L_AO = 0
L_AM = 8192
L_OX = 0
L_OB = 8192
L_OA = 8704
L_CX = 16384
L_CB = 12288
L_FX = 28672
L_YX = 32768

SPIN_MAX = opt("SPIN", 400000)
STAMPS = "--stamps" in sys.argv
D = opt("D", 6)
PRE = opt("PRE", 8)
SH = opt("SH", 128)
WS_CT = 0xC8000

class G:
    def __init__(s):
        s.lines = []
        s.q = []
        s.uid = 0
    def e(s, t):
        s.lines.append("    " + t)
    def c(s, t):
        s.lines.append("    ; " + t)
    def lab(s, n):
        s.lines.append(n + ":")
    def newlab(s, p="L"):
        s.uid += 1
        return "%s_%d" % (p, s.uid)
    def vm(s, tag, t):
        s.e(t)
        s.q.append(tag)
    def wait(s, tag):
        if tag not in s.q:
            return
        idx = max(i for i, x in enumerate(s.q) if x == tag)
        n = len(s.q) - 1 - idx
        s.e("s_waitcnt vmcnt(%d)" % min(n, 63))
        s.q = s.q[idx + 1:]
    def waitall(s):
        s.e("s_waitcnt vmcnt(0)")
        s.q = []
    def nop(s, n):
        s.e("s_nop %d" % n)

def v(i, n=1):
    return "v%d" % i if n == 1 else "v[%d:%d]" % (i, i + n - 1)
def sr(i, n=1):
    return "s%d" % i if n == 1 else "s[%d:%d]" % (i, i + n - 1)

S_WAVE, S_TAG, S_H, S_J, S_CU = 3, 4, 5, 6, 7
S_T = [8, 9, 10, 11, 12, 13, 14, 15]
S_ROLE = 16
S_CUR, S_NXT, S_UEND, S_SLAB, S_FIRST, S_VALID, S_NU = 17, 18, 19, 20, 21, 22, 23
S_BB, S_KR, S_DH, S_CKV, S_LW, S_SC = 24, 25, 26, 27, 28, 29
S_MAT, S_JMAT, S_YI = 30, 31, 32
S_QN, S_QU, S_QV = 33, 34, 35
S_SIX, S_CTR, S_MODE = 25, 26, 27
SRD_X, SRD_WQ, SRD_WO, SRD_K, SRD_V, SRD_WUV, SRD_WS, SRD_OUT, SRD_WOA = 36, 40, 44, 48, 52, 56, 60, 64, 68
S_PLO, S_PHI, S_L2E, S_SPIN = 72, 73, 74, 75
S_MK, S_M2, S_EX = 76, 78, 80
S_O = 82
V_LANE, V_L16, V_G = 1, 2, 3
RING = 192


def dpp_allreduce16(g, op, regs):
    for st in (8, 4, 2, 1):
        if len(regs) < 3:
            g.nop(1)
        for r in regs:
            g.e("%s_dpp %s, %s, %s row_ror:%d row_mask:0xf bank_mask:0xf" % (op, v(r), v(r), v(r), st))

def cross_rows(g, op, r, t, both=True):
    g.e("v_mov_b32 %s, %s" % (v(t), v(r)))
    g.nop(1)
    g.e("v_permlane16_swap_b32 %s, %s" % (v(t), v(r)))
    g.nop(1)
    g.e("%s %s, %s, %s" % (op, v(r), v(r), v(t)))
    if both:
        g.e("v_mov_b32 %s, %s" % (v(t), v(r)))
        g.nop(1)
        g.e("v_permlane32_swap_b32 %s, %s" % (v(t), v(r)))
        g.nop(1)
        g.e("%s %s, %s, %s" % (op, v(r), v(r), v(t)))

def transpose_reduce16(g, a):
    g.nop(1)
    for k in range(8):
        g.e("v_permlane32_swap_b32 %s, %s" % (v(a + k), v(a + k + 8)))
    g.nop(1)
    for k in range(8):
        g.e("v_add_f32 %s, %s, %s" % (v(a + k), v(a + k), v(a + k + 8)))
    g.nop(1)
    for k in range(4):
        g.e("v_permlane16_swap_b32 %s, %s" % (v(a + k), v(a + k + 4)))
    g.nop(1)
    for k in range(4):
        g.e("v_add_f32 %s, %s, %s" % (v(a + k), v(a + k), v(a + k + 4)))

DBGS = "--dbgstamps" in sys.argv
def stamp(g, idx, vt):
    if DBGS:
        if idx > 11:
            return
        g.e("s_memrealtime s[100:101]")
        g.e("s_lshl_b32 s98, %s, 2" % sr(S_ROLE))
        g.e("s_waitcnt lgkmcnt(0)")
        g.e("v_mov_b32 %s, s100" % v(vt))
        amap = {0: 0, 1: 1, 2: 2, 3: 3, 4: 4, 9: 5, 10: 6, 11: 7, 5: -1}
        bmap = {0: 8, 2: 9, 3: 10, 4: 11, 5: 12, 6: 13, 7: 14, 9: 15}
        a_, b_ = amap.get(idx, -1), bmap.get(idx, -1)
        g.e("s_cmp_eq_u32 %s, 1" % sr(S_ROLE))
        g.e("s_cselect_b32 s98, %d, %d" % (a_ * 4 if a_ >= 0 else 252, b_ * 4 if b_ >= 0 else 252))
        sk = g.newlab("DB")
        g.e("s_cmp_lg_u32 %s, 0" % sr(S_WAVE))
        g.e("s_cbranch_scc1 %s" % sk)
        g.e("s_and_b32 s99, %s, 0x3b" % sr(S_CU) if False else "s_mov_b32 s99, %s" % sr(S_CU))
        if idx in (10, 11):
            g.e("s_cmp_lg_u32 s99, 4")
        else:
            g.e("s_cmp_eq_u32 s99, 192")
            g.e("s_cselect_b32 s99, 0, s99")
            g.e("s_cmp_lg_u32 s99, 0")
        g.e("s_cbranch_scc1 %s" % sk)
        g.e("s_mov_b64 exec, 1")
        g.e("buffer_store_dword %s, off, s[92:95], s98" % v(vt))
        g.e("s_mov_b64 exec, -1")
        g.lab(sk)
        return
    if not STAMPS:
        return
    g.e("s_memrealtime s[100:101]")
    g.e("s_lshl_b32 s98, %s, 3" % sr(S_CU))
    g.e("s_add_u32 s98, s98, %s" % sr(S_WAVE))
    g.e("s_lshl_b32 s98, s98, 7")
    g.e("s_add_u32 s98, s98, %d" % (WS_STAMP + idx * 4))
    g.e("s_waitcnt lgkmcnt(0)")
    g.e("v_mov_b32 %s, s100" % v(vt))
    g.e("s_mov_b64 exec, 1")
    g.e("buffer_store_dword %s, off, %s, s98" % (v(vt), sr(SRD_WS, 4)))
    g.e("s_mov_b64 exec, -1")

def q_job(g, gather):
    ACC, PT, XR, W = 32, 48, 56, 128
    g.c("---- Q job ----")
    g.e("s_mul_i32 %s, %s, 224" % (sr(S_T[4]), sr(S_T[0])))
    g.e("s_add_u32 %s, %s, 896" % (sr(S_T[5]), sr(S_T[4])))
    g.e("s_mul_i32 %s, %s, %d" % (sr(S_T[2]), sr(S_T[0]), 112 * 8192))
    g.e("s_lshl_b32 %s, %s, 9" % (sr(S_T[3]), sr(S_H)))
    g.e("s_add_u32 %s, %s, %s" % (sr(S_T[2]), sr(S_T[2]), sr(S_T[3])))
    g.e("s_lshl_b32 %s, %s, 8" % (sr(S_T[3]), sr(S_T[1])))
    g.e("s_add_u32 %s, %s, %s" % (sr(S_T[2]), sr(S_T[2]), sr(S_T[3])))
    g.e("s_mov_b32 %s, %d" % (sr(S_T[6]), 28 * 8192))
    g.e("v_mul_lo_u32 v12, %s, %s" % (v(V_G), sr(S_T[6])))
    g.e("v_lshl_add_u32 v12, %s, 4, v12" % v(V_L16))
    g.e("v_mul_u32_u24 v13, 56, %s" % v(V_G))
    for b in range(2):
        sb = sr(S_T[4 + b])
        g.e("buffer_load_dwordx4 %s, v13, %s, %s offen" % (v(XR + b * 14, 4), sr(SRD_X, 4), sb))
        g.e("buffer_load_dwordx4 %s, v13, %s, %s offen offset:16" % (v(XR + b * 14 + 4, 4), sr(SRD_X, 4), sb))
        g.e("buffer_load_dwordx4 %s, v13, %s, %s offen offset:32" % (v(XR + b * 14 + 8, 4), sr(SRD_X, 4), sb))
        g.e("buffer_load_dwordx2 %s, v13, %s, %s offen offset:48" % (v(XR + b * 14 + 12, 2), sr(SRD_X, 4), sb))
    for n in range(28):
        g.e("buffer_load_dwordx4 %s, v12, %s, %s offen nt" % (v(W + 4 * n, 4), sr(SRD_WQ, 4), sr(S_T[2])))
        g.e("s_add_u32 %s, %s, 8192" % (sr(S_T[2]), sr(S_T[2])))
    QB = opt("QB", 14)
    if QB == 0:
        g.e("s_barrier")
    for i in range(16):
        g.e("v_mov_b32 %s, 0" % v(ACC + i))
    for k in range(14):
        g.e("s_waitcnt vmcnt(%d)" % (26 - 2 * k))
        if QB and k == QB - 1:
            g.e("s_barrier")
        r0 = W + 8 * k
        r1 = r0 + 4
        for j in range(4):
            g.e("v_perm_b32 %s, %s, %s, %s" % (v(PT + 2 * j), v(r1 + j), v(r0 + j), sr(S_PLO)))
            g.e("v_perm_b32 %s, %s, %s, %s" % (v(PT + 2 * j + 1), v(r1 + j), v(r0 + j), sr(S_PHI)))
        for b in range(2):
            for e_ in range(8):
                g.e("v_dot2_f32_bf16 %s, %s, %s, %s" % (v(ACC + b * 8 + e_), v(PT + e_), v(XR + b * 14 + k), v(ACC + b * 8 + e_)))
    stamp(g, 12, 15)
    g.e("v_readfirstlane_b32 %s, v127" % sr(S_TAG))
    g.e("s_add_u32 %s, %s, 1" % (sr(S_TAG), sr(S_TAG)))
    g.nop(1)
    transpose_reduce16(g, ACC)
    done = g.newlab("QDONE")
    g.e("v_lshrrev_b32 v12, 1, %s" % v(V_G))
    g.e("v_lshlrev_b32 v12, 11, v12")
    g.e("v_and_b32 v13, 1, %s" % v(V_G))
    g.e("v_lshl_add_u32 v12, v13, 5, v12")
    g.e("v_lshl_add_u32 v12, %s, 6, v12" % v(V_L16))
    g.e("s_lshl_b32 s98, %s, 1" % sr(S_H))
    g.e("s_add_u32 s98, s98, %s" % sr(S_JMAT))
    g.e("s_lshl_b32 s99, s98, 5")
    g.e("s_lshl_b32 s98, s98, 2")
    g.e("s_add_u32 s98, s98, %s" % sr(S_T[0]))
    g.e("s_lshl_b32 s98, s98, 12")
    g.e("s_lshl_b32 s100, %s, 10" % sr(S_T[1]))
    g.e("s_add_u32 s98, s98, s100")
    g.e("s_add_u32 s98, s98, %d" % WS_QP)
    g.e("v_mov_b32 v40, v32")
    g.e("v_mov_b32 v41, %s" % sr(S_TAG))
    g.e("v_mov_b32 v42, v33")
    g.e("v_mov_b32 v43, %s" % sr(S_TAG))
    g.e("v_mov_b32 v44, v34")
    g.e("v_mov_b32 v45, %s" % sr(S_TAG))
    g.e("v_mov_b32 v46, v35")
    g.e("v_mov_b32 v47, %s" % sr(S_TAG))
    g.e("buffer_store_dwordx4 v[40:43], v12, %s, s98 offen sc1" % sr(SRD_WS, 4))
    g.e("buffer_store_dwordx4 v[44:47], v12, %s, s98 offen offset:16 sc1" % sr(SRD_WS, 4))
    g.e("s_lshl_b32 s100, %s, 1" % sr(S_T[0]))
    g.e("s_add_u32 s100, s100, %s" % sr(S_T[1]))
    g.e("s_lshl_b32 s100, s100, 2")
    g.e("s_add_u32 s99, s99, s100")
    g.e("s_add_u32 s99, s99, %d" % WS_QPF)
    g.e("s_mov_b64 exec, 1")
    g.e("buffer_store_dword v41, off, %s, s99 sc1" % sr(SRD_WS, 4))
    g.e("s_mov_b64 exec, -1")
    stamp(g, 13, 15)
    if gather:
        g.e("s_mov_b32 %s, 0" % sr(S_SPIN))
        g.e("v_and_b32 v15, 15, %s" % v(V_LANE))
        g.e("v_lshlrev_b32 v15, 2, v15")
        g.e("s_lshl_b32 s99, %s, 6" % sr(S_H))
        g.e("s_add_u32 s99, s99, %d" % WS_QPF)
        lp0 = g.newlab("QH"); ok0 = g.newlab("QHOK")
        g.lab(lp0)
        g.e("buffer_load_dword v11, v15, %s, s99 offen sc1" % sr(SRD_WS, 4))
        g.e("s_waitcnt vmcnt(0)")
        g.e("v_cmp_eq_u32 vcc, %s, v11" % sr(S_TAG))
        g.e("s_cmp_eq_u64 vcc, exec")
        g.e("s_cbranch_scc1 %s" % ok0)
        g.e("s_add_u32 %s, %s, 1" % (sr(S_SPIN), sr(S_SPIN)))
        g.e("s_sleep 1")
        g.e("s_cmp_gt_u32 %s, %d" % (sr(S_SPIN), SPIN_MAX))
        g.e("s_cbranch_scc0 %s" % lp0)
        g.lab(ok0)
        g.e("s_mov_b32 %s, 1" % sr(S_T[7]))
        lp = g.newlab("QG"); ok = g.newlab("QGOK")
        g.e("v_lshlrev_b32 v12, 4, %s" % v(V_LANE))
        g.lab(lp)
        g.e("s_lshl_b32 s99, %s, 6" % sr(S_H))
        g.e("s_add_u32 s99, s99, %d" % WS_QPF)
        g.e("buffer_load_dword v11, v15, %s, s99 offen sc1" % sr(SRD_WS, 4))
        g.e("s_lshl_b32 s98, %s, 15" % sr(S_H))
        g.e("s_add_u32 s98, s98, %d" % WS_QP)
        g.e("s_lshl_b32 s99, %s, 11" % sr(S_BB))
        g.e("s_add_u32 s99, s99, s98")
        for rq in range(4):
            for p in range(2):
                g.e("buffer_load_dwordx4 %s, v12, %s, s99 offen offset:%d sc1" % (v(32 + rq * 8 + p * 4, 4), sr(SRD_WS, 4), p * 1024))
            g.e("s_add_u32 s99, s99, 4096")
        g.e("s_add_u32 s99, s98, 16384")
        for rq in range(4):
            for z in (1, 2):
                for p in range(2):
                    g.e("buffer_load_dwordx4 %s, v12, %s, s99 offen offset:%d sc1" % (v(32 + z * 32 + rq * 8 + p * 4, 4), sr(SRD_WS, 4), (z - 1) * 2048 + p * 1024))
            g.e("s_add_u32 s99, s99, 4096")
        sk = g.newlab("QREL")
        g.e("s_cmp_eq_u32 %s, 0" % sr(S_T[7]))
        g.e("s_cbranch_scc1 %s" % sk)
        g.e("s_barrier")
        g.e("s_mov_b32 %s, 0" % sr(S_T[7]))
        g.lab(sk)
        g.e("s_waitcnt vmcnt(0)")
        g.e("v_xor_b32 v13, %s, v11" % sr(S_TAG))
        for r_ in range(33, 128, 2):
            g.e("v_xor_b32 v14, %s, %s" % (sr(S_TAG), v(r_)))
            g.e("v_or_b32 v13, v13, v14")
        g.e("v_cmp_eq_u32 vcc, 0, v13")
        g.e("s_cmp_eq_u64 vcc, exec")
        g.e("s_cbranch_scc1 %s" % ok)
        g.e("s_add_u32 %s, %s, 1" % (sr(S_SPIN), sr(S_SPIN)))
        g.e("s_cmp_gt_u32 %s, %d" % (sr(S_SPIN), SPIN_MAX))
        g.e("s_cbranch_scc0 %s" % lp)
        g.lab(ok)
        stamp(g, 14, 15)
        g.e("v_lshlrev_b32 v12, 2, %s" % v(V_LANE))
        g.e("v_add_u32 v13, %d, v12" % L_QB)
        g.e("s_lshl_b32 s99, %s, 9" % sr(S_BB))
        g.e("v_add_u32 v12, s99, v13")
        for z in range(3):
            for p in range(2):
                a = 32 + z * 32 + p * 4
                for o_ in (0, 2):
                    g.e("v_add_f32 %s, %s, %s" % (v(a + o_), v(a + o_), v(a + 8 + o_)))
                    g.e("v_add_f32 %s, %s, %s" % (v(a + 16 + o_), v(a + 16 + o_), v(a + 24 + o_)))
                    g.e("v_add_f32 %s, %s, %s" % (v(a + o_), v(a + o_), v(a + 16 + o_)))
                g.e("v_cvt_pk_bf16_f32 %s, %s, %s" % (v(a + 1), v(a), v(a + 2)))
                if z == 0:
                    g.e("ds_write_b32 v12, %s offset:%d" % (v(a + 1), p * 256))
                else:
                    g.e("ds_write_b32 v13, %s offset:%d" % (v(a + 1), 1024 + (z - 1) * 512 + p * 256))
        g.e("s_waitcnt lgkmcnt(0)")
    g.lab(done)

def load_rows896(g, srd, rowbase_sgpr, nrows, wreg):
    g.e("s_mul_i32 %s, %s, %d" % (sr(S_T[0]), sr(S_WAVE), nrows))
    g.e("s_add_u32 %s, %s, %s" % (sr(S_T[0]), sr(S_T[0]), sr(rowbase_sgpr)))
    g.e("s_mul_i32 %s, %s, 896" % (sr(S_T[0]), sr(S_T[0])))
    g.e("v_lshlrev_b32 v12, 4, %s" % v(V_LANE))
    g.e("s_mov_b32 exec_hi, 0x00ffffff")
    for n in range(nrows):
        if n % 4 == 0 and n > 0:
            g.e("s_add_u32 %s, %s, 3584" % (sr(S_T[0]), sr(S_T[0])))
        g.e("buffer_load_dwordx4 %s, v12, %s, %s offen offset:%d" % (v(wreg + n * 4, 4), sr(srd, 4), sr(S_T[0]), (n % 4) * 896))
    g.e("s_mov_b32 exec_hi, -1")

def preperm(g, wreg, nrows):
    for k in range(nrows // 2):
        r0 = wreg + (2 * k) * 4
        r1 = r0 + 4
        for j in range(4):
            g.e("v_perm_b32 v12, %s, %s, %s" % (v(r1 + j), v(r0 + j), sr(S_PLO)))
            g.e("v_perm_b32 %s, %s, %s, %s" % (v(r1 + j), v(r1 + j), v(r0 + j), sr(S_PHI)))
            g.e("v_mov_b32 %s, v12" % v(r0 + j))

def out_gemv(g, wreg, nrows, lds_base, bstride, Y, OP):
    g.e("s_mul_i32 %s, %s, %d" % (sr(S_T[0]), sr(S_WAVE), nrows * 2))
    g.e("s_add_u32 %s, %s, %d" % (sr(S_T[0]), sr(S_T[0]), lds_base))
    g.e("v_mov_b32 v12, %s" % sr(S_T[0]))
    npk = nrows // 2
    for b in range(2):
        for x in range(npk // 4):
            g.e("ds_read_b128 %s, v12 offset:%d" % (v(OP + b * npk + 4 * x, 4), b * bstride + 16 * x))
    for i in range(16):
        g.e("v_mov_b32 %s, 0" % v(Y + i))
    g.e("s_waitcnt lgkmcnt(0)")
    for k in range(npk):
        r0 = wreg + (2 * k) * 4
        r1 = r0 + 4
        for b in range(2):
            for j in range(4):
                g.e("v_dot2_f32_bf16 %s, %s, %s, %s" % (v(Y + b * 8 + 2 * j), v(r0 + j), v(OP + b * npk + k), v(Y + b * 8 + 2 * j)))
                g.e("v_dot2_f32_bf16 %s, %s, %s, %s" % (v(Y + b * 8 + 2 * j + 1), v(r1 + j), v(OP + b * npk + k), v(Y + b * 8 + 2 * j + 1)))

def flag_store(g, base_const, idx_sgpr, sub):
    skip = g.newlab("FLAG")
    g.e("s_cmp_lg_u32 %s, 0" % sr(S_WAVE))
    g.e("s_cbranch_scc1 %s" % skip)
    g.e("s_sub_u32 s98, %s, %d" % (sr(idx_sgpr), sub))
    g.e("s_lshl_b32 s98, s98, 2")
    g.e("s_add_u32 s98, s98, %d" % base_const)
    g.e("v_mov_b32 v13, %s" % sr(S_TAG))
    g.e("s_mov_b64 exec, 1")
    g.e("buffer_store_dword v13, off, %s, s98 sc1" % sr(SRD_WS, 4))
    g.e("s_mov_b64 exec, -1")
    g.lab(skip)

def poll_flags(g, base_sgpr_or_const, nflags, pw=0, sleep=4):
    lp = g.newlab("POLL"); ok = g.newlab("POLLOK")
    g.e("s_cmp_lg_u32 %s, %d" % (sr(S_WAVE), pw))
    g.e("s_cbranch_scc1 %s" % ok)
    wide = nflags > 64
    g.e("v_lshlrev_b32 v12, %d, %s" % (4 if wide else 2, v(V_LANE)))
    if wide:
        nflags //= 4
    if isinstance(base_sgpr_or_const, int):
        g.e("s_mov_b32 s98, %d" % base_sgpr_or_const)
    else:
        g.e("s_mov_b32 s98, %s" % base_sgpr_or_const)
    if nflags < 64:
        m = (1 << nflags) - 1
        g.e("s_mov_b32 exec_lo, 0x%x" % (m & 0xffffffff))
        g.e("s_mov_b32 exec_hi, 0x%x" % (m >> 32))
    g.e("s_mov_b32 %s, 0" % sr(S_SPIN))
    g.lab(lp)
    if wide:
        g.e("buffer_load_dwordx4 v[88:91], v12, %s, s98 offen sc1" % sr(SRD_WS, 4))
        g.e("s_waitcnt vmcnt(0)")
        g.e("v_cmp_eq_u32 vcc, %s, v88" % sr(S_TAG))
        for i in range(1, 4):
            g.e("v_cmp_eq_u32 %s, %s, %s" % (sr(S_M2, 2), sr(S_TAG), v(88 + i)))
            g.e("s_and_b64 vcc, vcc, %s" % sr(S_M2, 2))
    else:
        g.e("buffer_load_dword v13, v12, %s, s98 offen sc1" % sr(SRD_WS, 4))
        g.e("s_waitcnt vmcnt(0)")
        g.e("v_cmp_eq_u32 vcc, %s, v13" % sr(S_TAG))
    g.e("s_cmp_eq_u64 vcc, exec")
    g.e("s_cbranch_scc1 %s" % ok)
    g.e("s_add_u32 %s, %s, 1" % (sr(S_SPIN), sr(S_SPIN)))
    g.e("s_cmp_gt_u32 %s, %d" % (sr(S_SPIN), SPIN_MAX))
    g.e("s_cbranch_scc1 %s" % ok)
    g.e("s_sleep %d" % sleep)
    g.e("s_branch %s" % lp)
    g.lab(ok)
    g.e("s_mov_b64 exec, -1")
    g.e("s_barrier")


def gen():
    g = G()
    g.lines.append("; @launch grid=(256,1,1) block=(512,1,1) lds=%d" % LDS_BYTES)
    g.lines.append('.amdgcn_target "amdgcn-amd-amdhsa--gfx950"')
    g.lines.append(".text")
    g.lines.append(".globl %s" % KN)
    g.lines.append(".p2align 8")
    g.lines.append(".type %s,@function" % KN)
    g.lab(KN)
    g.e("s_cmp_ge_u32 s2, 256")
    g.e("s_cbranch_scc1 L_END")
    if "--noxmap" not in sys.argv:
        g.e("s_and_b32 s96, s2, 7")
        g.e("s_lshr_b32 s97, s2, 3")
        XM = opt("XM", 1)
        if XM == 1:
            g.e("s_mul_i32 s98, s96, 24")
            g.e("s_add_u32 s98, s98, s97")
        else:
            sh = {2: 1, 4: 2}[XM]
            g.e("s_lshr_b32 s98, s96, %d" % sh)
            g.e("s_mul_i32 s98, s98, %d" % (24 * XM))
            g.e("s_and_b32 s99, s96, %d" % (XM - 1))
            g.e("s_add_u32 s98, s98, s99")
            g.e("s_lshl_b32 s99, s97, %d" % sh)
            g.e("s_add_u32 s98, s98, s99")
        g.e("s_lshl_b32 s99, s96, 3")
        g.e("s_add_u32 s99, s99, s97")
        g.e("s_add_u32 s99, s99, 168")
        g.e("s_cmp_lt_u32 s97, 24")
        g.e("s_cselect_b32 s2, s98, s99")
    g.e("s_load_dwordx16 s[8:23], s[0:1], 0")
    g.e("s_load_dwordx8 s[24:31], s[0:1], 64")
    g.e("s_load_dwordx4 s[32:35], s[0:1], 96")
    g.e("v_and_b32 %s, 63, v0" % v(V_LANE))
    g.e("v_lshrrev_b32 v12, 6, v0")
    g.e("v_and_b32 %s, 15, v0" % v(V_L16))
    g.e("v_bfe_u32 %s, v0, 4, 2" % v(V_G))
    g.e("v_readfirstlane_b32 %s, v12" % sr(S_WAVE))
    g.e("v_mov_b32 v4, 0")
    g.e("v_mov_b32 v5, 0")
    g.e("s_mov_b32 %s, 0x05040100" % sr(S_PLO))
    g.e("s_mov_b32 %s, 0x07060302" % sr(S_PHI))
    g.e("s_mov_b32 %s, 0x3fb8aa3b" % sr(S_L2E))
    g.e("s_mov_b32 %s, 0x00010001" % sr(S_MK))
    g.e("s_mov_b32 %s, 0x00010001" % sr(S_MK + 1))
    g.e("s_mul_i32 s96, s2, 43691")
    g.e("s_lshr_b32 s96, s96, 19")
    g.e("s_mul_i32 s97, s96, 12")
    g.e("s_sub_u32 s97, s2, s97")
    g.e("s_cmp_ge_u32 s97, 8")
    g.e("s_cselect_b32 s99, 1, 0")
    g.e("s_cmp_ge_u32 s2, 192")
    g.e("s_cselect_b32 s99, 1, s99")
    g.e("s_cmp_eq_u32 s99, 0")
    g.e("s_waitcnt lgkmcnt(0)")
    def srd(d, a, b, na, nb):
        g.e("s_cselect_b32 %s, %s, %s" % (sr(d), sr(a), sr(b)))
        g.e("s_cselect_b32 %s, %s, %s" % (sr(d + 1), sr(a + 1), sr(b + 1)))
        if na == nb:
            g.e("s_mov_b32 %s, %d" % (sr(d + 2), na))
        else:
            g.e("s_mov_b32 s98, %d" % na)
            g.e("s_cselect_b32 %s, s98, %d" % (sr(d + 2), nb))
        g.e("s_mov_b32 %s, 0x00020000" % sr(d + 3))
    srd(SRD_X, 8, 18, 1792, 1792)
    srd(SRD_WQ, 14, 22, 448 * 8192, 448 * 8192)
    g.e("s_cmp_lt_u32 s2, 192")
    srd(SRD_WO, 24, 28, 1 << 23, 4096 * 896)
    srd(SRD_K, 10, 20, 1 << 26, 1 << 24)
    srd(SRD_V, 12, 26, 1 << 26, 1 << 23)
    srd(SRD_WS, 34, 34, WS_SIZE, WS_SIZE)
    srd(SRD_OUT, 30, 30, 3584, 3584)
    srd(SRD_WOA, 16, 16, 4096 * 896, 4096 * 896)
    if DBGS:
        srd(92, 32, 32, 256, 256)
    g.e("s_cselect_b32 %s, 1, 0" % sr(S_ROLE))
    g.e("s_cselect_b32 %s, 0, 1" % sr(S_MAT))
    g.e("s_mov_b32 %s, s99" % sr(S_JMAT))
    g.e("buffer_load_dword v127, off, %s, 0 sc1" % sr(SRD_WS, 4))
    g.e("s_cbranch_scc0 L_ROLE_B0")

    g.c("==== ROLE A setup ====")
    if "--noA" in sys.argv:
        g.e("s_branch L_END")
    g.e("s_mov_b32 %s, s97" % sr(S_J))
    g.e("s_mov_b32 %s, s96" % sr(S_H))
    g.e("s_mov_b32 %s, s2" % sr(S_CU))
    g.e("s_cmp_ge_u32 %s, 6" % sr(S_J))
    g.e("s_cselect_b32 %s, 1, 0" % sr(S_BB))
    g.e("s_mul_i32 s99, %s, 6" % sr(S_BB))
    g.e("s_sub_u32 s98, %s, s99" % sr(S_J))
    g.e("s_mov_b32 %s, s98" % sr(S_SIX))
    g.e("s_mul_i32 s99, s98, %d" % (((512 - SH) // 2) * 43691))
    g.e("s_lshr_b32 s99, s99, 17")
    g.e("s_add_u32 s98, s98, 1")
    g.e("s_mul_i32 s98, s98, %d" % (((512 - SH) // 2) * 43691))
    g.e("s_lshr_b32 %s, s98, 17" % sr(S_UEND))
    g.e("s_lshl_b32 s98, %s, 4" % sr(S_BB))
    g.e("s_add_u32 s98, s98, %s" % sr(S_H))
    g.e("s_lshl_b32 %s, s98, 8" % sr(S_CTR))
    g.e("s_add_u32 %s, %s, %d" % (sr(S_CTR), sr(S_CTR), WS_CT))
    g.e("s_lshl_b32 %s, s98, 21" % sr(S_SLAB))
    g.e("s_add_u32 s100, s99, %s" % sr(S_WAVE))
    g.e("s_lshl_b32 s100, s100, 12")
    g.e("s_add_u32 %s, %s, s100" % (sr(S_CUR), sr(S_SLAB)))
    g.e("v_lshlrev_b32 v4, 10, %s" % v(V_G))
    g.e("v_lshl_add_u32 v4, %s, 4, v4" % v(V_L16))
    g.e("s_add_u32 s99, s99, 8")
    g.e("v_mov_b32 v5, %d" % L_CNT)
    g.e("v_mov_b32 v6, s99")
    g.e("v_mov_b32 v7, 0")
    g.e("ds_write_b64 v5, v[6:7]")
    stamp(g, 0, 15)
    g.e("s_and_b32 %s, %s, 3" % (sr(S_T[0]), sr(S_J)))
    g.e("s_cmp_ge_u32 %s, 4" % sr(S_J))
    g.e("s_cselect_b32 %s, 1, 0" % sr(S_T[1]))
    g.e("s_cmp_ge_u32 %s, 8" % sr(S_J))
    g.e("s_cselect_b32 %s, 0, %s" % (sr(S_T[1]), sr(S_T[1])))
    skip = g.newlab("NOQ"); skip2 = g.newlab("NOQ")
    g.e("s_cmp_ge_u32 %s, 1" % sr(S_WAVE))
    g.e("s_cbranch_scc1 %s" % skip)
    sk3 = g.newlab("NOZ")
    g.e("s_cmp_lg_u32 %s, 0" % sr(S_SIX))
    g.e("s_cbranch_scc1 %s" % sk3)
    g.e("s_mov_b64 exec, 1")
    g.e("buffer_store_dword v7, off, %s, %s sc1" % (sr(SRD_WS, 4), sr(S_CTR)))
    g.e("s_mov_b64 exec, -1")
    g.lab(sk3)
    q_job(g, True)
    g.e("s_branch %s" % skip2)
    g.lab(skip)
    g.e("s_barrier")
    g.lab(skip2)
    VOFF = [0, 512, 256, 768]
    def a_issue(slot, base):
        p = slot & 7
        if p < 4:
            g.e("buffer_load_dwordx4 %s, v4, %s, %s offen offset:%d nt" % (v(RING + 4 * slot, 4), sr(SRD_K, 4), sr(base), p * 256))
        else:
            g.e("buffer_load_dwordx4 %s, v4, %s, %s offen offset:%d nt" % (v(RING + 4 * slot, 4), sr(SRD_V, 4), sr(base), VOFF[p - 4]))
    g.e("s_mul_i32 s98, %s, %d" % (sr(S_J), 16 * 43691))
    g.e("s_lshr_b32 s98, s98, 17")
    g.e("s_add_u32 s99, %s, 1" % sr(S_J))
    g.e("s_mul_i32 s99, s99, %d" % (16 * 43691))
    g.e("s_lshr_b32 s99, s99, 17")
    g.e("s_sub_u32 %s, s99, s98" % sr(S_QN))
    g.e("s_add_u32 s98, s98, %s" % sr(S_WAVE))
    g.e("s_sub_u32 %s, s98, 2" % sr(S_QU))
    g.e("s_cmp_lt_u32 %s, 2" % sr(S_WAVE))
    g.e("s_cselect_b32 %s, 0, 1" % sr(S_QV))
    g.e("s_cmp_ge_u32 %s, s99" % sr(S_QU))
    g.e("s_cselect_b32 %s, 0, %s" % (sr(S_QV), sr(S_QV)))
    LATE = opt("LATE", 6)
    def uk_loads():
        skip = g.newlab("NOUK")
        g.e("s_cmp_eq_u32 %s, 0" % sr(S_QV))
        g.e("s_cbranch_scc1 %s" % skip)
        g.e("v_lshlrev_b32 v12, 15, %s" % v(V_G))
        g.e("v_lshl_add_u32 v12, %s, 4, v12" % v(V_L16))
        g.e("s_lshl_b32 s98, %s, 17" % sr(S_QU))
        g.e("s_lshl_b32 s99, %s, 9" % sr(S_H))
        g.e("s_add_u32 s98, s98, s99")
        for i in range(4):
            for hf in range(2):
                g.e("buffer_load_dwordx4 %s, v12, %s, s98 offen offset:%d nt" % (v(128 + 4 * (2 * i + hf), 4), sr(SRD_WO, 4), hf * 256))
            g.e("s_add_u32 s98, s98, 8192")
        g.lab(skip)
    def wo_loads():
        skip = g.newlab("NOWO")
        g.e("s_cmp_ge_u32 %s, 4" % sr(S_J))
        g.e("s_cbranch_scc1 %s" % skip)
        g.e("s_lshl_b32 %s, %s, 8" % (sr(S_T[1]), sr(S_H)))
        g.e("s_lshl_b32 %s, %s, 6" % (sr(S_T[2]), sr(S_J)))
        g.e("s_add_u32 %s, %s, %s" % (sr(S_T[1]), sr(S_T[1]), sr(S_T[2])))
        load_rows896(g, SRD_WOA, S_T[1], 8, 160)
        g.lab(skip)
    def pre_loads():
        for p in range(PRE):
            a_issue(p, S_CUR)
    uk_loads()
    sk = g.newlab("W0")
    g.e("s_cmp_eq_u32 %s, 0" % sr(S_WAVE))
    g.e("s_cbranch_scc1 %s" % sk)
    g.e("s_barrier")
    g.lab(sk)
    sk = g.newlab("NOPRE")
    g.e("s_cmp_lg_u32 %s, 0" % sr(S_QV))
    g.e("s_cbranch_scc1 %s" % sk)
    pre_loads()
    g.lab(sk)
    g.e("s_waitcnt lgkmcnt(0)")
    g.e("s_barrier")
    g.e("v_lshlrev_b32 v12, 4, %s" % v(V_L16))
    g.e("s_lshl_b32 s98, %s, 9" % sr(S_BB))
    g.e("s_add_u32 s98, s98, %d" % L_QB)
    g.e("v_add_u32 v13, s98, v12")
    g.e("ds_read_b128 v[16:19], v13")
    g.e("ds_read_b128 v[20:23], v13 offset:256")
    g.e("s_waitcnt vmcnt(%d)" % PRE)
    sk = g.newlab("UKW")
    g.e("s_cmp_eq_u32 %s, 0" % sr(S_QV))
    g.e("s_cbranch_scc1 %s" % sk)
    g.e("s_waitcnt vmcnt(0)")
    g.lab(sk)
    sk = g.newlab("TAGOK")
    g.e("s_cmp_lt_u32 %s, 1" % sr(S_WAVE))
    g.e("s_cbranch_scc1 %s" % sk)
    g.e("v_readfirstlane_b32 %s, v127" % sr(S_TAG))
    g.e("s_add_u32 %s, %s, 1" % (sr(S_TAG), sr(S_TAG)))
    g.lab(sk)
    stamp(g, 1, 15)
    skipq = g.newlab("NOQABS")
    g.e("s_cmp_eq_u32 %s, 0" % sr(S_QV))
    g.e("s_cbranch_scc1 %s" % skipq)
    g.c("---- QABS on A CUs ----")
    g.e("v_add_u32 v13, %d, v12" % (L_QB + 1024))
    for b in range(2):
        for hf in range(2):
            g.e("ds_read_b128 %s, v13 offset:%d" % (v(64 + b * 8 + hf * 4, 4), b * 512 + hf * 256))
    g.e("s_waitcnt lgkmcnt(0)")
    for i in range(4):
        ra = 128 + 8 * i
        for b in range(2):
            d = 32 + b * 4 + i
            Q = 64 + b * 8
            g.e("v_dot2_f32_bf16 %s, %s, %s, 0" % (v(d), v(ra), v(Q)))
            for j in range(1, 8):
                g.e("v_dot2_f32_bf16 %s, %s, %s, %s" % (v(d), v(ra + j), v(Q + j), v(d)))
    g.nop(2)
    dpp_allreduce16(g, "v_add_f32", list(range(32, 40)))
    for i in range(1, 4):
        g.e("s_lshl_b64 %s, %s, %d" % (sr(S_M2, 2), sr(S_MK, 2), i))
        g.e("v_cndmask_b32 v32, v32, %s, %s" % (v(32 + i), sr(S_M2, 2)))
        g.e("v_cndmask_b32 v36, v36, %s, %s" % (v(36 + i), sr(S_M2, 2)))
    g.e("v_lshl_add_u32 v14, %s, 2, %s" % (v(V_G), v(V_L16)))
    g.e("s_lshl_b32 s99, %s, 4" % sr(S_QU))
    g.e("s_and_b32 s98, s99, 255")
    g.e("v_add_u32 v14, s98, v14")
    g.e("v_and_b32 v40, 7, v14")
    g.e("v_lshlrev_b32 v40, 1, v40")
    g.e("v_bfe_u32 v41, v14, 3, 1")
    g.e("v_lshrrev_b32 v42, 6, v14")
    g.e("v_lshl_add_u32 v41, v42, 1, v41")
    g.e("v_lshl_add_u32 v40, v41, 11, v40")
    g.e("v_bfe_u32 v41, v14, 4, 2")
    g.e("v_lshl_add_u32 v14, v41, 8, v40")
    g.e("s_lshr_b32 s98, s99, 8")
    g.e("s_lshl_b32 s98, s98, 14")
    g.e("s_lshl_b32 s99, %s, 4" % sr(S_H))
    g.e("s_add_u32 s98, s98, s99")
    for b in range(2):
        x = 32 + 4 * b
        g.e("v_cvt_pk_bf16_f32 %s, %s, %s" % (v(40 + 2 * b), v(x), v(x)))
        g.e("v_lshlrev_b32 %s, 16, %s" % (v(41 + 2 * b), v(40 + 2 * b)))
        g.e("v_sub_f32 %s, %s, %s" % (v(41 + 2 * b), v(x), v(41 + 2 * b)))
        g.e("v_cvt_pk_bf16_f32 %s, %s, %s" % (v(41 + 2 * b), v(41 + 2 * b), v(41 + 2 * b)))
        g.e("s_add_u32 s99, s98, %d" % (WS_QH + b * 65536))
        g.e("s_add_u32 s100, s98, %d" % (WS_QH + b * 65536 + 1024))
        g.e("s_mov_b32 exec_lo, 0x000f000f")
        g.e("s_mov_b32 exec_hi, 0x000f000f")
        g.e("buffer_store_short %s, v14, %s, s99 offen sc1" % (v(40 + 2 * b), sr(SRD_WS, 4)))
        g.e("buffer_store_short %s, v14, %s, s100 offen sc1" % (v(41 + 2 * b), sr(SRD_WS, 4)))
        g.e("s_mov_b64 exec, -1")
    g.e("v_mov_b32 v7, 1")
    pre_loads()
    g.e("s_waitcnt vmcnt(%d)" % PRE)
    g.e("s_mov_b64 exec, 1")
    g.e("ds_add_rtn_u32 v6, v5, v7 offset:4")
    g.e("s_waitcnt lgkmcnt(0)")
    g.e("v_readfirstlane_b32 s98, v6")
    g.e("s_add_u32 s98, s98, 1")
    g.e("s_cmp_lg_u32 s98, %s" % sr(S_QN))
    sk2 = g.newlab("QAF")
    g.e("s_cbranch_scc1 %s" % sk2)
    g.e("s_lshl_b32 s98, %s, 2" % sr(S_CU))
    g.e("s_add_u32 s98, s98, %d" % WS_QF)
    g.e("v_mov_b32 v13, %s" % sr(S_TAG))
    g.e("buffer_store_dword v13, off, %s, s98 sc1" % sr(SRD_WS, 4))
    g.lab(sk2)
    g.e("s_mov_b64 exec, -1")
    stamp(g, 5, 15)
    g.lab(skipq)
    wo_loads()
    g.e("s_waitcnt lgkmcnt(0)")
    g.e("s_branch L_A_MAIN")

    g.lab("L_ROLE_B0")
    g.q = []
    g.c("==== ROLE B setup ====")
    g.e("s_sub_u32 s99, s2, 192")
    g.e("s_lshr_b32 %s, s99, 2" % sr(S_H))
    g.e("s_and_b32 %s, s99, 3" % sr(S_J))
    g.e("s_mov_b32 %s, s2" % sr(S_CU))
    g.e("s_lshr_b32 %s, s99, 5" % sr(S_BB))
    g.e("s_and_b32 %s, s99, 31" % sr(S_KR))
    g.e("s_and_b32 %s, %s, 1" % (sr(S_DH), sr(S_J)))
    stamp(g, 0, 15)
    g.e("s_mov_b32 %s, %s" % (sr(S_T[0]), sr(S_J)))
    g.e("s_mov_b32 %s, 1" % sr(S_T[1]))
    skip = g.newlab("NOQB"); skip2 = g.newlab("NOQB")
    g.e("s_cmp_ge_u32 %s, 1" % sr(S_WAVE))
    g.e("s_cbranch_scc1 %s" % skip)
    q_job(g, False)
    g.e("s_branch %s" % skip2)
    g.lab(skip)
    g.e("s_barrier")
    g.lab(skip2)
    g.e("s_branch L_ROLE_B")

    g.lab("L_A_MAIN")
    g.c("================ ROLE A main ================")
    for i in range(16):
        g.e("v_mov_b32 %s, 0" % v(32 + i))
    g.e("v_mov_b32 v8, 0xff800000")
    g.e("v_mov_b32 v9, 0")
    g.e("v_mov_b32 v7, 1")
    g.e("s_mov_b32 %s, %d" % (sr(S_FIRST), (PRE - D) // 2))
    g.e("s_mov_b32 %s, 1" % sr(S_VALID))
    g.e("s_mov_b32 %s, 0" % sr(S_MODE))
    g.e("s_mov_b32 %s, 0x3db8aa3b" % sr(S_SC))
    Q = 16
    assert D <= 6 and PRE <= 8
    def unit_body(s0):
        o0 = 8 - s0
        sk = g.newlab("GR"); sk2 = g.newlab("GR")
        g.e("s_mov_b64 exec, 1")
        g.e("s_cmp_lg_u32 %s, 0" % sr(S_MODE))
        g.e("s_cbranch_scc1 %s" % sk)
        g.e("ds_add_rtn_u32 v6, v5, v7")
        g.e("s_branch %s" % sk2)
        g.lab(sk)
        g.e("v_mov_b32 v6, 1")
        g.e("buffer_atomic_add v6, off, %s, %s sc0 sc1" % (sr(SRD_WS, 4), sr(S_CTR)))
        g.lab(sk2)
        g.e("s_mov_b64 exec, -1")
        def resolve():
            gl = g.newlab("RG"); fin = g.newlab("RF"); loc = g.newlab("RL")
            g.e("s_waitcnt vmcnt(2) lgkmcnt(0)")
            g.e("v_readfirstlane_b32 %s, v6" % sr(S_NU))
            g.e("s_cmp_lg_u32 %s, 0" % sr(S_MODE))
            g.e("s_cbranch_scc1 %s" % gl)
            g.e("s_add_u32 s98, %s, 8" % sr(S_NU))
            g.e("s_cmp_ge_u32 s98, %s" % sr(S_UEND))
            g.e("s_cselect_b32 %s, 1, 0" % sr(S_MODE))
            g.e("s_cmp_lt_u32 %s, %s" % (sr(S_NU), sr(S_UEND)))
            g.e("s_cbranch_scc1 %s" % fin)
            g.e("s_mov_b64 exec, 1")
            g.e("v_mov_b32 v6, 1")
            g.e("buffer_atomic_add v6, off, %s, %s sc0 sc1" % (sr(SRD_WS, 4), sr(S_CTR)))
            g.e("s_mov_b64 exec, -1")
            g.e("s_waitcnt vmcnt(0)")
            g.e("v_readfirstlane_b32 %s, v6" % sr(S_NU))
            g.lab(gl)
            g.e("s_min_u32 %s, %s, 4096" % (sr(S_NU), sr(S_NU)))
            g.e("s_add_u32 %s, %s, %d" % (sr(S_NU), sr(S_NU), 512 - SH))
            g.e("s_cmp_lt_u32 %s, 512" % sr(S_NU))
            g.e("s_cselect_b32 %s, 1, 0" % sr(S_VALID))
            g.lab(fin)
            g.e("s_lshl_b32 %s, %s, 12" % (sr(S_NXT), sr(S_NU)))
            g.e("s_add_u32 %s, %s, %s" % (sr(S_NXT), sr(S_NXT), sr(S_SLAB)))
        def step_wait(c):
            g.e("s_waitcnt vmcnt(%d)" % (D - 2))
            if 2 * c + D - 1 >= 8:
                sk = g.newlab("W")
                g.e("s_cmp_lg_u32 %s, 0" % sr(S_VALID))
                g.e("s_cbranch_scc1 %s" % sk)
                g.e("s_waitcnt vmcnt(%d)" % min(D - 2, 6 - 2 * c))
                g.lab(sk)
        def step_issue(c):
            p = 2 * c + D
            sk = g.newlab("I"); sk2 = g.newlab("I")
            g.e("s_cmp_eq_u32 %s, 0" % sr(S_FIRST))
            g.e("s_cbranch_scc1 %s" % sk2)
            g.e("s_sub_u32 %s, %s, 1" % (sr(S_FIRST), sr(S_FIRST)))
            g.e("s_branch %s" % sk)
            g.lab(sk2)
            if p < 8:
                a_issue(s0 + p, S_CUR); a_issue(s0 + p + 1, S_CUR)
            else:
                g.e("s_cmp_eq_u32 %s, 0" % sr(S_VALID))
                g.e("s_cbranch_scc1 %s" % sk)
                a_issue(o0 + p - 8, S_NXT); a_issue(o0 + p - 7, S_NXT)
            g.lab(sk)
        for c in range(2):
            step_wait(c)
            ra, rb_ = RING + 4 * s0 + 8 * c, RING + 4 * s0 + 8 * c + 4
            g.e("v_dot2_f32_bf16 %s, %s, %s, 0" % (v(108 + c), v(ra), v(Q)))
            g.e("v_dot2_f32_bf16 %s, %s, %s, 0" % (v(112 + c), v(rb_), v(Q + 4)))
            for j in range(1, 4):
                g.e("v_dot2_f32_bf16 %s, %s, %s, %s" % (v(108 + c), v(ra + j), v(Q + j), v(108 + c)))
                g.e("v_dot2_f32_bf16 %s, %s, %s, %s" % (v(112 + c), v(rb_ + j), v(Q + 4 + j), v(112 + c)))
            if c == 1:
                resolve()
            step_issue(c)
        g.nop(2)
        g.e("v_add_f32 v108, v108, v112")
        g.e("v_add_f32 v109, v109, v113")
        dpp_allreduce16(g, "v_add_f32", [108, 109])
        g.e("v_cvt_pk_bf16_f32 v112, v108, v109")
        g.e("v_lshlrev_b32 v108, 16, v112")
        g.e("v_and_b32 v109, 0xffff0000, v112")
        g.e("v_mul_f32 v108, %s, v108" % sr(S_SC))
        g.e("v_mul_f32 v109, %s, v109" % sr(S_SC))
        g.e("v_max3_f32 v10, v108, v109, v8")
        g.e("v_cmp_gt_f32 vcc, v10, v8")
        g.e("v_sub_f32 v108, v108, v10")
        g.e("v_sub_f32 v109, v109, v10")
        g.e("v_exp_f32 v108, v108")
        g.e("v_exp_f32 v109, v109")
        sk = g.newlab("NORS")
        g.e("s_cbranch_vccz %s" % sk)
        g.e("v_sub_f32 v11, v8, v10")
        g.e("v_exp_f32 v11, v11")
        g.e("v_mov_b32 v8, v10")
        g.e("v_mul_f32 v9, v9, v11")
        for i in range(16):
            g.e("v_mul_f32 %s, %s, v11" % (v(32 + i), v(32 + i)))
        g.lab(sk)
        g.e("v_cvt_pk_bf16_f32 v96, v108, v109")
        g.e("v_add_f32 v9, v9, v108")
        g.e("v_add_f32 v9, v9, v109")
        for c in range(2, 4):
            step_wait(c)
            r0, r1 = RING + 4 * s0 + 8 * c, RING + 4 * s0 + 8 * c + 4
            hf = c - 2
            for j in range(4):
                g.e("v_perm_b32 %s, %s, %s, %s" % (v(100 + 2 * j), v(r1 + j), v(r0 + j), sr(S_PLO)))
                g.e("v_perm_b32 %s, %s, %s, %s" % (v(101 + 2 * j), v(r1 + j), v(r0 + j), sr(S_PHI)))
            step_issue(c)
            for e_ in range(8):
                g.e("v_dot2_f32_bf16 %s, %s, v96, %s" % (v(32 + 8 * hf + e_), v(100 + e_), v(32 + 8 * hf + e_)))
        g.e("s_cmp_eq_u32 %s, 0" % sr(S_VALID))
        g.e("s_cbranch_scc1 A_DONE")
        g.e("s_mov_b32 %s, %s" % (sr(S_CUR), sr(S_NXT)))
    g.lab("A_LOOP")
    unit_body(0)
    unit_body(8)
    g.e("s_branch A_LOOP")
    g.lab("A_DONE")
    g.e("s_waitcnt lgkmcnt(0)")
    stamp(g, 2, 15)
    g.e("v_mov_b32 v10, v8")
    cross_rows(g, "v_max_f32", 10, 12)
    g.e("v_sub_f32 v11, v8, v10")
    g.e("v_exp_f32 v11, v11")
    g.nop(0)
    g.e("v_mul_f32 v9, v9, v11")
    for i in range(16):
        g.e("v_mul_f32 %s, %s, v11" % (v(32 + i), v(32 + i)))
    g.e("v_mov_b32 v11, v9")
    cross_rows(g, "v_add_f32", 11, 12)
    transpose_reduce16(g, 32)
    g.e("v_lshrrev_b32 v12, 1, %s" % v(V_G))
    g.e("v_lshlrev_b32 v12, 9, v12")
    g.e("v_and_b32 v13, 1, %s" % v(V_G))
    g.e("v_lshl_add_u32 v12, v13, 4, v12")
    g.e("v_lshl_add_u32 v12, %s, 5, v12" % v(V_L16))
    g.e("s_lshl_b32 s98, %s, 10" % sr(S_WAVE))
    g.e("v_add_u32 v12, s98, v12")
    g.e("ds_write_b128 v12, %s offset:%d" % (v(32, 4), L_AO))
    g.e("s_lshl_b32 s98, %s, 3" % sr(S_WAVE))
    g.e("v_mov_b32 v12, s98")
    g.e("s_mov_b64 exec, 1")
    g.e("ds_write_b64 v12, v[10:11] offset:%d" % L_AM)
    g.e("s_mov_b64 exec, -1")
    g.e("s_waitcnt lgkmcnt(0)")
    g.e("s_barrier")
    skip = g.newlab("ACOMB")
    g.e("s_cmp_ge_u32 %s, 4" % sr(S_WAVE))
    g.e("s_cbranch_scc1 %s" % skip)
    g.e("v_lshlrev_b32 v12, 2, v0")
    g.e("v_mov_b32 v13, 0")
    for w in range(8):
        g.e("ds_read_b32 %s, v12 offset:%d" % (v(32 + w), L_AO + w * 1024))
    for x in range(4):
        g.e("ds_read_b128 %s, v13 offset:%d" % (v(48 + 4 * x, 4), L_AM + 16 * x))
    g.e("s_waitcnt lgkmcnt(0)")
    g.e("v_max3_f32 v10, v48, v50, v52")
    g.e("v_max3_f32 v10, v10, v54, v56")
    g.e("v_max3_f32 v10, v10, v58, v60")
    g.e("v_max_f32 v10, v10, v62")
    for w in range(8):
        g.e("v_sub_f32 %s, %s, v10" % (v(48 + 2 * w), v(48 + 2 * w)))
    for w in range(8):
        g.e("v_exp_f32 %s, %s" % (v(48 + 2 * w), v(48 + 2 * w)))
    g.nop(0)
    g.e("v_mul_f32 v14, v32, v48")
    g.e("v_mul_f32 v11, v49, v48")
    for w in range(1, 8):
        g.e("v_fmac_f32 v14, %s, %s" % (v(32 + w), v(48 + 2 * w)))
        g.e("v_fmac_f32 v11, %s, %s" % (v(49 + 2 * w), v(48 + 2 * w)))
    g.e("s_lshl_b32 s98, %s, 12" % sr(S_CU))
    g.e("s_add_u32 s98, s98, %d" % WS_AP)
    g.e("v_mov_b32 v15, %s" % sr(S_TAG))
    g.e("v_lshlrev_b32 v12, 3, v0")
    g.e("buffer_store_dwordx2 v[14:15], v12, %s, s98 offen sc1" % sr(SRD_WS, 4))
    g.e("s_cmp_lg_u32 %s, 0" % sr(S_WAVE))
    g.e("s_cbranch_scc1 %s" % skip)
    g.e("v_mov_b32 v32, v10")
    g.e("v_mov_b32 v33, %s" % sr(S_TAG))
    g.e("v_mov_b32 v34, v11")
    g.e("v_mov_b32 v35, %s" % sr(S_TAG))
    g.e("s_mov_b64 exec, 1")
    g.e("buffer_store_dwordx4 v[32:35], off, %s, s98 offset:2048 sc1" % sr(SRD_WS, 4))
    g.e("s_mov_b64 exec, -1")
    g.lab(skip)
    flag_store(g, WS_AF, S_CU, 0)
    stamp(g, 3, 15)
    g.e("s_cmp_ge_u32 %s, 8" % sr(S_J))
    g.e("s_cbranch_scc1 L_END")
    g.e("s_cmp_ge_u32 %s, 4" % sr(S_J))
    g.e("s_cbranch_scc1 L_FINAL")
    g.c("---- A combine (CUs j<4): rows h*256+64j ----")
    preperm(g, 160, 8)
    g.e("s_mul_i32 s99, %s, 48" % sr(S_H))
    g.e("s_add_u32 s99, s99, %d" % WS_AF)
    poll_flags(g, "s99", 12, sleep=1)
    stamp(g, 4, 15)
    skip = g.newlab("ACB")
    g.e("s_cmp_ge_u32 %s, 2" % sr(S_WAVE))
    g.e("s_cbranch_scc1 %s" % skip)
    lp = g.newlab("ACL"); ok = g.newlab("ACOK")
    g.e("s_mov_b32 %s, 0" % sr(S_SPIN))
    g.e("s_lshl_b32 s99, %s, 9" % sr(S_J))
    g.e("v_lshlrev_b32 v12, 3, %s" % v(V_LANE))
    g.e("v_add_u32 v12, s99, v12")
    g.lab(lp)
    g.e("s_mul_i32 s98, %s, 12" % sr(S_H))
    g.e("s_mul_i32 s99, %s, 6" % sr(S_WAVE))
    g.e("s_add_u32 s98, s98, s99")
    g.e("s_lshl_b32 s98, s98, 12")
    g.e("s_add_u32 s98, s98, %d" % WS_AP)
    for s_ in range(6):
        g.e("buffer_load_dwordx2 %s, v12, %s, s98 offen sc1" % (v(32 + 2 * s_, 2), sr(SRD_WS, 4)))
        g.e("buffer_load_dwordx4 %s, off, %s, s98 offset:2048 sc1" % (v(80 + 4 * s_, 4), sr(SRD_WS, 4)))
        g.e("s_add_u32 s98, s98, 4096")
    g.e("s_waitcnt vmcnt(0)")
    g.e("v_xor_b32 v13, %s, v33" % sr(S_TAG))
    for r_ in list(range(35, 44, 2)) + list(range(81, 104, 2)):
        g.e("v_xor_b32 v14, %s, %s" % (sr(S_TAG), v(r_)))
        g.e("v_or_b32 v13, v13, v14")
    g.e("v_cmp_eq_u32 vcc, 0, v13")
    g.e("s_cmp_eq_u64 vcc, exec")
    g.e("s_cbranch_scc1 %s" % ok)
    g.e("s_add_u32 %s, %s, 1" % (sr(S_SPIN), sr(S_SPIN)))
    g.e("s_cmp_gt_u32 %s, %d" % (sr(S_SPIN), SPIN_MAX))
    g.e("s_cbranch_scc0 %s" % lp)
    g.lab(ok)
    g.e("v_max3_f32 v10, v80, v84, v88")
    g.e("v_max3_f32 v10, v10, v92, v96")
    g.e("v_max_f32 v10, v10, v100")
    for s_ in range(6):
        g.e("v_sub_f32 %s, %s, v10" % (v(80 + 4 * s_), v(80 + 4 * s_)))
    for s_ in range(6):
        g.e("v_exp_f32 %s, %s" % (v(80 + 4 * s_), v(80 + 4 * s_)))
    g.nop(0)
    g.e("v_mul_f32 v14, v32, v80")
    g.e("v_mul_f32 v11, v82, v80")
    for s_ in range(1, 6):
        g.e("v_fmac_f32 v14, %s, %s" % (v(32 + 2 * s_), v(80 + 4 * s_)))
        g.e("v_fmac_f32 v11, %s, %s" % (v(82 + 4 * s_), v(80 + 4 * s_)))
    g.e("v_rcp_f32 v11, v11")
    g.nop(0)
    g.e("v_mul_f32 v14, v14, v11")
    g.e("v_cvt_pk_bf16_f32 v14, v14, v14")
    g.e("v_lshlrev_b32 v12, 1, v0")
    g.e("ds_write_b16 v12, v14 offset:%d" % L_OA)
    g.lab(skip)
    g.e("s_waitcnt lgkmcnt(0)")
    g.e("s_barrier")
    out_gemv(g, 160, 8, L_OA, 128, 48, 32)
    g.e("s_lshl_b32 %s, %s, 2" % (sr(S_YI), sr(S_H)))
    g.e("s_add_u32 %s, %s, %s" % (sr(S_YI), sr(S_YI), sr(S_J)))
    g.e("s_branch L_YPUB")

    g.lab("L_ROLE_B")
    g.c("================ ROLE B main ================")
    if "--noB" in sys.argv:
        g.e("s_branch L_END")
    for i in range(4):
        g.e("s_lshl_b32 s98, %s, 2" % sr(S_WAVE))
        g.e("s_add_u32 s98, s98, %d" % i)
        g.e("s_and_b32 s98, s98, 15")
        g.e("s_and_b32 s99, s98, 7")
        g.e("s_lshl_b32 s99, s99, 1")
        g.e("s_lshr_b32 s98, s98, 3")
        g.e("s_or_b32 s98, s98, s99")
        g.e("v_xor_b32 %s, s98, %s" % (v(8 + i), v(V_LANE)))
        g.e("v_lshlrev_b32 %s, 4, %s" % (v(8 + i), v(8 + i)))
    g.e("s_lshl_b32 s98, %s, 12" % sr(S_BB))
    g.e("s_lshl_b32 s99, %s, 7" % sr(S_KR))
    g.e("s_add_u32 s98, s98, s99")
    g.e("s_lshl_b32 s99, %s, 2" % sr(S_WAVE))
    g.e("s_add_u32 s98, s98, s99")
    g.e("s_lshl_b32 %s, s98, 11" % sr(S_CKV))
    g.e("s_lshl_b32 %s, %s, 13" % (sr(S_LW), sr(S_WAVE)))
    def dma_tile(t):
        buf = L_TILE0 if t % 2 == 0 else L_TILE1
        for i in range(4):
            for hf in range(2):
                g.e("s_add_u32 s98, %s, %d" % (sr(S_LW), buf + i * 2048 + hf * 1024))
                g.e("s_mov_b32 m0, s98")
                g.e("s_add_u32 s99, %s, %d" % (sr(S_CKV), t * 65536 + i * 2048 + hf * 1024))
                g.vm("dma%d" % t, "buffer_load_dwordx4 %s, %s, s99 offen nt lds" % (v(8 + i), sr(SRD_K, 4)))
    dma_tile(0)
    dma_tile(1)
    for t in (2, 3):
        for i in range(4):
            for hf in range(2):
                g.e("s_add_u32 s99, %s, %d" % (sr(S_CKV), t * 65536 + i * 2048 + hf * 1024))
                g.vm("rt%d" % t, "buffer_load_dwordx4 %s, %s, %s, s99 offen nt" % (v(192 + 32 * (t - 2) + 4 * (2 * i + hf), 4), v(8 + i), sr(SRD_K, 4)))
    g.e("v_lshlrev_b32 v31, 4, %s" % v(V_LANE))
    g.e("v_add_u32 v31, %s, v31" % sr(S_LW))
    UV = 192
    uvn = [0]
    def uv_setup():
        g.e("v_lshlrev_b32 v30, 17, %s" % v(V_G))
        g.e("v_lshl_add_u32 v30, %s, 4, v30" % v(V_L16))
        g.e("s_lshr_b32 s98, %s, 1" % sr(S_J))
        g.e("s_lshl_b32 s98, s98, 9")
        g.e("s_lshl_b32 s99, %s, 6" % sr(S_WAVE))
        g.e("s_add_u32 s98, s98, s99")
        g.e("s_lshl_b32 s98, s98, 13")
        g.e("s_lshl_b32 s99, %s, 9" % sr(S_H))
        g.e("s_add_u32 s98, s98, s99")
        g.e("s_lshl_b32 s99, %s, 8" % sr(S_DH))
        g.e("s_add_u32 %s, s98, s99" % sr(S_QU))
    def uv_some(k):
        for _ in range(k):
            n = uvn[0]
            if n >= 16:
                return
            g.e("buffer_load_dwordx4 %s, v30, %s, %s offen nt" % (v(UV + 4 * n, 4), sr(SRD_V, 4), sr(S_QU)))
            g.e("s_add_u32 %s, %s, 8192" % (sr(S_QU), sr(S_QU)))
            uvn[0] += 1
    uv_setup()
    g.e("v_and_b32 v12, 7, %s" % v(V_L16))
    g.e("v_lshlrev_b32 v12, 1, v12")
    g.e("v_lshrrev_b32 v13, 3, %s" % v(V_L16))
    g.e("v_or_b32 v12, v12, v13")
    g.e("v_lshlrev_b32 v13, 1, %s" % v(V_G))
    g.e("v_xor_b32 v12, v12, v13")
    g.e("s_lshr_b32 s98, %s, 2" % sr(S_WAVE))
    g.e("s_lshl_b32 s98, s98, 15")
    g.e("s_and_b32 s99, %s, 3" % sr(S_WAVE))
    g.e("s_lshl_b32 s99, s99, 9")
    g.e("s_add_u32 s98, s98, s99")
    g.e("v_lshlrev_b32 v13, 11, %s" % v(V_L16))
    g.e("v_add_u32 v13, s98, v13")
    for x, X in enumerate((0, 1, 8, 9)):
        g.e("v_xor_b32 v14, %d, v12" % X)
        g.e("v_lshl_add_u32 %s, v14, 4, v13" % v(4 + x))
    g.e("v_lshrrev_b32 v12, 2, %s" % v(V_L16))
    g.e("v_lshl_add_u32 v12, %s, 2, v12" % v(V_G))
    g.e("v_and_b32 v13, 7, v12")
    g.e("v_lshlrev_b32 v13, 1, v13")
    g.e("v_lshrrev_b32 v14, 3, v12")
    g.e("v_or_b32 v13, v13, v14")
    g.e("v_bfe_u32 v14, %s, 1, 1" % v(V_L16))
    g.e("v_xor_b32 v13, v13, v14")
    g.e("v_lshlrev_b32 v12, 11, v12")
    g.e("v_and_b32 v14, 1, %s" % v(V_L16))
    g.e("v_lshl_add_u32 v12, v14, 3, v12")
    g.e("s_lshl_b32 s98, %s, 8" % sr(S_WAVE))
    g.e("v_add_u32 v12, s98, v12")
    for ct in range(8):
        g.e("v_xor_b32 v14, %d, v13" % (2 * ct))
        g.e("v_lshl_add_u32 %s, v14, 4, v12" % v(16 + ct))
    g.e("v_lshlrev_b32 v29, 4, %s" % v(V_LANE))
    g.e("v_add_u32 v29, %d, v29" % L_SX)
    g.e("s_lshl_b32 s98, %s, 10" % sr(S_WAVE))
    g.e("v_add_u32 v28, s98, v29")
    ACC = 32
    for i in range(32):
        g.e("v_mov_b32 %s, 0" % v(ACC + i))
    g.e("v_mov_b32 v124, 0xff800000")
    g.e("v_mov_b32 v125, 0")
    g.e("s_mov_b32 %s, 0x3db8aa3b" % sr(S_SC))
    g.e("s_waitcnt vmcnt(32)")
    g.e("v_readfirstlane_b32 %s, v127" % sr(S_TAG))
    g.e("s_add_u32 %s, %s, 1" % (sr(S_TAG), sr(S_TAG)))
    stamp(g, 2, 15)
    if "--ckvtest" in sys.argv:
        g.e("s_waitcnt vmcnt(16)")
        stamp(g, 3, 15)
        g.e("s_waitcnt vmcnt(0)")
        stamp(g, 4, 15)
        g.e("s_branch L_END")
    poll_flags(g, WS_QF, 192, pw=4)
    stamp(g, 3, 15)

    QF = 128
    g.c("---- ATT B ----")
    g.e("v_lshlrev_b32 v12, 4, %s" % v(V_LANE))
    g.e("s_and_b32 s98, %s, 3" % sr(S_WAVE))
    g.e("s_lshl_b32 s98, s98, 14")
    g.e("s_lshl_b32 s99, %s, 16" % sr(S_BB))
    g.e("s_add_u32 s98, s98, s99")
    g.e("s_add_u32 s98, s98, %d" % WS_QH)
    for ks in range(8):
        g.vm("qf", "buffer_load_dwordx4 %s, v12, %s, s98 offen offset:%d sc1" % (v(QF + 8 * ks, 4), sr(SRD_WS, 4), (ks & 1) * 2048))
        g.vm("qf", "buffer_load_dwordx4 %s, v12, %s, s98 offen offset:%d sc1" % (v(QF + 8 * ks + 4, 4), sr(SRD_WS, 4), (ks & 1) * 2048 + 1024))
        if ks & 1:
            g.e("s_add_u32 s98, s98, 4096")
    g.wait("qf")
    stamp(g, 16, 15)
    for t in range(4):
        g.c("tile %d" % t)
        if t: stamp(g, 16 + 3 * t, 15)
        g.e("s_waitcnt lgkmcnt(0)")
        g.e("s_barrier")
        if t >= 1 and t + 1 < 4:
            if t == 2:
                g.e("v_add_u32 v31, 0x10000, v31")
            for x in range(8):
                g.e("ds_write_b128 v31, %s offset:%d" % (v(192 + 32 * (t - 1) + 4 * x, 4), x * 1024))
        if t >= 1:
            op = "v_add_u32" if t % 2 == 1 else "v_subrev_u32"
            for r_ in list(range(4, 8)) + list(range(16, 24)):
                g.e("%s %s, 0x10000, %s" % (op, v(r_), v(r_)))
        if t >= 2: uv_some(2)
        for i in range(8):
            g.e("v_mov_b32 %s, 0" % v(80 + i))
        for ks in range(8):
            g.e("ds_read_b128 %s, %s offset:%d" % (v(88 + 4 * ks, 4), v(4 + (ks & 3)), (ks >> 2) * 256))
        for ks in range(8):
            g.e("s_waitcnt lgkmcnt(%d)" % (7 - ks))
            g.e("v_mfma_f32_16x16x32_bf16 %s, %s, %s, %s" % (v(80, 4), v(88 + 4 * ks, 4), v(QF + 8 * ks, 4), v(80, 4)))
            g.e("v_mfma_f32_16x16x32_bf16 %s, %s, %s, %s" % (v(84, 4), v(88 + 4 * ks, 4), v(QF + 8 * ks + 4, 4), v(84, 4)))
        g.nop(7)
        g.nop(1)
        for i in range(4):
            g.e("v_add_f32 %s, %s, %s" % (v(80 + i), v(80 + i), v(84 + i)))
        g.e("ds_write_b128 v28, %s" % v(80, 4))
        if t >= 2: uv_some(2)
        g.e("s_waitcnt lgkmcnt(0)")
        stamp(g, 17 + 3 * t, 15)
        g.e("s_barrier")
        stamp(g, 18 + 3 * t, 15)
        for x in range(8):
            g.e("ds_read_b128 %s, v29 offset:%d" % (v(88 + 4 * x, 4), x * 1024))
        g.e("s_waitcnt lgkmcnt(0)")
        for st in range(2):
            for i in range(4):
                a = 88 + 16 * st + i
                g.e("v_add_f32 %s, %s, %s" % (v(a), v(a), v(a + 4)))
                g.e("v_add_f32 %s, %s, %s" % (v(a + 8), v(a + 8), v(a + 12)))
                g.e("v_add_f32 %s, %s, %s" % (v(a), v(a), v(a + 8)))
                g.e("v_mul_f32 %s, %s, %s" % (v(80 + 4 * st + i), sr(S_SC), v(a)))
        if t >= 2: uv_some(2)
        g.e("v_max3_f32 v12, v80, v81, v82")
        g.e("v_max3_f32 v12, v12, v83, v84")
        g.e("v_max3_f32 v12, v12, v85, v86")
        g.e("v_max3_f32 v12, v12, v87, v124")
        cross_rows(g, "v_max_f32", 12, 13)
        g.e("v_sub_f32 v126, v124, v12")
        g.e("v_exp_f32 v126, v126")
        g.e("v_mov_b32 v124, v12")
        for i in range(8):
            g.e("v_sub_f32 %s, %s, v12" % (v(80 + i), v(80 + i)))
        for i in range(8):
            g.e("v_exp_f32 %s, %s" % (v(80 + i), v(80 + i)))
        g.e("v_mul_f32 v125, v125, v126")
        for i in range(8):
            g.e("v_add_f32 v125, v125, %s" % v(80 + i))
        for k in range(4):
            g.e("v_cvt_pk_bf16_f32 %s, %s, %s" % (v(120 + k), v(80 + 2 * k), v(81 + 2 * k)))
        for ct in range(8):
            g.e("ds_read_b64_tr_b16 %s, %s" % (v(88 + 4 * ct, 2), v(16 + ct)))
            g.e("ds_read_b64_tr_b16 %s, %s offset:32768" % (v(90 + 4 * ct, 2), v(16 + ct)))
        if t >= 2: uv_some(2)
        for i in range(32):
            g.e("v_mul_f32 %s, %s, v126" % (v(ACC + i), v(ACC + i)))
        for ct in range(8):
            g.e("s_waitcnt lgkmcnt(%d)" % (14 - 2 * ct))
            g.e("v_mfma_f32_16x16x32_bf16 %s, %s, %s, %s" % (v(ACC + 4 * ct, 4), v(88 + 4 * ct, 4), v(120, 4), v(ACC + 4 * ct, 4)))
    g.nop(7)
    g.nop(1)
    stamp(g, 4, 15)
    g.e("s_mul_i32 s98, %s, 4352" % sr(S_WAVE))
    g.e("s_movk_i32 s99, 272")
    g.e("v_mul_lo_u32 v12, %s, s99" % v(V_L16))
    g.e("v_lshl_add_u32 v12, %s, 3, v12" % v(V_G))
    g.e("v_add_u32 v12, s98, v12")
    for ct in range(8):
        g.e("v_cvt_pk_bf16_f32 %s, %s, %s" % (v(88 + 2 * ct), v(ACC + 4 * ct), v(ACC + 4 * ct + 1)))
        g.e("v_cvt_pk_bf16_f32 %s, %s, %s" % (v(89 + 2 * ct), v(ACC + 4 * ct + 2), v(ACC + 4 * ct + 3)))
        g.e("ds_write_b64 v12, %s offset:%d" % (v(88 + 2 * ct, 2), ct * 32))
    g.e("v_mul_lo_u32 v12, %s, s99" % v(V_G))
    g.e("v_lshl_add_u32 v12, %s, 4, v12" % v(V_L16))
    g.e("v_add_u32 v12, s98, v12")
    g.e("s_waitcnt lgkmcnt(0)")
    for x in range(4):
        g.e("ds_read_b128 %s, v12 offset:%d" % (v(88 + 4 * x, 4), x * 4 * 272))
    g.e("v_lshlrev_b32 v12, 11, %s" % v(V_G))
    g.e("v_lshl_add_u32 v12, %s, 4, v12" % v(V_L16))
    g.e("s_sub_u32 s98, %s, 192" % sr(S_CU))
    g.e("s_lshl_b32 s98, s98, 15")
    g.e("s_lshl_b32 s99, %s, 8" % sr(S_WAVE))
    g.e("s_add_u32 s98, s98, s99")
    g.e("s_add_u32 s98, s98, %d" % WS_PC)
    for x in range(4):
        g.e("s_waitcnt lgkmcnt(%d)" % (3 - x))
        g.e("buffer_store_dwordx4 %s, v12, %s, s98 offen sc1" % (v(88 + 4 * x, 4), sr(SRD_WS, 4)))
        g.e("s_add_u32 s98, s98, 8192")
    cross_rows(g, "v_add_f32", 125, 13)
    skip = g.newlab("PST")
    g.e("s_cmp_lg_u32 %s, 0" % sr(S_WAVE))
    g.e("s_cbranch_scc1 %s" % skip)
    g.e("v_lshlrev_b32 v12, 9, %s" % v(V_L16))
    g.e("s_sub_u32 s98, %s, 192" % sr(S_CU))
    g.e("s_lshl_b32 s98, s98, 3")
    g.e("s_add_u32 s98, s98, %d" % WS_PS)
    g.e("s_mov_b64 exec, 0xffff")
    g.e("buffer_store_dwordx2 %s, v12, %s, s98 offen sc1" % (v(124, 2), sr(SRD_WS, 4)))
    g.e("s_mov_b64 exec, -1")
    g.lab(skip)
    g.waitall()
    g.e("s_barrier")
    flag_store(g, WS_PF, S_CU, 192)
    stamp(g, 5, 15)
    def wo_b():
        g.e("s_lshl_b32 %s, %s, 8" % (sr(S_T[1]), sr(S_H)))
        g.e("s_lshl_b32 %s, %s, 7" % (sr(S_T[2]), sr(S_DH)))
        g.e("s_add_u32 %s, %s, %s" % (sr(S_T[1]), sr(S_T[1]), sr(S_T[2])))
        load_rows896(g, SRD_WO, S_T[1], 16, 128)
    skip = g.newlab("WOB")
    g.e("s_cmp_eq_u32 %s, 0" % sr(S_WAVE))
    g.e("s_cbranch_scc1 %s" % skip)
    wo_b()
    g.lab(skip)
    g.c("---- CTX ----")
    poll_flags(g, WS_PF, 64)
    stamp(g, 6, 15)
    g.q = []
    g.e("v_lshlrev_b32 v12, 3, %s" % v(V_LANE))
    g.e("s_lshl_b32 s98, %s, 9" % sr(S_H))
    g.e("s_add_u32 s98, s98, %d" % WS_PS)
    g.e("buffer_load_dwordx2 v[14:15], v12, %s, s98 offen sc1" % sr(SRD_WS, 4))
    g.e("v_lshlrev_b32 v13, 4, %s" % v(V_LANE))
    g.e("s_lshl_b32 s98, %s, 18" % sr(S_WAVE))
    g.e("s_lshl_b32 s99, %s, 11" % sr(S_H))
    g.e("s_add_u32 s98, s98, s99")
    g.e("s_lshr_b32 s99, %s, 1" % sr(S_J))
    g.e("s_lshl_b32 s99, s99, 10")
    g.e("s_add_u32 s98, s98, s99")
    g.e("s_add_u32 s98, s98, %d" % WS_PC)
    for i in range(8):
        g.e("buffer_load_dwordx4 %s, v13, %s, s98 offen sc1" % (v(64 + 4 * i, 4), sr(SRD_WS, 4)))
        g.e("s_add_u32 s98, s98, 32768")
    g.e("s_waitcnt vmcnt(8)")
    g.e("v_mov_b32 v12, v14")
    dpp_allreduce16(g, "v_max_f32", [12])
    cross_rows(g, "v_max_f32", 12, 13, both=False)
    g.e("v_sub_f32 v12, v14, v12")
    g.e("v_exp_f32 v12, v12")
    g.nop(0)
    g.e("v_mul_f32 v13, v12, v15")
    dpp_allreduce16(g, "v_add_f32", [13])
    cross_rows(g, "v_add_f32", 13, 14, both=False)
    g.e("v_rcp_f32 v13, v13")
    g.nop(0)
    g.e("v_mul_f32 v12, v12, v13")
    g.e("s_lshl_b32 s98, %s, 3" % sr(S_WAVE))
    g.nop(1)
    for i in range(8):
        g.e("v_readlane_b32 %s, v12, s98" % sr(S_O + i))
        g.e("s_add_u32 s98, s98, 1")
    for j in range(8):
        g.e("v_mov_b32 %s, 0" % v(32 + j))
    for i in range(8):
        g.e("s_waitcnt vmcnt(%d)" % (7 - i))
        for j in range(4):
            g.e("v_lshlrev_b32 v12, 16, %s" % v(64 + 4 * i + j))
            g.e("v_and_b32 v13, 0xffff0000, %s" % v(64 + 4 * i + j))
            g.e("v_fmac_f32 %s, %s, v12" % (v(32 + 2 * j), sr(S_O + i)))
            g.e("v_fmac_f32 %s, %s, v13" % (v(33 + 2 * j), sr(S_O + i)))
    skip = g.newlab("WOB0")
    g.e("s_cmp_lg_u32 %s, 0" % sr(S_WAVE))
    g.e("s_cbranch_scc1 %s" % skip)
    wo_b()
    g.lab(skip)
    g.e("s_and_b32 s98, %s, 3" % sr(S_WAVE))
    g.e("s_lshl_b32 s98, s98, 12")
    g.e("s_lshr_b32 s99, %s, 2" % sr(S_WAVE))
    g.e("s_lshl_b32 s99, s99, 11")
    g.e("s_add_u32 s98, s98, s99")
    g.e("s_add_u32 s98, s98, %d" % L_CX)
    g.e("v_lshlrev_b32 v13, 5, %s" % v(V_LANE))
    g.e("v_add_u32 v13, s98, v13")
    g.e("ds_write_b128 v13, %s" % v(32, 4))
    g.e("ds_write_b128 v13, %s offset:16" % v(36, 4))
    g.e("s_waitcnt lgkmcnt(0)")
    g.e("s_barrier")
    g.e("v_lshlrev_b32 v12, 3, v0")
    g.e("v_add_u32 v12, %d, v12" % L_CX)
    for x in range(4):
        g.e("ds_read_b64 %s, v12 offset:%d" % (v(32 + 2 * x, 2), x * 4096))
    g.e("s_waitcnt lgkmcnt(0)")
    g.e("v_add_f32 v32, v32, v34")
    g.e("v_add_f32 v33, v33, v35")
    g.e("v_add_f32 v36, v36, v38")
    g.e("v_add_f32 v37, v37, v39")
    g.e("v_add_f32 v32, v32, v36")
    g.e("v_add_f32 v33, v33, v37")
    g.e("v_cvt_pk_bf16_f32 v32, v32, v33")
    g.e("v_lshlrev_b32 v12, 2, v0")
    g.e("v_add_u32 v12, %d, v12" % L_CB)
    g.e("ds_write_b32 v12, v32")
    g.e("s_waitcnt lgkmcnt(0)")
    g.e("s_barrier")
    g.e("v_lshlrev_b32 v12, 5, %s" % v(V_G))
    g.e("s_lshl_b32 s98, %s, 7" % sr(S_WAVE))
    g.e("s_add_u32 s98, s98, %d" % L_CB)
    g.e("v_add_u32 v12, s98, v12")
    for b in range(2):
        g.e("ds_read_b128 %s, v12 offset:%d" % (v(64 + 8 * b, 4), b * 1024))
        g.e("ds_read_b128 %s, v12 offset:%d" % (v(68 + 8 * b, 4), b * 1024 + 16))
    for i in range(16):
        g.e("v_mov_b32 %s, 0" % v(32 + i))
    g.e("s_waitcnt lgkmcnt(0)")
    for k in range(8):
        r0, r1 = UV + 8 * k, UV + 8 * k + 4
        for j in range(4):
            g.e("v_perm_b32 %s, %s, %s, %s" % (v(100 + 2 * j), v(r1 + j), v(r0 + j), sr(S_PLO)))
            g.e("v_perm_b32 %s, %s, %s, %s" % (v(101 + 2 * j), v(r1 + j), v(r0 + j), sr(S_PHI)))
        for b in range(2):
            for e_ in range(8):
                g.e("v_dot2_f32_bf16 %s, %s, %s, %s" % (v(32 + 8 * b + e_), v(100 + e_), v(64 + 8 * b + k), v(32 + 8 * b + e_)))
    g.nop(3)
    transpose_reduce16(g, 32)
    g.e("v_lshrrev_b32 v12, 1, %s" % v(V_G))
    g.e("v_lshlrev_b32 v12, 9, v12")
    g.e("v_and_b32 v13, 1, %s" % v(V_G))
    g.e("v_lshl_add_u32 v12, v13, 4, v12")
    g.e("v_lshl_add_u32 v12, %s, 5, v12" % v(V_L16))
    g.e("s_lshl_b32 s98, %s, 10" % sr(S_WAVE))
    g.e("v_add_u32 v12, s98, v12")
    g.e("ds_write_b128 v12, %s offset:%d" % (v(32, 4), L_OX))
    g.e("s_waitcnt lgkmcnt(0)")
    g.e("s_barrier")
    skip = g.newlab("OBS")
    g.e("s_cmp_ge_u32 %s, 4" % sr(S_WAVE))
    g.e("s_cbranch_scc1 %s" % skip)
    g.e("v_lshlrev_b32 v12, 2, v0")
    for w in range(8):
        g.e("ds_read_b32 %s, v12 offset:%d" % (v(32 + w), L_OX + w * 1024))
    g.e("s_waitcnt lgkmcnt(0)")
    for w in range(1, 8):
        g.e("v_add_f32 v32, v32, %s" % v(32 + w))
    g.e("v_cvt_pk_bf16_f32 v32, v32, v32")
    g.e("v_lshlrev_b32 v12, 1, v0")
    g.e("ds_write_b16 v12, v32 offset:%d" % L_OB)
    g.lab(skip)
    g.e("s_waitcnt lgkmcnt(0)")
    g.e("s_barrier")
    g.e("s_waitcnt vmcnt(0)")
    preperm(g, 128, 16)
    out_gemv(g, 128, 16, L_OB, 256, 48, 32)
    stamp(g, 7, 15)

    g.e("s_sub_u32 %s, %s, 128" % (sr(S_YI), sr(S_CU)))
    g.lab("L_YPUB")
    g.nop(3)
    g.e("s_mul_i32 s98, %s, 3584" % sr(S_WAVE))
    g.e("s_add_u32 s98, s98, %d" % L_YX)
    g.e("v_lshlrev_b32 v12, 5, %s" % v(V_LANE))
    g.e("v_add_u32 v12, s98, v12")
    g.e("s_mov_b32 exec_hi, 0x00ffffff")
    for b in range(2):
        for hh in range(2):
            g.e("ds_write_b128 v12, %s offset:%d" % (v(48 + b * 8 + hh * 4, 4), b * 1792 + hh * 16))
    g.e("s_mov_b32 exec_hi, -1")
    g.e("s_waitcnt lgkmcnt(0)")
    g.e("s_barrier")
    skip = g.newlab("YS")
    g.e("v_cmp_gt_u32 vcc, 224, v0")
    g.e("s_and_saveexec_b64 %s, vcc" % sr(S_EX, 2))
    g.e("s_cbranch_execz %s" % skip)
    g.e("v_lshlrev_b32 v12, 4, v0")
    g.e("v_add_u32 v13, %d, v12" % L_YX)
    for wv in range(8):
        g.e("ds_read_b128 %s, v13 offset:%d" % (v(64 + wv * 4, 4), wv * 3584))
    g.e("s_waitcnt lgkmcnt(0)")
    for wv in range(1, 8):
        for j in range(4):
            g.e("v_add_f32 %s, %s, %s" % (v(64 + j), v(64 + j), v(64 + wv * 4 + j)))
    g.e("s_mul_i32 s98, %s, 7168" % sr(S_YI))
    g.e("s_add_u32 s98, s98, %d" % WS_Y)
    g.e("v_lshlrev_b32 v12, 5, v0")
    for j in range(4):
        g.e("v_mov_b32 %s, %s" % (v(72 + 2 * j), v(64 + j)))
        g.e("v_mov_b32 %s, %s" % (v(73 + 2 * j), sr(S_TAG)))
    g.e("buffer_store_dwordx4 v[72:75], v12, %s, s98 offen sc1" % sr(SRD_WS, 4))
    g.e("buffer_store_dwordx4 v[76:79], v12, %s, s98 offen offset:16 sc1" % sr(SRD_WS, 4))
    g.lab(skip)
    g.e("s_mov_b64 exec, %s" % sr(S_EX, 2))
    flag_store(g, WS_YF, S_YI, 0)
    stamp(g, 9, 15)
    g.e("s_branch L_END")

    g.lab("L_FINAL")
    g.c("---- FINAL ----")
    g.e("s_lshl_b32 %s, %s, 2" % (sr(S_YI), sr(S_H)))
    g.e("s_add_u32 %s, %s, %s" % (sr(S_YI), sr(S_YI), sr(S_J)))
    g.e("s_sub_u32 %s, %s, 4" % (sr(S_YI), sr(S_YI)))
    g.e("s_cmp_ge_u32 %s, 56" % sr(S_YI))
    g.e("s_cbranch_scc1 L_END")
    poll_flags(g, WS_YF, 128, sleep=1)
    stamp(g, 10, 15)
    g.e("s_mov_b32 s98, %s" % sr(S_YI))
    g.e("s_cmp_ge_u32 s98, 28")
    g.e("s_cselect_b32 s99, 1, 0")
    g.e("s_mul_i32 s100, s99, 28")
    g.e("s_sub_u32 s98, s98, s100")
    g.e("s_mul_i32 s100, s99, 3584")
    g.e("s_lshl_b32 s101, s98, 7")
    g.e("s_add_u32 s100, s100, s101")
    g.e("s_add_u32 s100, s100, %d" % WS_Y)
    g.e("v_lshrrev_b32 v12, 3, v0")
    g.e("v_bfe_u32 v13, v0, 2, 1")
    g.e("v_lshl_add_u32 v12, v13, 6, v12")
    g.e("s_movk_i32 s101, 7168")
    g.e("v_mul_lo_u32 v12, v12, s101")
    g.e("v_and_b32 v13, 3, v0")
    g.e("v_lshl_add_u32 v12, v13, 5, v12")
    lp = g.newlab("FL"); ok = g.newlab("FOK")
    g.e("s_mov_b32 %s, 0" % sr(S_SPIN))
    g.lab(lp)
    g.e("buffer_load_dwordx4 v[40:43], v12, %s, s100 offen sc1" % sr(SRD_WS, 4))
    g.e("buffer_load_dwordx4 v[44:47], v12, %s, s100 offen offset:16 sc1" % sr(SRD_WS, 4))
    g.e("s_waitcnt vmcnt(0)")
    g.e("v_xor_b32 v13, %s, v41" % sr(S_TAG))
    for r_ in (43, 45, 47):
        g.e("v_xor_b32 v14, %s, %s" % (sr(S_TAG), v(r_)))
        g.e("v_or_b32 v13, v13, v14")
    g.e("v_cmp_eq_u32 vcc, 0, v13")
    g.e("s_cmp_eq_u64 vcc, exec")
    g.e("s_cbranch_scc1 %s" % ok)
    g.e("s_add_u32 %s, %s, 1" % (sr(S_SPIN), sr(S_SPIN)))
    g.e("s_cmp_gt_u32 %s, %d" % (sr(S_SPIN), SPIN_MAX))
    g.e("s_cbranch_scc0 %s" % lp)
    g.lab(ok)
    for j in range(4):
        g.e("v_mov_b32 %s, %s" % (v(32 + j), v(40 + 2 * j)))
    g.nop(1)
    for r_ in range(32, 36):
        g.e("v_add_f32_dpp %s, %s, %s row_ror:8 row_mask:0xf bank_mask:0xf" % (v(r_), v(r_), v(r_)))
    for r_ in range(32, 36):
        cross_rows(g, "v_add_f32", r_, 13)
    g.e("v_lshlrev_b32 v12, 4, %s" % v(V_LANE))
    g.e("s_lshl_b32 s101, %s, 7" % sr(S_WAVE))
    g.e("s_add_u32 s101, s101, %d" % L_FX)
    g.e("v_add_u32 v12, s101, v12")
    g.e("s_mov_b64 exec, 0xff")
    g.e("ds_write_b128 v12, v[32:35]")
    g.e("s_mov_b64 exec, -1")
    g.e("s_waitcnt lgkmcnt(0)")
    g.e("s_barrier")
    g.e("s_cmp_lg_u32 %s, 0" % sr(S_WAVE))
    g.e("s_cbranch_scc1 L_END")
    g.e("v_and_b32 v12, 31, %s" % v(V_LANE))
    g.e("v_lshlrev_b32 v12, 2, v12")
    for wv in range(8):
        g.e("ds_read_b32 %s, v12 offset:%d" % (v(32 + wv), L_FX + wv * 128))
    g.e("s_waitcnt lgkmcnt(0)")
    for wv in range(1, 8):
        g.e("v_add_f32 v32, v32, %s" % v(32 + wv))
    g.e("v_cvt_pk_bf16_f32 v32, v32, v32")
    g.e("s_movk_i32 s101, 896")
    g.e("v_mul_lo_u32 v12, %s, s101" % v(V_G))
    g.e("v_lshl_add_u32 v12, %s, 1, v12" % v(V_L16))
    g.e("s_mul_i32 s100, s99, 1792")
    g.e("s_lshl_b32 s101, s98, 5")
    g.e("s_add_u32 s100, s100, s101")
    g.e("s_mov_b32 exec_lo, -1")
    g.e("s_mov_b32 exec_hi, 0")
    g.e("buffer_store_short v32, v12, %s, s100 offen" % sr(SRD_OUT, 4))
    g.e("s_mov_b64 exec, -1")
    stamp(g, 11, 15)
    g.e("s_cmp_lg_u32 %s, 0" % sr(S_YI))
    g.e("s_cbranch_scc1 L_END")
    g.e("v_mov_b32 v13, %s" % sr(S_TAG))
    g.e("s_mov_b64 exec, 1")
    g.e("buffer_store_dword v13, off, %s, 0 sc1" % sr(SRD_WS, 4))
    g.lab("L_END")
    g.e("s_endpgm")
    g.lines += [
        '.section .rodata,"a"',
        ".p2align 6",
        ".amdhsa_kernel %s" % KN,
        "  .amdhsa_next_free_vgpr 256",
        "  .amdhsa_next_free_sgpr 102",
        "  .amdhsa_accum_offset 256",
        "  .amdhsa_group_segment_fixed_size 0",
        "  .amdhsa_kernarg_size 112",
        "  .amdhsa_user_sgpr_count 2",
        "  .amdhsa_user_sgpr_kernarg_segment_ptr 1",
        "  .amdhsa_system_sgpr_workgroup_id_x 1",
        ".end_amdhsa_kernel",
    ]
    return "\n".join(g.lines) + "\n"

if __name__ == "__main__":
    out = sys.argv[1] if len(sys.argv) > 1 and not sys.argv[1].startswith("--") else "cdna_kernels/%s.s" % NAME
    open(out, "w").write(gen())
    print("wrote", out)
```

```python
import sys

NAME = "concat_heads__mha_block_cached__compressed_kv_cla__decode"
KN = NAME + "_kernel"

def opt(name, default):
    for a in sys.argv:
        if a.startswith("--%s=" % name):
            return int(a.split("=")[1])
    return default

WS_NONCE = 0
WS_AP = 0x600000
WS_QH = 0xA0000
WS_QL = 0xB0000
WS_QF = 0xC0000
WS_PF = 0xC1000
WS_YF = 0xC2000
WS_AF = 0xC3000
WS_PS = 0xC4000
WS_Y = 0xD0000
WS_QP = 0x10000
WS_QPF = 0xC5000
WS_PC = 0x200000
WS_SIZE = 0x10000000
WS_STAMP = 0x800000

L_TILE0 = 0
L_TILE1 = 65536
L_SX = 131072
L_QX = 139264
L_QB = 147456
L_CNT = 149504
LDS_BYTES = 149504 + 1024
L_AO = 0
L_AM = 8192
L_OX = 0
L_OB = 8192
L_OA = 8704
L_CX = 16384
L_CB = 12288
L_FX = 28672
L_YX = 32768

SPIN_MAX = opt("SPIN", 400000)
STAMPS = "--stamps" in sys.argv
D = opt("D", 6)
PRE = opt("PRE", 8)
SH = opt("SH", 128)
WS_CT = 0xC8000

class G:
    def __init__(s):
        s.lines = []
        s.q = []
        s.uid = 0
    def e(s, t):
        s.lines.append("    " + t)
    def c(s, t):
        s.lines.append("    ; " + t)
    def lab(s, n):
        s.lines.append(n + ":")
    def newlab(s, p="L"):
        s.uid += 1
        return "%s_%d" % (p, s.uid)
    def vm(s, tag, t):
        s.e(t)
        s.q.append(tag)
    def wait(s, tag):
        if tag not in s.q:
            return
        idx = max(i for i, x in enumerate(s.q) if x == tag)
        n = len(s.q) - 1 - idx
        s.e("s_waitcnt vmcnt(%d)" % min(n, 63))
        s.q = s.q[idx + 1:]
    def waitall(s):
        s.e("s_waitcnt vmcnt(0)")
        s.q = []
    def nop(s, n):
        s.e("s_nop %d" % n)

def v(i, n=1):
    return "v%d" % i if n == 1 else "v[%d:%d]" % (i, i + n - 1)
def sr(i, n=1):
    return "s%d" % i if n == 1 else "s[%d:%d]" % (i, i + n - 1)

S_WAVE, S_TAG, S_H, S_J, S_CU = 3, 4, 5, 6, 7
S_T = [8, 9, 10, 11, 12, 13, 14, 15]
S_ROLE = 16
S_CUR, S_NXT, S_UEND, S_SLAB, S_FIRST, S_VALID, S_NU = 17, 18, 19, 20, 21, 22, 23
S_BB, S_KR, S_DH, S_CKV, S_LW, S_SC = 24, 25, 26, 27, 28, 29
S_MAT, S_JMAT, S_YI = 30, 31, 32
S_QN, S_QU, S_QV = 33, 34, 35
S_SIX, S_CTR, S_MODE = 25, 26, 27
SRD_X, SRD_WQ, SRD_WO, SRD_K, SRD_V, SRD_WUV, SRD_WS, SRD_OUT, SRD_WOA = 36, 40, 44, 48, 52, 56, 60, 64, 68
S_PLO, S_PHI, S_L2E, S_SPIN = 72, 73, 74, 75
S_MK, S_M2, S_EX = 76, 78, 80
S_O = 82
V_LANE, V_L16, V_G = 1, 2, 3
RING = 192


def dpp_allreduce16(g, op, regs):
    for st in (8, 4, 2, 1):
        if len(regs) < 3:
            g.nop(1)
        for r in regs:
            g.e("%s_dpp %s, %s, %s row_ror:%d row_mask:0xf bank_mask:0xf" % (op, v(r), v(r), v(r), st))

def cross_rows(g, op, r, t, both=True):
    g.e("v_mov_b32 %s, %s" % (v(t), v(r)))
    g.nop(1)
    g.e("v_permlane16_swap_b32 %s, %s" % (v(t), v(r)))
    g.nop(1)
    g.e("%s %s, %s, %s" % (op, v(r), v(r), v(t)))
    if both:
        g.e("v_mov_b32 %s, %s" % (v(t), v(r)))
        g.nop(1)
        g.e("v_permlane32_swap_b32 %s, %s" % (v(t), v(r)))
        g.nop(1)
        g.e("%s %s, %s, %s" % (op, v(r), v(r), v(t)))

def transpose_reduce16(g, a):
    g.nop(1)
    for k in range(8):
        g.e("v_permlane32_swap_b32 %s, %s" % (v(a + k), v(a + k + 8)))
    g.nop(1)
    for k in range(8):
        g.e("v_add_f32 %s, %s, %s" % (v(a + k), v(a + k), v(a + k + 8)))
    g.nop(1)
    for k in range(4):
        g.e("v_permlane16_swap_b32 %s, %s" % (v(a + k), v(a + k + 4)))
    g.nop(1)
    for k in range(4):
        g.e("v_add_f32 %s, %s, %s" % (v(a + k), v(a + k), v(a + k + 4)))

DBGS = "--dbgstamps" in sys.argv
def stamp(g, idx, vt):
    if DBGS:
        if idx > 11:
            return
        g.e("s_memrealtime s[100:101]")
        g.e("s_lshl_b32 s98, %s, 2" % sr(S_ROLE))
        g.e("s_waitcnt lgkmcnt(0)")
        g.e("v_mov_b32 %s, s100" % v(vt))
        amap = {0: 0, 1: 1, 2: 2, 3: 3, 4: 4, 9: 5, 10: 6, 11: 7, 5: -1}
        bmap = {0: 8, 2: 9, 3: 10, 4: 11, 5: 12, 6: 13, 7: 14, 9: 15}
        a_, b_ = amap.get(idx, -1), bmap.get(idx, -1)
        g.e("s_cmp_eq_u32 %s, 1" % sr(S_ROLE))
        g.e("s_cselect_b32 s98, %d, %d" % (a_ * 4 if a_ >= 0 else 252, b_ * 4 if b_ >= 0 else 252))
        sk = g.newlab("DB")
        g.e("s_cmp_lg_u32 %s, 0" % sr(S_WAVE))
        g.e("s_cbranch_scc1 %s" % sk)
        g.e("s_and_b32 s99, %s, 0x3b" % sr(S_CU) if False else "s_mov_b32 s99, %s" % sr(S_CU))
        if idx in (10, 11):
            g.e("s_cmp_lg_u32 s99, 4")
        else:
            g.e("s_cmp_eq_u32 s99, 192")
            g.e("s_cselect_b32 s99, 0, s99")
            g.e("s_cmp_lg_u32 s99, 0")
        g.e("s_cbranch_scc1 %s" % sk)
        g.e("s_mov_b64 exec, 1")
        g.e("buffer_store_dword %s, off, s[92:95], s98" % v(vt))
        g.e("s_mov_b64 exec, -1")
        g.lab(sk)
        return
    if not STAMPS:
        return
    g.e("s_memrealtime s[100:101]")
    g.e("s_lshl_b32 s98, %s, 3" % sr(S_CU))
    g.e("s_add_u32 s98, s98, %s" % sr(S_WAVE))
    g.e("s_lshl_b32 s98, s98, 7")
    g.e("s_add_u32 s98, s98, %d" % (WS_STAMP + idx * 4))
    g.e("s_waitcnt lgkmcnt(0)")
    g.e("v_mov_b32 %s, s100" % v(vt))
    g.e("s_mov_b64 exec, 1")
    g.e("buffer_store_dword %s, off, %s, s98" % (v(vt), sr(SRD_WS, 4)))
    g.e("s_mov_b64 exec, -1")

def q_job(g, gather):
    ACC, PT, XR, W = 32, 48, 56, 128
    g.c("---- Q job ----")
    if opt("V1", 0): g.e("s_setprio 3")
    g.e("s_mul_i32 %s, %s, 224" % (sr(S_T[4]), sr(S_T[0])))
    g.e("s_add_u32 %s, %s, 896" % (sr(S_T[5]), sr(S_T[4])))
    g.e("s_mul_i32 %s, %s, %d" % (sr(S_T[2]), sr(S_T[0]), 112 * 8192))
    g.e("s_lshl_b32 %s, %s, 9" % (sr(S_T[3]), sr(S_H)))
    g.e("s_add_u32 %s, %s, %s" % (sr(S_T[2]), sr(S_T[2]), sr(S_T[3])))
    g.e("s_lshl_b32 %s, %s, 8" % (sr(S_T[3]), sr(S_T[1])))
    g.e("s_add_u32 %s, %s, %s" % (sr(S_T[2]), sr(S_T[2]), sr(S_T[3])))
    g.e("s_mov_b32 %s, %d" % (sr(S_T[6]), 28 * 8192))
    g.e("v_mul_lo_u32 v12, %s, %s" % (v(V_G), sr(S_T[6])))
    g.e("v_lshl_add_u32 v12, %s, 4, v12" % v(V_L16))
    g.e("v_mul_u32_u24 v13, 56, %s" % v(V_G))
    for b in range(2):
        sb = sr(S_T[4 + b])
        g.e("buffer_load_dwordx4 %s, v13, %s, %s offen" % (v(XR + b * 14, 4), sr(SRD_X, 4), sb))
        g.e("buffer_load_dwordx4 %s, v13, %s, %s offen offset:16" % (v(XR + b * 14 + 4, 4), sr(SRD_X, 4), sb))
        g.e("buffer_load_dwordx4 %s, v13, %s, %s offen offset:32" % (v(XR + b * 14 + 8, 4), sr(SRD_X, 4), sb))
        g.e("buffer_load_dwordx2 %s, v13, %s, %s offen offset:48" % (v(XR + b * 14 + 12, 2), sr(SRD_X, 4), sb))
    for n in range(28):
        g.e("buffer_load_dwordx4 %s, v12, %s, %s offen nt" % (v(W + 4 * n, 4), sr(SRD_WQ, 4), sr(S_T[2])))
        g.e("s_add_u32 %s, %s, 8192" % (sr(S_T[2]), sr(S_T[2])))
    QB = opt("QB", 14)
    if QB == 0:
        g.e("s_barrier")
    for i in range(16):
        g.e("v_mov_b32 %s, 0" % v(ACC + i))
    for k in range(14):
        g.e("s_waitcnt vmcnt(%d)" % (26 - 2 * k))
        if QB and k == QB - 1:
            g.e("s_barrier")
        r0 = W + 8 * k
        r1 = r0 + 4
        for j in range(4):
            g.e("v_perm_b32 %s, %s, %s, %s" % (v(PT + 2 * j), v(r1 + j), v(r0 + j), sr(S_PLO)))
            g.e("v_perm_b32 %s, %s, %s, %s" % (v(PT + 2 * j + 1), v(r1 + j), v(r0 + j), sr(S_PHI)))
        for b in range(2):
            for e_ in range(8):
                g.e("v_dot2_f32_bf16 %s, %s, %s, %s" % (v(ACC + b * 8 + e_), v(PT + e_), v(XR + b * 14 + k), v(ACC + b * 8 + e_)))
    stamp(g, 12, 15)
    g.e("v_readfirstlane_b32 %s, v127" % sr(S_TAG))
    g.e("s_add_u32 %s, %s, 1" % (sr(S_TAG), sr(S_TAG)))
    g.nop(1)
    transpose_reduce16(g, ACC)
    done = g.newlab("QDONE")
    g.e("v_lshrrev_b32 v12, 1, %s" % v(V_G))
    g.e("v_lshlrev_b32 v12, 11, v12")
    g.e("v_and_b32 v13, 1, %s" % v(V_G))
    g.e("v_lshl_add_u32 v12, v13, 5, v12")
    g.e("v_lshl_add_u32 v12, %s, 6, v12" % v(V_L16))
    g.e("s_lshl_b32 s98, %s, 1" % sr(S_H))
    g.e("s_add_u32 s98, s98, %s" % sr(S_JMAT))
    g.e("s_lshl_b32 s99, s98, 5")
    g.e("s_lshl_b32 s98, s98, 2")
    g.e("s_add_u32 s98, s98, %s" % sr(S_T[0]))
    g.e("s_lshl_b32 s98, s98, 12")
    g.e("s_lshl_b32 s100, %s, 10" % sr(S_T[1]))
    g.e("s_add_u32 s98, s98, s100")
    g.e("s_add_u32 s98, s98, %d" % WS_QP)
    g.e("v_mov_b32 v40, v32")
    g.e("v_mov_b32 v41, %s" % sr(S_TAG))
    g.e("v_mov_b32 v42, v33")
    g.e("v_mov_b32 v43, %s" % sr(S_TAG))
    g.e("v_mov_b32 v44, v34")
    g.e("v_mov_b32 v45, %s" % sr(S_TAG))
    g.e("v_mov_b32 v46, v35")
    g.e("v_mov_b32 v47, %s" % sr(S_TAG))
    g.e("buffer_store_dwordx4 v[40:43], v12, %s, s98 offen sc1" % sr(SRD_WS, 4))
    g.e("buffer_store_dwordx4 v[44:47], v12, %s, s98 offen offset:16 sc1" % sr(SRD_WS, 4))
    g.e("s_lshl_b32 s100, %s, 1" % sr(S_T[0]))
    g.e("s_add_u32 s100, s100, %s" % sr(S_T[1]))
    g.e("s_lshl_b32 s100, s100, 2")
    g.e("s_add_u32 s99, s99, s100")
    g.e("s_add_u32 s99, s99, %d" % WS_QPF)
    g.e("s_mov_b64 exec, 1")
    g.e("buffer_store_dword v41, off, %s, s99 sc1" % sr(SRD_WS, 4))
    g.e("s_mov_b64 exec, -1")
    stamp(g, 13, 15)
    if gather:
        g.e("s_mov_b32 %s, 0" % sr(S_SPIN))
        g.e("v_and_b32 v15, 15, %s" % v(V_LANE))
        g.e("v_lshlrev_b32 v15, 2, v15")
        g.e("s_lshl_b32 s99, %s, 6" % sr(S_H))
        g.e("s_add_u32 s99, s99, %d" % WS_QPF)
        lp0 = g.newlab("QH"); ok0 = g.newlab("QHOK")
        g.lab(lp0)
        g.e("buffer_load_dword v11, v15, %s, s99 offen sc1" % sr(SRD_WS, 4))
        g.e("s_waitcnt vmcnt(0)")
        g.e("v_cmp_eq_u32 vcc, %s, v11" % sr(S_TAG))
        g.e("s_cmp_eq_u64 vcc, exec")
        g.e("s_cbranch_scc1 %s" % ok0)
        g.e("s_add_u32 %s, %s, 1" % (sr(S_SPIN), sr(S_SPIN)))
        g.e("s_sleep 1")
        g.e("s_cmp_gt_u32 %s, %d" % (sr(S_SPIN), SPIN_MAX))
        g.e("s_cbranch_scc0 %s" % lp0)
        g.lab(ok0)
        g.e("s_mov_b32 %s, 1" % sr(S_T[7]))
        lp = g.newlab("QG"); ok = g.newlab("QGOK")
        g.e("v_lshlrev_b32 v12, 4, %s" % v(V_LANE))
        g.lab(lp)
        g.e("s_lshl_b32 s99, %s, 6" % sr(S_H))
        g.e("s_add_u32 s99, s99, %d" % WS_QPF)
        g.e("buffer_load_dword v11, v15, %s, s99 offen sc1" % sr(SRD_WS, 4))
        g.e("s_lshl_b32 s98, %s, 15" % sr(S_H))
        g.e("s_add_u32 s98, s98, %d" % WS_QP)
        g.e("s_lshl_b32 s99, %s, 11" % sr(S_BB))
        g.e("s_add_u32 s99, s99, s98")
        for rq in range(4):
            for p in range(2):
                g.e("buffer_load_dwordx4 %s, v12, %s, s99 offen offset:%d sc1" % (v(32 + rq * 8 + p * 4, 4), sr(SRD_WS, 4), p * 1024))
            g.e("s_add_u32 s99, s99, 4096")
        g.e("s_add_u32 s99, s98, 16384")
        for rq in range(4):
            for z in (1, 2):
                for p in range(2):
                    g.e("buffer_load_dwordx4 %s, v12, %s, s99 offen offset:%d sc1" % (v(32 + z * 32 + rq * 8 + p * 4, 4), sr(SRD_WS, 4), (z - 1) * 2048 + p * 1024))
            g.e("s_add_u32 s99, s99, 4096")
        sk = g.newlab("QREL")
        g.e("s_cmp_eq_u32 %s, 0" % sr(S_T[7]))
        g.e("s_cbranch_scc1 %s" % sk)
        g.e("s_barrier")
        g.e("s_mov_b32 %s, 0" % sr(S_T[7]))
        g.lab(sk)
        g.e("s_waitcnt vmcnt(0)")
        g.e("v_xor_b32 v13, %s, v11" % sr(S_TAG))
        for r_ in range(33, 128, 2):
            g.e("v_xor_b32 v14, %s, %s" % (sr(S_TAG), v(r_)))
            g.e("v_or_b32 v13, v13, v14")
        g.e("v_cmp_eq_u32 vcc, 0, v13")
        g.e("s_cmp_eq_u64 vcc, exec")
        g.e("s_cbranch_scc1 %s" % ok)
        g.e("s_add_u32 %s, %s, 1" % (sr(S_SPIN), sr(S_SPIN)))
        g.e("s_cmp_gt_u32 %s, %d" % (sr(S_SPIN), SPIN_MAX))
        g.e("s_cbranch_scc0 %s" % lp)
        g.lab(ok)
        stamp(g, 14, 15)
        g.e("v_lshlrev_b32 v12, 2, %s" % v(V_LANE))
        g.e("v_add_u32 v13, %d, v12" % L_QB)
        g.e("s_lshl_b32 s99, %s, 9" % sr(S_BB))
        g.e("v_add_u32 v12, s99, v13")
        for z in range(3):
            for p in range(2):
                a = 32 + z * 32 + p * 4
                for o_ in (0, 2):
                    g.e("v_add_f32 %s, %s, %s" % (v(a + o_), v(a + o_), v(a + 8 + o_)))
                    g.e("v_add_f32 %s, %s, %s" % (v(a + 16 + o_), v(a + 16 + o_), v(a + 24 + o_)))
                    g.e("v_add_f32 %s, %s, %s" % (v(a + o_), v(a + o_), v(a + 16 + o_)))
                g.e("v_cvt_pk_bf16_f32 %s, %s, %s" % (v(a + 1), v(a), v(a + 2)))
                if z == 0:
                    g.e("ds_write_b32 v12, %s offset:%d" % (v(a + 1), p * 256))
                else:
                    g.e("ds_write_b32 v13, %s offset:%d" % (v(a + 1), 1024 + (z - 1) * 512 + p * 256))
        g.e("s_waitcnt lgkmcnt(0)")
    if opt("V1", 0): g.e("s_setprio 0")
    g.lab(done)

def load_rows896(g, srd, rowbase_sgpr, nrows, wreg):
    g.e("s_mul_i32 %s, %s, %d" % (sr(S_T[0]), sr(S_WAVE), nrows))
    g.e("s_add_u32 %s, %s, %s" % (sr(S_T[0]), sr(S_T[0]), sr(rowbase_sgpr)))
    g.e("s_mul_i32 %s, %s, 896" % (sr(S_T[0]), sr(S_T[0])))
    g.e("v_lshlrev_b32 v12, 4, %s" % v(V_LANE))
    g.e("s_mov_b32 exec_hi, 0x00ffffff")
    for n in range(nrows):
        if n % 4 == 0 and n > 0:
            g.e("s_add_u32 %s, %s, 3584" % (sr(S_T[0]), sr(S_T[0])))
        g.e("buffer_load_dwordx4 %s, v12, %s, %s offen offset:%d" % (v(wreg + n * 4, 4), sr(srd, 4), sr(S_T[0]), (n % 4) * 896))
    g.e("s_mov_b32 exec_hi, -1")

def preperm(g, wreg, nrows):
    for k in range(nrows // 2):
        r0 = wreg + (2 * k) * 4
        r1 = r0 + 4
        for j in range(4):
            g.e("v_perm_b32 v12, %s, %s, %s" % (v(r1 + j), v(r0 + j), sr(S_PLO)))
            g.e("v_perm_b32 %s, %s, %s, %s" % (v(r1 + j), v(r1 + j), v(r0 + j), sr(S_PHI)))
            g.e("v_mov_b32 %s, v12" % v(r0 + j))

def out_gemv(g, wreg, nrows, lds_base, bstride, Y, OP):
    g.e("s_mul_i32 %s, %s, %d" % (sr(S_T[0]), sr(S_WAVE), nrows * 2))
    g.e("s_add_u32 %s, %s, %d" % (sr(S_T[0]), sr(S_T[0]), lds_base))
    g.e("v_mov_b32 v12, %s" % sr(S_T[0]))
    npk = nrows // 2
    for b in range(2):
        for x in range(npk // 4):
            g.e("ds_read_b128 %s, v12 offset:%d" % (v(OP + b * npk + 4 * x, 4), b * bstride + 16 * x))
    for i in range(16):
        g.e("v_mov_b32 %s, 0" % v(Y + i))
    g.e("s_waitcnt lgkmcnt(0)")
    for k in range(npk):
        r0 = wreg + (2 * k) * 4
        r1 = r0 + 4
        for b in range(2):
            for j in range(4):
                g.e("v_dot2_f32_bf16 %s, %s, %s, %s" % (v(Y + b * 8 + 2 * j), v(r0 + j), v(OP + b * npk + k), v(Y + b * 8 + 2 * j)))
                g.e("v_dot2_f32_bf16 %s, %s, %s, %s" % (v(Y + b * 8 + 2 * j + 1), v(r1 + j), v(OP + b * npk + k), v(Y + b * 8 + 2 * j + 1)))

def flag_store(g, base_const, idx_sgpr, sub):
    skip = g.newlab("FLAG")
    g.e("s_cmp_lg_u32 %s, 0" % sr(S_WAVE))
    g.e("s_cbranch_scc1 %s" % skip)
    g.e("s_sub_u32 s98, %s, %d" % (sr(idx_sgpr), sub))
    g.e("s_lshl_b32 s98, s98, 2")
    g.e("s_add_u32 s98, s98, %d" % base_const)
    g.e("v_mov_b32 v13, %s" % sr(S_TAG))
    g.e("s_mov_b64 exec, 1")
    g.e("buffer_store_dword v13, off, %s, s98 sc1" % sr(SRD_WS, 4))
    g.e("s_mov_b64 exec, -1")
    g.lab(skip)

def poll_flags(g, base_sgpr_or_const, nflags, pw=0, sleep=4):
    lp = g.newlab("POLL"); ok = g.newlab("POLLOK")
    g.e("s_cmp_lg_u32 %s, %d" % (sr(S_WAVE), pw))
    g.e("s_cbranch_scc1 %s" % ok)
    wide = nflags > 64
    g.e("v_lshlrev_b32 v12, %d, %s" % (4 if wide else 2, v(V_LANE)))
    if wide:
        nflags //= 4
    if isinstance(base_sgpr_or_const, int):
        g.e("s_mov_b32 s98, %d" % base_sgpr_or_const)
    else:
        g.e("s_mov_b32 s98, %s" % base_sgpr_or_const)
    if nflags < 64:
        m = (1 << nflags) - 1
        g.e("s_mov_b32 exec_lo, 0x%x" % (m & 0xffffffff))
        g.e("s_mov_b32 exec_hi, 0x%x" % (m >> 32))
    g.e("s_mov_b32 %s, 0" % sr(S_SPIN))
    g.lab(lp)
    if wide:
        g.e("buffer_load_dwordx4 v[88:91], v12, %s, s98 offen sc1" % sr(SRD_WS, 4))
        g.e("s_waitcnt vmcnt(0)")
        g.e("v_cmp_eq_u32 vcc, %s, v88" % sr(S_TAG))
        for i in range(1, 4):
            g.e("v_cmp_eq_u32 %s, %s, %s" % (sr(S_M2, 2), sr(S_TAG), v(88 + i)))
            g.e("s_and_b64 vcc, vcc, %s" % sr(S_M2, 2))
    else:
        g.e("buffer_load_dword v13, v12, %s, s98 offen sc1" % sr(SRD_WS, 4))
        g.e("s_waitcnt vmcnt(0)")
        g.e("v_cmp_eq_u32 vcc, %s, v13" % sr(S_TAG))
    g.e("s_cmp_eq_u64 vcc, exec")
    g.e("s_cbranch_scc1 %s" % ok)
    g.e("s_add_u32 %s, %s, 1" % (sr(S_SPIN), sr(S_SPIN)))
    g.e("s_cmp_gt_u32 %s, %d" % (sr(S_SPIN), SPIN_MAX))
    g.e("s_cbranch_scc1 %s" % ok)
    g.e("s_sleep %d" % sleep)
    g.e("s_branch %s" % lp)
    g.lab(ok)
    g.e("s_mov_b64 exec, -1")
    g.e("s_barrier")


def gen():
    g = G()
    g.lines.append("; @launch grid=(256,1,1) block=(512,1,1) lds=%d" % LDS_BYTES)
    g.lines.append('.amdgcn_target "amdgcn-amd-amdhsa--gfx950"')
    g.lines.append(".text")
    g.lines.append(".globl %s" % KN)
    g.lines.append(".p2align 8")
    g.lines.append(".type %s,@function" % KN)
    g.lab(KN)
    g.e("s_cmp_ge_u32 s2, 256")
    g.e("s_cbranch_scc1 L_END")
    if "--noxmap" not in sys.argv:
        g.e("s_and_b32 s96, s2, 7")
        g.e("s_lshr_b32 s97, s2, 3")
        XM = opt("XM", 1)
        if XM == 1:
            g.e("s_mul_i32 s98, s96, 24")
            g.e("s_add_u32 s98, s98, s97")
        else:
            sh = {2: 1, 4: 2}[XM]
            g.e("s_lshr_b32 s98, s96, %d" % sh)
            g.e("s_mul_i32 s98, s98, %d" % (24 * XM))
            g.e("s_and_b32 s99, s96, %d" % (XM - 1))
            g.e("s_add_u32 s98, s98, s99")
            g.e("s_lshl_b32 s99, s97, %d" % sh)
            g.e("s_add_u32 s98, s98, s99")
        g.e("s_lshl_b32 s99, s96, 3")
        g.e("s_add_u32 s99, s99, s97")
        g.e("s_add_u32 s99, s99, 168")
        g.e("s_cmp_lt_u32 s97, 24")
        g.e("s_cselect_b32 s2, s98, s99")
    g.e("s_load_dwordx16 s[8:23], s[0:1], 0")
    g.e("s_load_dwordx8 s[24:31], s[0:1], 64")
    g.e("s_load_dwordx4 s[32:35], s[0:1], 96")
    g.e("v_and_b32 %s, 63, v0" % v(V_LANE))
    g.e("v_lshrrev_b32 v12, 6, v0")
    g.e("v_and_b32 %s, 15, v0" % v(V_L16))
    g.e("v_bfe_u32 %s, v0, 4, 2" % v(V_G))
    g.e("v_readfirstlane_b32 %s, v12" % sr(S_WAVE))
    g.e("v_mov_b32 v4, 0")
    g.e("v_mov_b32 v5, 0")
    g.e("s_mov_b32 %s, 0x05040100" % sr(S_PLO))
    g.e("s_mov_b32 %s, 0x07060302" % sr(S_PHI))
    g.e("s_mov_b32 %s, 0x3fb8aa3b" % sr(S_L2E))
    g.e("s_mov_b32 %s, 0x00010001" % sr(S_MK))
    g.e("s_mov_b32 %s, 0x00010001" % sr(S_MK + 1))
    g.e("s_mul_i32 s96, s2, 43691")
    g.e("s_lshr_b32 s96, s96, 19")
    g.e("s_mul_i32 s97, s96, 12")
    g.e("s_sub_u32 s97, s2, s97")
    g.e("s_cmp_ge_u32 s97, 8")
    g.e("s_cselect_b32 s99, 1, 0")
    g.e("s_cmp_ge_u32 s2, 192")
    g.e("s_cselect_b32 s99, 1, s99")
    g.e("s_cmp_eq_u32 s99, 0")
    g.e("s_waitcnt lgkmcnt(0)")
    def srd(d, a, b, na, nb):
        g.e("s_cselect_b32 %s, %s, %s" % (sr(d), sr(a), sr(b)))
        g.e("s_cselect_b32 %s, %s, %s" % (sr(d + 1), sr(a + 1), sr(b + 1)))
        if na == nb:
            g.e("s_mov_b32 %s, %d" % (sr(d + 2), na))
        else:
            g.e("s_mov_b32 s98, %d" % na)
            g.e("s_cselect_b32 %s, s98, %d" % (sr(d + 2), nb))
        g.e("s_mov_b32 %s, 0x00020000" % sr(d + 3))
    srd(SRD_X, 8, 18, 1792, 1792)
    srd(SRD_WQ, 14, 22, 448 * 8192, 448 * 8192)
    g.e("s_cmp_lt_u32 s2, 192")
    srd(SRD_WO, 24, 28, 1 << 23, 4096 * 896)
    srd(SRD_K, 10, 20, 1 << 26, 1 << 24)
    srd(SRD_V, 12, 26, 1 << 26, 1 << 23)
    srd(SRD_WS, 34, 34, WS_SIZE, WS_SIZE)
    srd(SRD_OUT, 30, 30, 3584, 3584)
    srd(SRD_WOA, 16, 16, 4096 * 896, 4096 * 896)
    if DBGS:
        srd(92, 32, 32, 256, 256)
    g.e("s_cselect_b32 %s, 1, 0" % sr(S_ROLE))
    g.e("s_cselect_b32 %s, 0, 1" % sr(S_MAT))
    g.e("s_mov_b32 %s, s99" % sr(S_JMAT))
    g.e("buffer_load_dword v127, off, %s, 0 sc1" % sr(SRD_WS, 4))
    g.e("s_cbranch_scc0 L_ROLE_B0")

    g.c("==== ROLE A setup ====")
    if "--noA" in sys.argv:
        g.e("s_branch L_END")
    g.e("s_mov_b32 %s, s97" % sr(S_J))
    g.e("s_mov_b32 %s, s96" % sr(S_H))
    g.e("s_mov_b32 %s, s2" % sr(S_CU))
    g.e("s_cmp_ge_u32 %s, 6" % sr(S_J))
    g.e("s_cselect_b32 %s, 1, 0" % sr(S_BB))
    g.e("s_mul_i32 s99, %s, 6" % sr(S_BB))
    g.e("s_sub_u32 s98, %s, s99" % sr(S_J))
    g.e("s_mov_b32 %s, s98" % sr(S_SIX))
    g.e("s_mul_i32 s99, s98, %d" % (((512 - SH) // 2) * 43691))
    g.e("s_lshr_b32 s99, s99, 17")
    g.e("s_add_u32 s98, s98, 1")
    g.e("s_mul_i32 s98, s98, %d" % (((512 - SH) // 2) * 43691))
    g.e("s_lshr_b32 %s, s98, 17" % sr(S_UEND))
    g.e("s_lshl_b32 s98, %s, 4" % sr(S_BB))
    g.e("s_add_u32 s98, s98, %s" % sr(S_H))
    g.e("s_lshl_b32 %s, s98, 8" % sr(S_CTR))
    g.e("s_add_u32 %s, %s, %d" % (sr(S_CTR), sr(S_CTR), WS_CT))
    g.e("s_lshl_b32 %s, s98, 21" % sr(S_SLAB))
    g.e("s_add_u32 s100, s99, %s" % sr(S_WAVE))
    g.e("s_lshl_b32 s100, s100, 12")
    g.e("s_add_u32 %s, %s, s100" % (sr(S_CUR), sr(S_SLAB)))
    g.e("v_lshlrev_b32 v4, 10, %s" % v(V_G))
    g.e("v_lshl_add_u32 v4, %s, 4, v4" % v(V_L16))
    g.e("s_add_u32 s99, s99, 8")
    g.e("v_mov_b32 v5, %d" % L_CNT)
    g.e("v_mov_b32 v6, s99")
    g.e("v_mov_b32 v7, 0")
    g.e("ds_write_b64 v5, v[6:7]")
    stamp(g, 0, 15)
    g.e("s_and_b32 %s, %s, 3" % (sr(S_T[0]), sr(S_J)))
    g.e("s_cmp_ge_u32 %s, 4" % sr(S_J))
    g.e("s_cselect_b32 %s, 1, 0" % sr(S_T[1]))
    g.e("s_cmp_ge_u32 %s, 8" % sr(S_J))
    g.e("s_cselect_b32 %s, 0, %s" % (sr(S_T[1]), sr(S_T[1])))
    skip = g.newlab("NOQ"); skip2 = g.newlab("NOQ")
    g.e("s_cmp_ge_u32 %s, 1" % sr(S_WAVE))
    g.e("s_cbranch_scc1 %s" % skip)
    sk3 = g.newlab("NOZ")
    g.e("s_cmp_lg_u32 %s, 0" % sr(S_SIX))
    g.e("s_cbranch_scc1 %s" % sk3)
    g.e("s_mov_b64 exec, 1")
    g.e("buffer_store_dword v7, off, %s, %s sc1" % (sr(SRD_WS, 4), sr(S_CTR)))
    g.e("s_mov_b64 exec, -1")
    g.lab(sk3)
    q_job(g, True)
    g.e("s_branch %s" % skip2)
    g.lab(skip)
    g.e("s_barrier")
    g.lab(skip2)
    VOFF = [0, 512, 256, 768]
    def a_issue(slot, base):
        p = slot & 7
        if p < 4:
            g.e("buffer_load_dwordx4 %s, v4, %s, %s offen offset:%d nt" % (v(RING + 4 * slot, 4), sr(SRD_K, 4), sr(base), p * 256))
        else:
            g.e("buffer_load_dwordx4 %s, v4, %s, %s offen offset:%d nt" % (v(RING + 4 * slot, 4), sr(SRD_V, 4), sr(base), VOFF[p - 4]))
    g.e("s_mul_i32 s98, %s, %d" % (sr(S_J), 16 * 43691))
    g.e("s_lshr_b32 s98, s98, 17")
    g.e("s_add_u32 s99, %s, 1" % sr(S_J))
    g.e("s_mul_i32 s99, s99, %d" % (16 * 43691))
    g.e("s_lshr_b32 s99, s99, 17")
    g.e("s_sub_u32 %s, s99, s98" % sr(S_QN))
    g.e("s_add_u32 s98, s98, %s" % sr(S_WAVE))
    g.e("s_sub_u32 %s, s98, 2" % sr(S_QU))
    g.e("s_cmp_lt_u32 %s, 2" % sr(S_WAVE))
    g.e("s_cselect_b32 %s, 0, 1" % sr(S_QV))
    g.e("s_cmp_ge_u32 %s, s99" % sr(S_QU))
    g.e("s_cselect_b32 %s, 0, %s" % (sr(S_QV), sr(S_QV)))
    LATE = opt("LATE", 6)
    def uk_loads():
        skip = g.newlab("NOUK")
        g.e("s_cmp_eq_u32 %s, 0" % sr(S_QV))
        g.e("s_cbranch_scc1 %s" % skip)
        g.e("v_lshlrev_b32 v12, 15, %s" % v(V_G))
        g.e("v_lshl_add_u32 v12, %s, 4, v12" % v(V_L16))
        g.e("s_lshl_b32 s98, %s, 17" % sr(S_QU))
        g.e("s_lshl_b32 s99, %s, 9" % sr(S_H))
        g.e("s_add_u32 s98, s98, s99")
        for i in range(4):
            for hf in range(2):
                g.e("buffer_load_dwordx4 %s, v12, %s, s98 offen offset:%d nt" % (v(128 + 4 * (2 * i + hf), 4), sr(SRD_WO, 4), hf * 256))
            g.e("s_add_u32 s98, s98, 8192")
        g.lab(skip)
    def wo_loads():
        skip = g.newlab("NOWO")
        g.e("s_cmp_ge_u32 %s, 4" % sr(S_J))
        g.e("s_cbranch_scc1 %s" % skip)
        g.e("s_lshl_b32 %s, %s, 8" % (sr(S_T[1]), sr(S_H)))
        g.e("s_lshl_b32 %s, %s, 6" % (sr(S_T[2]), sr(S_J)))
        g.e("s_add_u32 %s, %s, %s" % (sr(S_T[1]), sr(S_T[1]), sr(S_T[2])))
        load_rows896(g, SRD_WOA, S_T[1], 8, 160)
        g.lab(skip)
    def pre_loads():
        for p in range(PRE):
            a_issue(p, S_CUR)
    uk_loads()
    sk = g.newlab("W0")
    g.e("s_cmp_eq_u32 %s, 0" % sr(S_WAVE))
    g.e("s_cbranch_scc1 %s" % sk)
    g.e("s_barrier")
    g.lab(sk)
    sk = g.newlab("NOPRE")
    g.e("s_cmp_lg_u32 %s, 0" % sr(S_QV))
    g.e("s_cbranch_scc1 %s" % sk)
    pre_loads()
    g.lab(sk)
    g.e("s_waitcnt lgkmcnt(0)")
    g.e("s_barrier")
    g.e("v_lshlrev_b32 v12, 4, %s" % v(V_L16))
    g.e("s_lshl_b32 s98, %s, 9" % sr(S_BB))
    g.e("s_add_u32 s98, s98, %d" % L_QB)
    g.e("v_add_u32 v13, s98, v12")
    g.e("ds_read_b128 v[16:19], v13")
    g.e("ds_read_b128 v[20:23], v13 offset:256")
    g.e("s_waitcnt vmcnt(%d)" % PRE)
    sk = g.newlab("UKW")
    g.e("s_cmp_eq_u32 %s, 0" % sr(S_QV))
    g.e("s_cbranch_scc1 %s" % sk)
    g.e("s_waitcnt vmcnt(0)")
    g.lab(sk)
    sk = g.newlab("TAGOK")
    g.e("s_cmp_lt_u32 %s, 1" % sr(S_WAVE))
    g.e("s_cbranch_scc1 %s" % sk)
    g.e("v_readfirstlane_b32 %s, v127" % sr(S_TAG))
    g.e("s_add_u32 %s, %s, 1" % (sr(S_TAG), sr(S_TAG)))
    g.lab(sk)
    stamp(g, 1, 15)
    skipq = g.newlab("NOQABS")
    g.e("s_cmp_eq_u32 %s, 0" % sr(S_QV))
    g.e("s_cbranch_scc1 %s" % skipq)
    g.c("---- QABS on A CUs ----")
    g.e("v_add_u32 v13, %d, v12" % (L_QB + 1024))
    for b in range(2):
        for hf in range(2):
            g.e("ds_read_b128 %s, v13 offset:%d" % (v(64 + b * 8 + hf * 4, 4), b * 512 + hf * 256))
    g.e("s_waitcnt lgkmcnt(0)")
    for i in range(4):
        ra = 128 + 8 * i
        for b in range(2):
            d = 32 + b * 4 + i
            Q = 64 + b * 8
            g.e("v_dot2_f32_bf16 %s, %s, %s, 0" % (v(d), v(ra), v(Q)))
            for j in range(1, 8):
                g.e("v_dot2_f32_bf16 %s, %s, %s, %s" % (v(d), v(ra + j), v(Q + j), v(d)))
    g.nop(2)
    dpp_allreduce16(g, "v_add_f32", list(range(32, 40)))
    for i in range(1, 4):
        g.e("s_lshl_b64 %s, %s, %d" % (sr(S_M2, 2), sr(S_MK, 2), i))
        g.e("v_cndmask_b32 v32, v32, %s, %s" % (v(32 + i), sr(S_M2, 2)))
        g.e("v_cndmask_b32 v36, v36, %s, %s" % (v(36 + i), sr(S_M2, 2)))
    g.e("v_lshl_add_u32 v14, %s, 2, %s" % (v(V_G), v(V_L16)))
    g.e("s_lshl_b32 s99, %s, 4" % sr(S_QU))
    g.e("s_and_b32 s98, s99, 255")
    g.e("v_add_u32 v14, s98, v14")
    g.e("v_and_b32 v40, 7, v14")
    g.e("v_lshlrev_b32 v40, 1, v40")
    g.e("v_bfe_u32 v41, v14, 3, 1")
    g.e("v_lshrrev_b32 v42, 6, v14")
    g.e("v_lshl_add_u32 v41, v42, 1, v41")
    g.e("v_lshl_add_u32 v40, v41, 11, v40")
    g.e("v_bfe_u32 v41, v14, 4, 2")
    g.e("v_lshl_add_u32 v14, v41, 8, v40")
    g.e("s_lshr_b32 s98, s99, 8")
    g.e("s_lshl_b32 s98, s98, 14")
    g.e("s_lshl_b32 s99, %s, 4" % sr(S_H))
    g.e("s_add_u32 s98, s98, s99")
    for b in range(2):
        x = 32 + 4 * b
        g.e("v_cvt_pk_bf16_f32 %s, %s, %s" % (v(40 + 2 * b), v(x), v(x)))
        g.e("v_lshlrev_b32 %s, 16, %s" % (v(41 + 2 * b), v(40 + 2 * b)))
        g.e("v_sub_f32 %s, %s, %s" % (v(41 + 2 * b), v(x), v(41 + 2 * b)))
        g.e("v_cvt_pk_bf16_f32 %s, %s, %s" % (v(41 + 2 * b), v(41 + 2 * b), v(41 + 2 * b)))
        g.e("s_add_u32 s99, s98, %d" % (WS_QH + b * 65536))
        g.e("s_add_u32 s100, s98, %d" % (WS_QH + b * 65536 + 1024))
        g.e("s_mov_b32 exec_lo, 0x000f000f")
        g.e("s_mov_b32 exec_hi, 0x000f000f")
        g.e("buffer_store_short %s, v14, %s, s99 offen sc1" % (v(40 + 2 * b), sr(SRD_WS, 4)))
        g.e("buffer_store_short %s, v14, %s, s100 offen sc1" % (v(41 + 2 * b), sr(SRD_WS, 4)))
        g.e("s_mov_b64 exec, -1")
    g.e("v_mov_b32 v7, 1")
    if opt("V2", 0):
        g.e("s_waitcnt vmcnt(0)")
    else:
        pre_loads()
        g.e("s_waitcnt vmcnt(%d)" % PRE)
    g.e("s_mov_b64 exec, 1")
    g.e("ds_add_rtn_u32 v6, v5, v7 offset:4")
    g.e("s_waitcnt lgkmcnt(0)")
    g.e("v_readfirstlane_b32 s98, v6")
    g.e("s_add_u32 s98, s98, 1")
    g.e("s_cmp_lg_u32 s98, %s" % sr(S_QN))
    sk2 = g.newlab("QAF")
    g.e("s_cbranch_scc1 %s" % sk2)
    g.e("s_lshl_b32 s98, %s, 2" % sr(S_CU))
    g.e("s_add_u32 s98, s98, %d" % WS_QF)
    g.e("v_mov_b32 v13, %s" % sr(S_TAG))
    g.e("buffer_store_dword v13, off, %s, s98 sc1" % sr(SRD_WS, 4))
    g.lab(sk2)
    g.e("s_mov_b64 exec, -1")
    if opt("V2", 0):
        pre_loads()
    stamp(g, 5, 15)
    g.lab(skipq)
    wo_loads()
    g.e("s_waitcnt lgkmcnt(0)")
    g.e("s_branch L_A_MAIN")

    g.lab("L_ROLE_B0")
    g.q = []
    g.c("==== ROLE B setup ====")
    g.e("s_sub_u32 s99, s2, 192")
    g.e("s_lshr_b32 %s, s99, 2" % sr(S_H))
    g.e("s_and_b32 %s, s99, 3" % sr(S_J))
    g.e("s_mov_b32 %s, s2" % sr(S_CU))
    g.e("s_lshr_b32 %s, s99, 5" % sr(S_BB))
    g.e("s_and_b32 %s, s99, 31" % sr(S_KR))
    g.e("s_and_b32 %s, %s, 1" % (sr(S_DH), sr(S_J)))
    stamp(g, 0, 15)
    g.e("s_mov_b32 %s, %s" % (sr(S_T[0]), sr(S_J)))
    g.e("s_mov_b32 %s, 1" % sr(S_T[1]))
    skip = g.newlab("NOQB"); skip2 = g.newlab("NOQB")
    g.e("s_cmp_ge_u32 %s, 1" % sr(S_WAVE))
    g.e("s_cbranch_scc1 %s" % skip)
    q_job(g, False)
    g.e("s_branch %s" % skip2)
    g.lab(skip)
    g.e("s_barrier")
    g.lab(skip2)
    g.e("s_branch L_ROLE_B")

    g.lab("L_A_MAIN")
    g.c("================ ROLE A main ================")
    for i in range(16):
        g.e("v_mov_b32 %s, 0" % v(32 + i))
    g.e("v_mov_b32 v8, 0xff800000")
    g.e("v_mov_b32 v9, 0")
    g.e("v_mov_b32 v7, 1")
    g.e("s_mov_b32 %s, %d" % (sr(S_FIRST), (PRE - D) // 2))
    g.e("s_mov_b32 %s, 1" % sr(S_VALID))
    g.e("s_mov_b32 %s, 0" % sr(S_MODE))
    g.e("s_mov_b32 %s, 0x3db8aa3b" % sr(S_SC))
    Q = 16
    assert D <= 6 and PRE <= 8
    def unit_body(s0):
        o0 = 8 - s0
        sk = g.newlab("GR"); sk2 = g.newlab("GR")
        g.e("s_mov_b64 exec, 1")
        g.e("s_cmp_lg_u32 %s, 0" % sr(S_MODE))
        g.e("s_cbranch_scc1 %s" % sk)
        g.e("ds_add_rtn_u32 v6, v5, v7")
        g.e("s_branch %s" % sk2)
        g.lab(sk)
        g.e("v_mov_b32 v6, 1")
        g.e("buffer_atomic_add v6, off, %s, %s sc0 sc1" % (sr(SRD_WS, 4), sr(S_CTR)))
        g.lab(sk2)
        g.e("s_mov_b64 exec, -1")
        def resolve():
            gl = g.newlab("RG"); fin = g.newlab("RF"); loc = g.newlab("RL")
            g.e("s_waitcnt vmcnt(2) lgkmcnt(0)")
            g.e("v_readfirstlane_b32 %s, v6" % sr(S_NU))
            g.e("s_cmp_lg_u32 %s, 0" % sr(S_MODE))
            g.e("s_cbranch_scc1 %s" % gl)
            g.e("s_add_u32 s98, %s, 8" % sr(S_NU))
            g.e("s_cmp_ge_u32 s98, %s" % sr(S_UEND))
            g.e("s_cselect_b32 %s, 1, 0" % sr(S_MODE))
            g.e("s_cmp_lt_u32 %s, %s" % (sr(S_NU), sr(S_UEND)))
            g.e("s_cbranch_scc1 %s" % fin)
            g.e("s_mov_b64 exec, 1")
            g.e("v_mov_b32 v6, 1")
            g.e("buffer_atomic_add v6, off, %s, %s sc0 sc1" % (sr(SRD_WS, 4), sr(S_CTR)))
            g.e("s_mov_b64 exec, -1")
            g.e("s_waitcnt vmcnt(0)")
            g.e("v_readfirstlane_b32 %s, v6" % sr(S_NU))
            g.lab(gl)
            g.e("s_min_u32 %s, %s, 4096" % (sr(S_NU), sr(S_NU)))
            g.e("s_add_u32 %s, %s, %d" % (sr(S_NU), sr(S_NU), 512 - SH))
            g.e("s_cmp_lt_u32 %s, 512" % sr(S_NU))
            g.e("s_cselect_b32 %s, 1, 0" % sr(S_VALID))
            g.lab(fin)
            g.e("s_lshl_b32 %s, %s, 12" % (sr(S_NXT), sr(S_NU)))
            g.e("s_add_u32 %s, %s, %s" % (sr(S_NXT), sr(S_NXT), sr(S_SLAB)))
        def step_wait(c):
            g.e("s_waitcnt vmcnt(%d)" % (D - 2))
            if 2 * c + D - 1 >= 8:
                sk = g.newlab("W")
                g.e("s_cmp_lg_u32 %s, 0" % sr(S_VALID))
                g.e("s_cbranch_scc1 %s" % sk)
                g.e("s_waitcnt vmcnt(%d)" % min(D - 2, 6 - 2 * c))
                g.lab(sk)
        def step_issue(c):
            p = 2 * c + D
            sk = g.newlab("I"); sk2 = g.newlab("I")
            g.e("s_cmp_eq_u32 %s, 0" % sr(S_FIRST))
            g.e("s_cbranch_scc1 %s" % sk2)
            g.e("s_sub_u32 %s, %s, 1" % (sr(S_FIRST), sr(S_FIRST)))
            g.e("s_branch %s" % sk)
            g.lab(sk2)
            if p < 8:
                a_issue(s0 + p, S_CUR); a_issue(s0 + p + 1, S_CUR)
            else:
                g.e("s_cmp_eq_u32 %s, 0" % sr(S_VALID))
                g.e("s_cbranch_scc1 %s" % sk)
                a_issue(o0 + p - 8, S_NXT); a_issue(o0 + p - 7, S_NXT)
            g.lab(sk)
        for c in range(2):
            step_wait(c)
            ra, rb_ = RING + 4 * s0 + 8 * c, RING + 4 * s0 + 8 * c + 4
            g.e("v_dot2_f32_bf16 %s, %s, %s, 0" % (v(108 + c), v(ra), v(Q)))
            g.e("v_dot2_f32_bf16 %s, %s, %s, 0" % (v(112 + c), v(rb_), v(Q + 4)))
            for j in range(1, 4):
                g.e("v_dot2_f32_bf16 %s, %s, %s, %s" % (v(108 + c), v(ra + j), v(Q + j), v(108 + c)))
                g.e("v_dot2_f32_bf16 %s, %s, %s, %s" % (v(112 + c), v(rb_ + j), v(Q + 4 + j), v(112 + c)))
            if c == 1:
                resolve()
            step_issue(c)
        g.nop(2)
        g.e("v_add_f32 v108, v108, v112")
        g.e("v_add_f32 v109, v109, v113")
        dpp_allreduce16(g, "v_add_f32", [108, 109])
        g.e("v_cvt_pk_bf16_f32 v112, v108, v109")
        g.e("v_lshlrev_b32 v108, 16, v112")
        g.e("v_and_b32 v109, 0xffff0000, v112")
        g.e("v_mul_f32 v108, %s, v108" % sr(S_SC))
        g.e("v_mul_f32 v109, %s, v109" % sr(S_SC))
        g.e("v_max3_f32 v10, v108, v109, v8")
        g.e("v_cmp_gt_f32 vcc, v10, v8")
        g.e("v_sub_f32 v108, v108, v10")
        g.e("v_sub_f32 v109, v109, v10")
        g.e("v_exp_f32 v108, v108")
        g.e("v_exp_f32 v109, v109")
        sk = g.newlab("NORS")
        g.e("s_cbranch_vccz %s" % sk)
        g.e("v_sub_f32 v11, v8, v10")
        g.e("v_exp_f32 v11, v11")
        g.e("v_mov_b32 v8, v10")
        g.e("v_mul_f32 v9, v9, v11")
        for i in range(16):
            g.e("v_mul_f32 %s, %s, v11" % (v(32 + i), v(32 + i)))
        g.lab(sk)
        g.e("v_cvt_pk_bf16_f32 v96, v108, v109")
        g.e("v_add_f32 v9, v9, v108")
        g.e("v_add_f32 v9, v9, v109")
        for c in range(2, 4):
            step_wait(c)
            r0, r1 = RING + 4 * s0 + 8 * c, RING + 4 * s0 + 8 * c + 4
            hf = c - 2
            for j in range(4):
                g.e("v_perm_b32 %s, %s, %s, %s" % (v(100 + 2 * j), v(r1 + j), v(r0 + j), sr(S_PLO)))
                g.e("v_perm_b32 %s, %s, %s, %s" % (v(101 + 2 * j), v(r1 + j), v(r0 + j), sr(S_PHI)))
            step_issue(c)
            for e_ in range(8):
                g.e("v_dot2_f32_bf16 %s, %s, v96, %s" % (v(32 + 8 * hf + e_), v(100 + e_), v(32 + 8 * hf + e_)))
        g.e("s_cmp_eq_u32 %s, 0" % sr(S_VALID))
        g.e("s_cbranch_scc1 A_DONE")
        g.e("s_mov_b32 %s, %s" % (sr(S_CUR), sr(S_NXT)))
    g.lab("A_LOOP")
    unit_body(0)
    unit_body(8)
    g.e("s_branch A_LOOP")
    g.lab("A_DONE")
    if opt("V1", 0): g.e("s_setprio 3")
    g.e("s_waitcnt lgkmcnt(0)")
    stamp(g, 2, 15)
    g.e("v_mov_b32 v10, v8")
    cross_rows(g, "v_max_f32", 10, 12)
    g.e("v_sub_f32 v11, v8, v10")
    g.e("v_exp_f32 v11, v11")
    g.nop(0)
    g.e("v_mul_f32 v9, v9, v11")
    for i in range(16):
        g.e("v_mul_f32 %s, %s, v11" % (v(32 + i), v(32 + i)))
    g.e("v_mov_b32 v11, v9")
    cross_rows(g, "v_add_f32", 11, 12)
    transpose_reduce16(g, 32)
    g.e("v_lshrrev_b32 v12, 1, %s" % v(V_G))
    g.e("v_lshlrev_b32 v12, 9, v12")
    g.e("v_and_b32 v13, 1, %s" % v(V_G))
    g.e("v_lshl_add_u32 v12, v13, 4, v12")
    g.e("v_lshl_add_u32 v12, %s, 5, v12" % v(V_L16))
    g.e("s_lshl_b32 s98, %s, 10" % sr(S_WAVE))
    g.e("v_add_u32 v12, s98, v12")
    g.e("ds_write_b128 v12, %s offset:%d" % (v(32, 4), L_AO))
    g.e("s_lshl_b32 s98, %s, 3" % sr(S_WAVE))
    g.e("v_mov_b32 v12, s98")
    g.e("s_mov_b64 exec, 1")
    g.e("ds_write_b64 v12, v[10:11] offset:%d" % L_AM)
    g.e("s_mov_b64 exec, -1")
    g.e("s_waitcnt lgkmcnt(0)")
    g.e("s_barrier")
    skip = g.newlab("ACOMB")
    g.e("s_cmp_ge_u32 %s, 4" % sr(S_WAVE))
    g.e("s_cbranch_scc1 %s" % skip)
    g.e("v_lshlrev_b32 v12, 2, v0")
    g.e("v_mov_b32 v13, 0")
    for w in range(8):
        g.e("ds_read_b32 %s, v12 offset:%d" % (v(32 + w), L_AO + w * 1024))
    for x in range(4):
        g.e("ds_read_b128 %s, v13 offset:%d" % (v(48 + 4 * x, 4), L_AM + 16 * x))
    g.e("s_waitcnt lgkmcnt(0)")
    g.e("v_max3_f32 v10, v48, v50, v52")
    g.e("v_max3_f32 v10, v10, v54, v56")
    g.e("v_max3_f32 v10, v10, v58, v60")
    g.e("v_max_f32 v10, v10, v62")
    for w in range(8):
        g.e("v_sub_f32 %s, %s, v10" % (v(48 + 2 * w), v(48 + 2 * w)))
    for w in range(8):
        g.e("v_exp_f32 %s, %s" % (v(48 + 2 * w), v(48 + 2 * w)))
    g.nop(0)
    g.e("v_mul_f32 v14, v32, v48")
    g.e("v_mul_f32 v11, v49, v48")
    for w in range(1, 8):
        g.e("v_fmac_f32 v14, %s, %s" % (v(32 + w), v(48 + 2 * w)))
        g.e("v_fmac_f32 v11, %s, %s" % (v(49 + 2 * w), v(48 + 2 * w)))
    g.e("s_lshl_b32 s98, %s, 12" % sr(S_CU))
    g.e("s_add_u32 s98, s98, %d" % WS_AP)
    g.e("v_mov_b32 v15, %s" % sr(S_TAG))
    g.e("v_lshlrev_b32 v12, 3, v0")
    g.e("buffer_store_dwordx2 v[14:15], v12, %s, s98 offen sc1" % sr(SRD_WS, 4))
    g.e("s_cmp_lg_u32 %s, 0" % sr(S_WAVE))
    g.e("s_cbranch_scc1 %s" % skip)
    g.e("v_mov_b32 v32, v10")
    g.e("v_mov_b32 v33, %s" % sr(S_TAG))
    g.e("v_mov_b32 v34, v11")
    g.e("v_mov_b32 v35, %s" % sr(S_TAG))
    g.e("s_mov_b64 exec, 1")
    g.e("buffer_store_dwordx4 v[32:35], off, %s, s98 offset:2048 sc1" % sr(SRD_WS, 4))
    g.e("s_mov_b64 exec, -1")
    g.lab(skip)
    flag_store(g, WS_AF, S_CU, 0)
    stamp(g, 3, 15)
    g.e("s_cmp_ge_u32 %s, 8" % sr(S_J))
    g.e("s_cbranch_scc1 L_END")
    g.e("s_cmp_ge_u32 %s, 4" % sr(S_J))
    g.e("s_cbranch_scc1 L_FINAL")
    g.c("---- A combine (CUs j<4): rows h*256+64j ----")
    preperm(g, 160, 8)
    g.e("s_mul_i32 s99, %s, 48" % sr(S_H))
    g.e("s_add_u32 s99, s99, %d" % WS_AF)
    poll_flags(g, "s99", 12, sleep=1)
    stamp(g, 4, 15)
    skip = g.newlab("ACB")
    g.e("s_cmp_ge_u32 %s, 2" % sr(S_WAVE))
    g.e("s_cbranch_scc1 %s" % skip)
    lp = g.newlab("ACL"); ok = g.newlab("ACOK")
    g.e("s_mov_b32 %s, 0" % sr(S_SPIN))
    g.e("s_lshl_b32 s99, %s, 9" % sr(S_J))
    g.e("v_lshlrev_b32 v12, 3, %s" % v(V_LANE))
    g.e("v_add_u32 v12, s99, v12")
    g.lab(lp)
    g.e("s_mul_i32 s98, %s, 12" % sr(S_H))
    g.e("s_mul_i32 s99, %s, 6" % sr(S_WAVE))
    g.e("s_add_u32 s98, s98, s99")
    g.e("s_lshl_b32 s98, s98, 12")
    g.e("s_add_u32 s98, s98, %d" % WS_AP)
    for s_ in range(6):
        g.e("buffer_load_dwordx2 %s, v12, %s, s98 offen sc1" % (v(32 + 2 * s_, 2), sr(SRD_WS, 4)))
        g.e("buffer_load_dwordx4 %s, off, %s, s98 offset:2048 sc1" % (v(80 + 4 * s_, 4), sr(SRD_WS, 4)))
        g.e("s_add_u32 s98, s98, 4096")
    g.e("s_waitcnt vmcnt(0)")
    g.e("v_xor_b32 v13, %s, v33" % sr(S_TAG))
    for r_ in list(range(35, 44, 2)) + list(range(81, 104, 2)):
        g.e("v_xor_b32 v14, %s, %s" % (sr(S_TAG), v(r_)))
        g.e("v_or_b32 v13, v13, v14")
    g.e("v_cmp_eq_u32 vcc, 0, v13")
    g.e("s_cmp_eq_u64 vcc, exec")
    g.e("s_cbranch_scc1 %s" % ok)
    g.e("s_add_u32 %s, %s, 1" % (sr(S_SPIN), sr(S_SPIN)))
    g.e("s_cmp_gt_u32 %s, %d" % (sr(S_SPIN), SPIN_MAX))
    g.e("s_cbranch_scc0 %s" % lp)
    g.lab(ok)
    g.e("v_max3_f32 v10, v80, v84, v88")
    g.e("v_max3_f32 v10, v10, v92, v96")
    g.e("v_max_f32 v10, v10, v100")
    for s_ in range(6):
        g.e("v_sub_f32 %s, %s, v10" % (v(80 + 4 * s_), v(80 + 4 * s_)))
    for s_ in range(6):
        g.e("v_exp_f32 %s, %s" % (v(80 + 4 * s_), v(80 + 4 * s_)))
    g.nop(0)
    g.e("v_mul_f32 v14, v32, v80")
    g.e("v_mul_f32 v11, v82, v80")
    for s_ in range(1, 6):
        g.e("v_fmac_f32 v14, %s, %s" % (v(32 + 2 * s_), v(80 + 4 * s_)))
        g.e("v_fmac_f32 v11, %s, %s" % (v(82 + 4 * s_), v(80 + 4 * s_)))
    g.e("v_rcp_f32 v11, v11")
    g.nop(0)
    g.e("v_mul_f32 v14, v14, v11")
    g.e("v_cvt_pk_bf16_f32 v14, v14, v14")
    g.e("v_lshlrev_b32 v12, 1, v0")
    g.e("ds_write_b16 v12, v14 offset:%d" % L_OA)
    g.lab(skip)
    g.e("s_waitcnt lgkmcnt(0)")
    g.e("s_barrier")
    out_gemv(g, 160, 8, L_OA, 128, 48, 32)
    g.e("s_lshl_b32 %s, %s, 2" % (sr(S_YI), sr(S_H)))
    g.e("s_add_u32 %s, %s, %s" % (sr(S_YI), sr(S_YI), sr(S_J)))
    g.e("s_branch L_YPUB")

    g.lab("L_ROLE_B")
    g.c("================ ROLE B main ================")
    if "--noB" in sys.argv:
        g.e("s_branch L_END")
    for i in range(4):
        g.e("s_lshl_b32 s98, %s, 2" % sr(S_WAVE))
        g.e("s_add_u32 s98, s98, %d" % i)
        g.e("s_and_b32 s98, s98, 15")
        g.e("s_and_b32 s99, s98, 7")
        g.e("s_lshl_b32 s99, s99, 1")
        g.e("s_lshr_b32 s98, s98, 3")
        g.e("s_or_b32 s98, s98, s99")
        g.e("v_xor_b32 %s, s98, %s" % (v(8 + i), v(V_LANE)))
        g.e("v_lshlrev_b32 %s, 4, %s" % (v(8 + i), v(8 + i)))
    g.e("s_lshl_b32 s98, %s, 12" % sr(S_BB))
    g.e("s_lshl_b32 s99, %s, 7" % sr(S_KR))
    g.e("s_add_u32 s98, s98, s99")
    g.e("s_lshl_b32 s99, %s, 2" % sr(S_WAVE))
    g.e("s_add_u32 s98, s98, s99")
    g.e("s_lshl_b32 %s, s98, 11" % sr(S_CKV))
    g.e("s_lshl_b32 %s, %s, 13" % (sr(S_LW), sr(S_WAVE)))
    def dma_tile(t):
        buf = L_TILE0 if t % 2 == 0 else L_TILE1
        for i in range(4):
            for hf in range(2):
                g.e("s_add_u32 s98, %s, %d" % (sr(S_LW), buf + i * 2048 + hf * 1024))
                g.e("s_mov_b32 m0, s98")
                g.e("s_add_u32 s99, %s, %d" % (sr(S_CKV), t * 65536 + i * 2048 + hf * 1024))
                g.vm("dma%d" % t, "buffer_load_dwordx4 %s, %s, s99 offen nt lds" % (v(8 + i), sr(SRD_K, 4)))
    dma_tile(0)
    dma_tile(1)
    for t in (2, 3):
        for i in range(4):
            for hf in range(2):
                g.e("s_add_u32 s99, %s, %d" % (sr(S_CKV), t * 65536 + i * 2048 + hf * 1024))
                g.vm("rt%d" % t, "buffer_load_dwordx4 %s, %s, %s, s99 offen nt" % (v(192 + 32 * (t - 2) + 4 * (2 * i + hf), 4), v(8 + i), sr(SRD_K, 4)))
    g.e("v_lshlrev_b32 v31, 4, %s" % v(V_LANE))
    g.e("v_add_u32 v31, %s, v31" % sr(S_LW))
    UV = 192
    uvn = [0]
    def uv_setup():
        g.e("v_lshlrev_b32 v30, 17, %s" % v(V_G))
        g.e("v_lshl_add_u32 v30, %s, 4, v30" % v(V_L16))
        g.e("s_lshr_b32 s98, %s, 1" % sr(S_J))
        g.e("s_lshl_b32 s98, s98, 9")
        g.e("s_lshl_b32 s99, %s, 6" % sr(S_WAVE))
        g.e("s_add_u32 s98, s98, s99")
        g.e("s_lshl_b32 s98, s98, 13")
        g.e("s_lshl_b32 s99, %s, 9" % sr(S_H))
        g.e("s_add_u32 s98, s98, s99")
        g.e("s_lshl_b32 s99, %s, 8" % sr(S_DH))
        g.e("s_add_u32 %s, s98, s99" % sr(S_QU))
    def uv_some(k):
        for _ in range(k):
            n = uvn[0]
            if n >= 16:
                return
            g.e("buffer_load_dwordx4 %s, v30, %s, %s offen nt" % (v(UV + 4 * n, 4), sr(SRD_V, 4), sr(S_QU)))
            g.e("s_add_u32 %s, %s, 8192" % (sr(S_QU), sr(S_QU)))
            uvn[0] += 1
    uv_setup()
    g.e("v_and_b32 v12, 7, %s" % v(V_L16))
    g.e("v_lshlrev_b32 v12, 1, v12")
    g.e("v_lshrrev_b32 v13, 3, %s" % v(V_L16))
    g.e("v_or_b32 v12, v12, v13")
    g.e("v_lshlrev_b32 v13, 1, %s" % v(V_G))
    g.e("v_xor_b32 v12, v12, v13")
    g.e("s_lshr_b32 s98, %s, 2" % sr(S_WAVE))
    g.e("s_lshl_b32 s98, s98, 15")
    g.e("s_and_b32 s99, %s, 3" % sr(S_WAVE))
    g.e("s_lshl_b32 s99, s99, 9")
    g.e("s_add_u32 s98, s98, s99")
    g.e("v_lshlrev_b32 v13, 11, %s" % v(V_L16))
    g.e("v_add_u32 v13, s98, v13")
    for x, X in enumerate((0, 1, 8, 9)):
        g.e("v_xor_b32 v14, %d, v12" % X)
        g.e("v_lshl_add_u32 %s, v14, 4, v13" % v(4 + x))
    g.e("v_lshrrev_b32 v12, 2, %s" % v(V_L16))
    g.e("v_lshl_add_u32 v12, %s, 2, v12" % v(V_G))
    g.e("v_and_b32 v13, 7, v12")
    g.e("v_lshlrev_b32 v13, 1, v13")
    g.e("v_lshrrev_b32 v14, 3, v12")
    g.e("v_or_b32 v13, v13, v14")
    g.e("v_bfe_u32 v14, %s, 1, 1" % v(V_L16))
    g.e("v_xor_b32 v13, v13, v14")
    g.e("v_lshlrev_b32 v12, 11, v12")
    g.e("v_and_b32 v14, 1, %s" % v(V_L16))
    g.e("v_lshl_add_u32 v12, v14, 3, v12")
    g.e("s_lshl_b32 s98, %s, 8" % sr(S_WAVE))
    g.e("v_add_u32 v12, s98, v12")
    for ct in range(8):
        g.e("v_xor_b32 v14, %d, v13" % (2 * ct))
        g.e("v_lshl_add_u32 %s, v14, 4, v12" % v(16 + ct))
    g.e("v_lshlrev_b32 v29, 4, %s" % v(V_LANE))
    g.e("v_add_u32 v29, %d, v29" % L_SX)
    g.e("s_lshl_b32 s98, %s, 10" % sr(S_WAVE))
    g.e("v_add_u32 v28, s98, v29")
    ACC = 32
    for i in range(32):
        g.e("v_mov_b32 %s, 0" % v(ACC + i))
    g.e("v_mov_b32 v124, 0xff800000")
    g.e("v_mov_b32 v125, 0")
    g.e("s_mov_b32 %s, 0x3db8aa3b" % sr(S_SC))
    g.e("s_waitcnt vmcnt(32)")
    g.e("v_readfirstlane_b32 %s, v127" % sr(S_TAG))
    g.e("s_add_u32 %s, %s, 1" % (sr(S_TAG), sr(S_TAG)))
    stamp(g, 2, 15)
    if "--ckvtest" in sys.argv:
        g.e("s_waitcnt vmcnt(16)")
        stamp(g, 3, 15)
        g.e("s_waitcnt vmcnt(0)")
        stamp(g, 4, 15)
        g.e("s_branch L_END")
    poll_flags(g, WS_QF, 192, pw=4)
    stamp(g, 3, 15)

    QF = 128
    g.c("---- ATT B ----")
    g.e("v_lshlrev_b32 v12, 4, %s" % v(V_LANE))
    g.e("s_and_b32 s98, %s, 3" % sr(S_WAVE))
    g.e("s_lshl_b32 s98, s98, 14")
    g.e("s_lshl_b32 s99, %s, 16" % sr(S_BB))
    g.e("s_add_u32 s98, s98, s99")
    g.e("s_add_u32 s98, s98, %d" % WS_QH)
    for ks in range(8):
        g.vm("qf", "buffer_load_dwordx4 %s, v12, %s, s98 offen offset:%d sc1" % (v(QF + 8 * ks, 4), sr(SRD_WS, 4), (ks & 1) * 2048))
        g.vm("qf", "buffer_load_dwordx4 %s, v12, %s, s98 offen offset:%d sc1" % (v(QF + 8 * ks + 4, 4), sr(SRD_WS, 4), (ks & 1) * 2048 + 1024))
        if ks & 1:
            g.e("s_add_u32 s98, s98, 4096")
    g.wait("qf")
    stamp(g, 16, 15)
    for t in range(4):
        g.c("tile %d" % t)
        if t: stamp(g, 16 + 3 * t, 15)
        g.e("s_waitcnt lgkmcnt(0)")
        g.e("s_barrier")
        if t >= 1 and t + 1 < 4:
            if t == 2:
                g.e("v_add_u32 v31, 0x10000, v31")
            for x in range(8):
                g.e("ds_write_b128 v31, %s offset:%d" % (v(192 + 32 * (t - 1) + 4 * x, 4), x * 1024))
        if t >= 1:
            op = "v_add_u32" if t % 2 == 1 else "v_subrev_u32"
            for r_ in list(range(4, 8)) + list(range(16, 24)):
                g.e("%s %s, 0x10000, %s" % (op, v(r_), v(r_)))
        if t >= 2: uv_some(2)
        for i in range(8):
            g.e("v_mov_b32 %s, 0" % v(80 + i))
        for ks in range(8):
            g.e("ds_read_b128 %s, %s offset:%d" % (v(88 + 4 * ks, 4), v(4 + (ks & 3)), (ks >> 2) * 256))
        for ks in range(8):
            g.e("s_waitcnt lgkmcnt(%d)" % (7 - ks))
            g.e("v_mfma_f32_16x16x32_bf16 %s, %s, %s, %s" % (v(80, 4), v(88 + 4 * ks, 4), v(QF + 8 * ks, 4), v(80, 4)))
            g.e("v_mfma_f32_16x16x32_bf16 %s, %s, %s, %s" % (v(84, 4), v(88 + 4 * ks, 4), v(QF + 8 * ks + 4, 4), v(84, 4)))
        g.nop(7)
        g.nop(1)
        for i in range(4):
            g.e("v_add_f32 %s, %s, %s" % (v(80 + i), v(80 + i), v(84 + i)))
        g.e("ds_write_b128 v28, %s" % v(80, 4))
        if t >= 2: uv_some(2)
        g.e("s_waitcnt lgkmcnt(0)")
        stamp(g, 17 + 3 * t, 15)
        g.e("s_barrier")
        stamp(g, 18 + 3 * t, 15)
        for x in range(8):
            g.e("ds_read_b128 %s, v29 offset:%d" % (v(88 + 4 * x, 4), x * 1024))
        g.e("s_waitcnt lgkmcnt(0)")
        for st in range(2):
            for i in range(4):
                a = 88 + 16 * st + i
                g.e("v_add_f32 %s, %s, %s" % (v(a), v(a), v(a + 4)))
                g.e("v_add_f32 %s, %s, %s" % (v(a + 8), v(a + 8), v(a + 12)))
                g.e("v_add_f32 %s, %s, %s" % (v(a), v(a), v(a + 8)))
                g.e("v_mul_f32 %s, %s, %s" % (v(80 + 4 * st + i), sr(S_SC), v(a)))
        if t >= 2: uv_some(2)
        g.e("v_max3_f32 v12, v80, v81, v82")
        g.e("v_max3_f32 v12, v12, v83, v84")
        g.e("v_max3_f32 v12, v12, v85, v86")
        g.e("v_max3_f32 v12, v12, v87, v124")
        cross_rows(g, "v_max_f32", 12, 13)
        g.e("v_sub_f32 v126, v124, v12")
        g.e("v_exp_f32 v126, v126")
        g.e("v_mov_b32 v124, v12")
        for i in range(8):
            g.e("v_sub_f32 %s, %s, v12" % (v(80 + i), v(80 + i)))
        for i in range(8):
            g.e("v_exp_f32 %s, %s" % (v(80 + i), v(80 + i)))
        g.e("v_mul_f32 v125, v125, v126")
        for i in range(8):
            g.e("v_add_f32 v125, v125, %s" % v(80 + i))
        for k in range(4):
            g.e("v_cvt_pk_bf16_f32 %s, %s, %s" % (v(120 + k), v(80 + 2 * k), v(81 + 2 * k)))
        for ct in range(8):
            g.e("ds_read_b64_tr_b16 %s, %s" % (v(88 + 4 * ct, 2), v(16 + ct)))
            g.e("ds_read_b64_tr_b16 %s, %s offset:32768" % (v(90 + 4 * ct, 2), v(16 + ct)))
        if t >= 2: uv_some(2)
        for i in range(32):
            g.e("v_mul_f32 %s, %s, v126" % (v(ACC + i), v(ACC + i)))
        for ct in range(8):
            g.e("s_waitcnt lgkmcnt(%d)" % (14 - 2 * ct))
            g.e("v_mfma_f32_16x16x32_bf16 %s, %s, %s, %s" % (v(ACC + 4 * ct, 4), v(88 + 4 * ct, 4), v(120, 4), v(ACC + 4 * ct, 4)))
    g.nop(7)
    g.nop(1)
    stamp(g, 4, 15)
    g.e("s_mul_i32 s98, %s, 4352" % sr(S_WAVE))
    g.e("s_movk_i32 s99, 272")
    g.e("v_mul_lo_u32 v12, %s, s99" % v(V_L16))
    g.e("v_lshl_add_u32 v12, %s, 3, v12" % v(V_G))
    g.e("v_add_u32 v12, s98, v12")
    for ct in range(8):
        g.e("v_cvt_pk_bf16_f32 %s, %s, %s" % (v(88 + 2 * ct), v(ACC + 4 * ct), v(ACC + 4 * ct + 1)))
        g.e("v_cvt_pk_bf16_f32 %s, %s, %s" % (v(89 + 2 * ct), v(ACC + 4 * ct + 2), v(ACC + 4 * ct + 3)))
        g.e("ds_write_b64 v12, %s offset:%d" % (v(88 + 2 * ct, 2), ct * 32))
    g.e("v_mul_lo_u32 v12, %s, s99" % v(V_G))
    g.e("v_lshl_add_u32 v12, %s, 4, v12" % v(V_L16))
    g.e("v_add_u32 v12, s98, v12")
    g.e("s_waitcnt lgkmcnt(0)")
    for x in range(4):
        g.e("ds_read_b128 %s, v12 offset:%d" % (v(88 + 4 * x, 4), x * 4 * 272))
    g.e("v_lshlrev_b32 v12, 11, %s" % v(V_G))
    g.e("v_lshl_add_u32 v12, %s, 4, v12" % v(V_L16))
    g.e("s_sub_u32 s98, %s, 192" % sr(S_CU))
    g.e("s_lshl_b32 s98, s98, 15")
    g.e("s_lshl_b32 s99, %s, 8" % sr(S_WAVE))
    g.e("s_add_u32 s98, s98, s99")
    g.e("s_add_u32 s98, s98, %d" % WS_PC)
    for x in range(4):
        g.e("s_waitcnt lgkmcnt(%d)" % (3 - x))
        g.e("buffer_store_dwordx4 %s, v12, %s, s98 offen sc1" % (v(88 + 4 * x, 4), sr(SRD_WS, 4)))
        g.e("s_add_u32 s98, s98, 8192")
    cross_rows(g, "v_add_f32", 125, 13)
    skip = g.newlab("PST")
    g.e("s_cmp_lg_u32 %s, 0" % sr(S_WAVE))
    g.e("s_cbranch_scc1 %s" % skip)
    g.e("v_lshlrev_b32 v12, 9, %s" % v(V_L16))
    g.e("s_sub_u32 s98, %s, 192" % sr(S_CU))
    g.e("s_lshl_b32 s98, s98, 3")
    g.e("s_add_u32 s98, s98, %d" % WS_PS)
    g.e("s_mov_b64 exec, 0xffff")
    g.e("buffer_store_dwordx2 %s, v12, %s, s98 offen sc1" % (v(124, 2), sr(SRD_WS, 4)))
    g.e("s_mov_b64 exec, -1")
    g.lab(skip)
    g.waitall()
    g.e("s_barrier")
    flag_store(g, WS_PF, S_CU, 192)
    stamp(g, 5, 15)
    def wo_b():
        g.e("s_lshl_b32 %s, %s, 8" % (sr(S_T[1]), sr(S_H)))
        g.e("s_lshl_b32 %s, %s, 7" % (sr(S_T[2]), sr(S_DH)))
        g.e("s_add_u32 %s, %s, %s" % (sr(S_T[1]), sr(S_T[1]), sr(S_T[2])))
        load_rows896(g, SRD_WO, S_T[1], 16, 128)
    skip = g.newlab("WOB")
    g.e("s_cmp_eq_u32 %s, 0" % sr(S_WAVE))
    g.e("s_cbranch_scc1 %s" % skip)
    wo_b()
    g.lab(skip)
    g.c("---- CTX ----")
    poll_flags(g, WS_PF, 64)
    stamp(g, 6, 15)
    g.q = []
    g.e("v_lshlrev_b32 v12, 3, %s" % v(V_LANE))
    g.e("s_lshl_b32 s98, %s, 9" % sr(S_H))
    g.e("s_add_u32 s98, s98, %d" % WS_PS)
    g.e("buffer_load_dwordx2 v[14:15], v12, %s, s98 offen sc1" % sr(SRD_WS, 4))
    g.e("v_lshlrev_b32 v13, 4, %s" % v(V_LANE))
    g.e("s_lshl_b32 s98, %s, 18" % sr(S_WAVE))
    g.e("s_lshl_b32 s99, %s, 11" % sr(S_H))
    g.e("s_add_u32 s98, s98, s99")
    g.e("s_lshr_b32 s99, %s, 1" % sr(S_J))
    g.e("s_lshl_b32 s99, s99, 10")
    g.e("s_add_u32 s98, s98, s99")
    g.e("s_add_u32 s98, s98, %d" % WS_PC)
    for i in range(8):
        g.e("buffer_load_dwordx4 %s, v13, %s, s98 offen sc1" % (v(64 + 4 * i, 4), sr(SRD_WS, 4)))
        g.e("s_add_u32 s98, s98, 32768")
    g.e("s_waitcnt vmcnt(8)")
    g.e("v_mov_b32 v12, v14")
    dpp_allreduce16(g, "v_max_f32", [12])
    cross_rows(g, "v_max_f32", 12, 13, both=False)
    g.e("v_sub_f32 v12, v14, v12")
    g.e("v_exp_f32 v12, v12")
    g.nop(0)
    g.e("v_mul_f32 v13, v12, v15")
    dpp_allreduce16(g, "v_add_f32", [13])
    cross_rows(g, "v_add_f32", 13, 14, both=False)
    g.e("v_rcp_f32 v13, v13")
    g.nop(0)
    g.e("v_mul_f32 v12, v12, v13")
    g.e("s_lshl_b32 s98, %s, 3" % sr(S_WAVE))
    g.nop(1)
    for i in range(8):
        g.e("v_readlane_b32 %s, v12, s98" % sr(S_O + i))
        g.e("s_add_u32 s98, s98, 1")
    for j in range(8):
        g.e("v_mov_b32 %s, 0" % v(32 + j))
    for i in range(8):
        g.e("s_waitcnt vmcnt(%d)" % (7 - i))
        for j in range(4):
            g.e("v_lshlrev_b32 v12, 16, %s" % v(64 + 4 * i + j))
            g.e("v_and_b32 v13, 0xffff0000, %s" % v(64 + 4 * i + j))
            g.e("v_fmac_f32 %s, %s, v12" % (v(32 + 2 * j), sr(S_O + i)))
            g.e("v_fmac_f32 %s, %s, v13" % (v(33 + 2 * j), sr(S_O + i)))
    skip = g.newlab("WOB0")
    g.e("s_cmp_lg_u32 %s, 0" % sr(S_WAVE))
    g.e("s_cbranch_scc1 %s" % skip)
    wo_b()
    g.lab(skip)
    g.e("s_and_b32 s98, %s, 3" % sr(S_WAVE))
    g.e("s_lshl_b32 s98, s98, 12")
    g.e("s_lshr_b32 s99, %s, 2" % sr(S_WAVE))
    g.e("s_lshl_b32 s99, s99, 11")
    g.e("s_add_u32 s98, s98, s99")
    g.e("s_add_u32 s98, s98, %d" % L_CX)
    g.e("v_lshlrev_b32 v13, 5, %s" % v(V_LANE))
    g.e("v_add_u32 v13, s98, v13")
    g.e("ds_write_b128 v13, %s" % v(32, 4))
    g.e("ds_write_b128 v13, %s offset:16" % v(36, 4))
    g.e("s_waitcnt lgkmcnt(0)")
    g.e("s_barrier")
    g.e("v_lshlrev_b32 v12, 3, v0")
    g.e("v_add_u32 v12, %d, v12" % L_CX)
    for x in range(4):
        g.e("ds_read_b64 %s, v12 offset:%d" % (v(32 + 2 * x, 2), x * 4096))
    g.e("s_waitcnt lgkmcnt(0)")
    g.e("v_add_f32 v32, v32, v34")
    g.e("v_add_f32 v33, v33, v35")
    g.e("v_add_f32 v36, v36, v38")
    g.e("v_add_f32 v37, v37, v39")
    g.e("v_add_f32 v32, v32, v36")
    g.e("v_add_f32 v33, v33, v37")
    g.e("v_cvt_pk_bf16_f32 v32, v32, v33")
    g.e("v_lshlrev_b32 v12, 2, v0")
    g.e("v_add_u32 v12, %d, v12" % L_CB)
    g.e("ds_write_b32 v12, v32")
    g.e("s_waitcnt lgkmcnt(0)")
    g.e("s_barrier")
    g.e("v_lshlrev_b32 v12, 5, %s" % v(V_G))
    g.e("s_lshl_b32 s98, %s, 7" % sr(S_WAVE))
    g.e("s_add_u32 s98, s98, %d" % L_CB)
    g.e("v_add_u32 v12, s98, v12")
    for b in range(2):
        g.e("ds_read_b128 %s, v12 offset:%d" % (v(64 + 8 * b, 4), b * 1024))
        g.e("ds_read_b128 %s, v12 offset:%d" % (v(68 + 8 * b, 4), b * 1024 + 16))
    for i in range(16):
        g.e("v_mov_b32 %s, 0" % v(32 + i))
    g.e("s_waitcnt lgkmcnt(0)")
    for k in range(8):
        r0, r1 = UV + 8 * k, UV + 8 * k + 4
        for j in range(4):
            g.e("v_perm_b32 %s, %s, %s, %s" % (v(100 + 2 * j), v(r1 + j), v(r0 + j), sr(S_PLO)))
            g.e("v_perm_b32 %s, %s, %s, %s" % (v(101 + 2 * j), v(r1 + j), v(r0 + j), sr(S_PHI)))
        for b in range(2):
            for e_ in range(8):
                g.e("v_dot2_f32_bf16 %s, %s, %s, %s" % (v(32 + 8 * b + e_), v(100 + e_), v(64 + 8 * b + k), v(32 + 8 * b + e_)))
    g.nop(3)
    transpose_reduce16(g, 32)
    g.e("v_lshrrev_b32 v12, 1, %s" % v(V_G))
    g.e("v_lshlrev_b32 v12, 9, v12")
    g.e("v_and_b32 v13, 1, %s" % v(V_G))
    g.e("v_lshl_add_u32 v12, v13, 4, v12")
    g.e("v_lshl_add_u32 v12, %s, 5, v12" % v(V_L16))
    g.e("s_lshl_b32 s98, %s, 10" % sr(S_WAVE))
    g.e("v_add_u32 v12, s98, v12")
    g.e("ds_write_b128 v12, %s offset:%d" % (v(32, 4), L_OX))
    g.e("s_waitcnt lgkmcnt(0)")
    g.e("s_barrier")
    skip = g.newlab("OBS")
    g.e("s_cmp_ge_u32 %s, 4" % sr(S_WAVE))
    g.e("s_cbranch_scc1 %s" % skip)
    g.e("v_lshlrev_b32 v12, 2, v0")
    for w in range(8):
        g.e("ds_read_b32 %s, v12 offset:%d" % (v(32 + w), L_OX + w * 1024))
    g.e("s_waitcnt lgkmcnt(0)")
    for w in range(1, 8):
        g.e("v_add_f32 v32, v32, %s" % v(32 + w))
    g.e("v_cvt_pk_bf16_f32 v32, v32, v32")
    g.e("v_lshlrev_b32 v12, 1, v0")
    g.e("ds_write_b16 v12, v32 offset:%d" % L_OB)
    g.lab(skip)
    g.e("s_waitcnt lgkmcnt(0)")
    g.e("s_barrier")
    g.e("s_waitcnt vmcnt(0)")
    preperm(g, 128, 16)
    out_gemv(g, 128, 16, L_OB, 256, 48, 32)
    stamp(g, 7, 15)

    g.e("s_sub_u32 %s, %s, 128" % (sr(S_YI), sr(S_CU)))
    g.lab("L_YPUB")
    g.nop(3)
    g.e("s_mul_i32 s98, %s, 3584" % sr(S_WAVE))
    g.e("s_add_u32 s98, s98, %d" % L_YX)
    g.e("v_lshlrev_b32 v12, 5, %s" % v(V_LANE))
    g.e("v_add_u32 v12, s98, v12")
    g.e("s_mov_b32 exec_hi, 0x00ffffff")
    for b in range(2):
        for hh in range(2):
            g.e("ds_write_b128 v12, %s offset:%d" % (v(48 + b * 8 + hh * 4, 4), b * 1792 + hh * 16))
    g.e("s_mov_b32 exec_hi, -1")
    g.e("s_waitcnt lgkmcnt(0)")
    g.e("s_barrier")
    skip = g.newlab("YS")
    g.e("v_cmp_gt_u32 vcc, 224, v0")
    g.e("s_and_saveexec_b64 %s, vcc" % sr(S_EX, 2))
    g.e("s_cbranch_execz %s" % skip)
    g.e("v_lshlrev_b32 v12, 4, v0")
    g.e("v_add_u32 v13, %d, v12" % L_YX)
    for wv in range(8):
        g.e("ds_read_b128 %s, v13 offset:%d" % (v(64 + wv * 4, 4), wv * 3584))
    g.e("s_waitcnt lgkmcnt(0)")
    for wv in range(1, 8):
        for j in range(4):
            g.e("v_add_f32 %s, %s, %s" % (v(64 + j), v(64 + j), v(64 + wv * 4 + j)))
    g.e("s_mul_i32 s98, %s, 7168" % sr(S_YI))
    g.e("s_add_u32 s98, s98, %d" % WS_Y)
    g.e("v_lshlrev_b32 v12, 5, v0")
    for j in range(4):
        g.e("v_mov_b32 %s, %s" % (v(72 + 2 * j), v(64 + j)))
        g.e("v_mov_b32 %s, %s" % (v(73 + 2 * j), sr(S_TAG)))
    g.e("buffer_store_dwordx4 v[72:75], v12, %s, s98 offen sc1" % sr(SRD_WS, 4))
    g.e("buffer_store_dwordx4 v[76:79], v12, %s, s98 offen offset:16 sc1" % sr(SRD_WS, 4))
    g.lab(skip)
    g.e("s_mov_b64 exec, %s" % sr(S_EX, 2))
    flag_store(g, WS_YF, S_YI, 0)
    stamp(g, 9, 15)
    g.e("s_branch L_END")

    g.lab("L_FINAL")
    g.c("---- FINAL ----")
    g.e("s_lshl_b32 %s, %s, 2" % (sr(S_YI), sr(S_H)))
    g.e("s_add_u32 %s, %s, %s" % (sr(S_YI), sr(S_YI), sr(S_J)))
    g.e("s_sub_u32 %s, %s, 4" % (sr(S_YI), sr(S_YI)))
    g.e("s_cmp_ge_u32 %s, 56" % sr(S_YI))
    g.e("s_cbranch_scc1 L_END")
    poll_flags(g, WS_YF, 128, sleep=1)
    stamp(g, 10, 15)
    g.e("s_mov_b32 s98, %s" % sr(S_YI))
    g.e("s_cmp_ge_u32 s98, 28")
    g.e("s_cselect_b32 s99, 1, 0")
    g.e("s_mul_i32 s100, s99, 28")
    g.e("s_sub_u32 s98, s98, s100")
    g.e("s_mul_i32 s100, s99, 3584")
    g.e("s_lshl_b32 s101, s98, 7")
    g.e("s_add_u32 s100, s100, s101")
    g.e("s_add_u32 s100, s100, %d" % WS_Y)
    g.e("v_lshrrev_b32 v12, 3, v0")
    g.e("v_bfe_u32 v13, v0, 2, 1")
    g.e("v_lshl_add_u32 v12, v13, 6, v12")
    g.e("s_movk_i32 s101, 7168")
    g.e("v_mul_lo_u32 v12, v12, s101")
    g.e("v_and_b32 v13, 3, v0")
    g.e("v_lshl_add_u32 v12, v13, 5, v12")
    lp = g.newlab("FL"); ok = g.newlab("FOK")
    g.e("s_mov_b32 %s, 0" % sr(S_SPIN))
    g.lab(lp)
    g.e("buffer_load_dwordx4 v[40:43], v12, %s, s100 offen sc1" % sr(SRD_WS, 4))
    g.e("buffer_load_dwordx4 v[44:47], v12, %s, s100 offen offset:16 sc1" % sr(SRD_WS, 4))
    g.e("s_waitcnt vmcnt(0)")
    g.e("v_xor_b32 v13, %s, v41" % sr(S_TAG))
    for r_ in (43, 45, 47):
        g.e("v_xor_b32 v14, %s, %s" % (sr(S_TAG), v(r_)))
        g.e("v_or_b32 v13, v13, v14")
    g.e("v_cmp_eq_u32 vcc, 0, v13")
    g.e("s_cmp_eq_u64 vcc, exec")
    g.e("s_cbranch_scc1 %s" % ok)
    g.e("s_add_u32 %s, %s, 1" % (sr(S_SPIN), sr(S_SPIN)))
    g.e("s_cmp_gt_u32 %s, %d" % (sr(S_SPIN), SPIN_MAX))
    g.e("s_cbranch_scc0 %s" % lp)
    g.lab(ok)
    for j in range(4):
        g.e("v_mov_b32 %s, %s" % (v(32 + j), v(40 + 2 * j)))
    g.nop(1)
    for r_ in range(32, 36):
        g.e("v_add_f32_dpp %s, %s, %s row_ror:8 row_mask:0xf bank_mask:0xf" % (v(r_), v(r_), v(r_)))
    for r_ in range(32, 36):
        cross_rows(g, "v_add_f32", r_, 13)
    g.e("v_lshlrev_b32 v12, 4, %s" % v(V_LANE))
    g.e("s_lshl_b32 s101, %s, 7" % sr(S_WAVE))
    g.e("s_add_u32 s101, s101, %d" % L_FX)
    g.e("v_add_u32 v12, s101, v12")
    g.e("s_mov_b64 exec, 0xff")
    g.e("ds_write_b128 v12, v[32:35]")
    g.e("s_mov_b64 exec, -1")
    g.e("s_waitcnt lgkmcnt(0)")
    g.e("s_barrier")
    g.e("s_cmp_lg_u32 %s, 0" % sr(S_WAVE))
    g.e("s_cbranch_scc1 L_END")
    g.e("v_and_b32 v12, 31, %s" % v(V_LANE))
    g.e("v_lshlrev_b32 v12, 2, v12")
    for wv in range(8):
        g.e("ds_read_b32 %s, v12 offset:%d" % (v(32 + wv), L_FX + wv * 128))
    g.e("s_waitcnt lgkmcnt(0)")
    for wv in range(1, 8):
        g.e("v_add_f32 v32, v32, %s" % v(32 + wv))
    g.e("v_cvt_pk_bf16_f32 v32, v32, v32")
    g.e("s_movk_i32 s101, 896")
    g.e("v_mul_lo_u32 v12, %s, s101" % v(V_G))
    g.e("v_lshl_add_u32 v12, %s, 1, v12" % v(V_L16))
    g.e("s_mul_i32 s100, s99, 1792")
    g.e("s_lshl_b32 s101, s98, 5")
    g.e("s_add_u32 s100, s100, s101")
    g.e("s_mov_b32 exec_lo, -1")
    g.e("s_mov_b32 exec_hi, 0")
    g.e("buffer_store_short v32, v12, %s, s100 offen" % sr(SRD_OUT, 4))
    g.e("s_mov_b64 exec, -1")
    stamp(g, 11, 15)
    g.e("s_cmp_lg_u32 %s, 0" % sr(S_YI))
    g.e("s_cbranch_scc1 L_END")
    g.e("v_mov_b32 v13, %s" % sr(S_TAG))
    g.e("s_mov_b64 exec, 1")
    g.e("buffer_store_dword v13, off, %s, 0 sc1" % sr(SRD_WS, 4))
    g.lab("L_END")
    g.e("s_endpgm")
    g.lines += [
        '.section .rodata,"a"',
        ".p2align 6",
        ".amdhsa_kernel %s" % KN,
        "  .amdhsa_next_free_vgpr 256",
        "  .amdhsa_next_free_sgpr 102",
        "  .amdhsa_accum_offset 256",
        "  .amdhsa_group_segment_fixed_size 0",
        "  .amdhsa_kernarg_size 112",
        "  .amdhsa_user_sgpr_count 2",
        "  .amdhsa_user_sgpr_kernarg_segment_ptr 1",
        "  .amdhsa_system_sgpr_workgroup_id_x 1",
        ".end_amdhsa_kernel",
    ]
    return "\n".join(g.lines) + "\n"

if __name__ == "__main__":
    out = sys.argv[1] if len(sys.argv) > 1 and not sys.argv[1].startswith("--") else "cdna_kernels/%s.s" % NAME
    open(out, "w").write(gen())
    print("wrote", out)
```
